```python
import torch

def _softmax(x, axis=-1):
    return torch.softmax(x, dim=axis)
def _gelu(x):
    return torch.nn.functional.gelu(x, approximate="tanh")
def _silu(x):
    return torch.nn.functional.silu(x)
def _sigmoid(x):
    return torch.sigmoid(x)
def _layernorm(x, axis=-1, eps=1e-5):
    m = x.mean(dim=axis, keepdim=True)
    v = x.var(dim=axis, keepdim=True, unbiased=False)
    return (x - m) / torch.sqrt(v + eps)
def _scatter_add(tgt, idx, src, axis=0):
    return tgt.clone().index_add_(axis, idx, src)
def _segment_sum(src, seg, n):
    out = torch.zeros((n,) + src.shape[1:], dtype=src.dtype)
    return out.index_add_(0, seg, src)
def _pad(x, pw):
    flat = tuple(v for pair in reversed(pw) for v in pair)
    return torch.nn.functional.pad(x, flat)

kernel_name = 'concat_heads__sliding_block_cached__gqa_block_cached__decode'

def setup_inputs():

    _w = (lambda a: (lambda t: t.to(torch.bfloat16) if t.is_floating_point() else t)(torch.as_tensor(a)))
    def _A_setup():
        B, Sq, D = 8, 1, 512
        Hq, Hkv, Sk, Dh = 32, 8, 8192, 128
        assert Hq % Hkv == 0, (Hq, Hkv)
        return {
            "x": _w((lambda *s: torch.randn(*s, dtype=torch.bfloat16) * 0.8)(B, Sq, D)),
            "k_cache": _w((lambda *s: torch.randn(*s, dtype=torch.bfloat16) * 1.6)(B, Hkv, Sk, Dh)),
            "v_cache": _w((lambda *s: torch.randn(*s, dtype=torch.bfloat16) * 0.2)(B, Hkv, Sk, Dh)),
            "wq": _w((lambda *s: torch.randn(*s, dtype=torch.bfloat16) * 1.6)(D, Hq * Dh) * (D ** -0.5)),
            "wo": _w((lambda *s: torch.randn(*s, dtype=torch.bfloat16) * 0.2)(Hq * Dh, D) * ((Hq * Dh) ** -0.5)),
        }
    _A_in = _A_setup()

    def _B_setup():
        B, Sq, D = 8, 1, 512
        Hq, Hkv, Sk, Dh = 32, 8, 8192, 128
        assert Hq % Hkv == 0, (Hq, Hkv)
        return {
            "x": _w((lambda *s: torch.randn(*s, dtype=torch.bfloat16) * 0.8)(B, Sq, D)),
            "k_cache": _w((lambda *s: torch.randn(*s, dtype=torch.bfloat16) * 1.6)(B, Hkv, Sk, Dh)),
            "v_cache": _w((lambda *s: torch.randn(*s, dtype=torch.bfloat16) * 0.2)(B, Hkv, Sk, Dh)),
            "wq": _w((lambda *s: torch.randn(*s, dtype=torch.bfloat16) * 1.6)(D, Hq * Dh) * (D ** -0.5)),
            "wo": _w((lambda *s: torch.randn(*s, dtype=torch.bfloat16) * 0.2)(Hq * Dh, D) * ((Hq * Dh) ** -0.5)),
        }
    _B_in = _B_setup()

    return {
        "A_x": _A_in["x"],
        "A_k_cache": _A_in["k_cache"],
        "A_v_cache": _A_in["v_cache"],
        "A_wq": _A_in["wq"],
        "A_wo": _A_in["wo"],
        "B_x": _B_in["x"],
        "B_k_cache": _B_in["k_cache"],
        "B_v_cache": _B_in["v_cache"],
        "B_wq": _B_in["wq"],
        "B_wo": _B_in["wo"],
    }

def reference(A_x, A_k_cache, A_v_cache, A_wq, A_wo, B_x, B_k_cache, B_v_cache, B_wq, B_wo):
    def _A_ref(x, k_cache, v_cache, wq, wo):
        B, Sq, D = x.shape
        Hq, Dh = 32, 128
        Hkv, Sk = k_cache.shape[1], k_cache.shape[2]
        W = min(4096, max(256, Sk // 4))
        rep = Hq // Hkv
        q = (lambda x, *d: x.permute(*d))((x @ wq).reshape(B, Sq, Hq, Dh), 0, 2, 1, 3)
        k = (lambda x, n, axis: torch.repeat_interleave(x, n, dim=axis))(k_cache[:, :, Sk - W:, :], rep, axis=1)
        v = (lambda x, n, axis: torch.repeat_interleave(x, n, dim=axis))(v_cache[:, :, Sk - W:, :], rep, axis=1)
        scores = torch.einsum("bhqd,bhkd->bhqk", q, k) * (Dh ** -0.5)
        p = _softmax(scores, axis=-1)
        o = torch.einsum("bhqk,bhkd->bhqd", p, v)
        return (lambda x, *d: x.permute(*d))(o, 0, 2, 1, 3).reshape(B, Sq, Hq * Dh) @ wo

    def _B_ref(x, k_cache, v_cache, wq, wo):
        B, Sq, D = x.shape
        Hq, Dh = 32, 128
        Hkv = k_cache.shape[1]
        rep = Hq // Hkv
        q = (lambda x, *d: x.permute(*d))((x @ wq).reshape(B, Sq, Hq, Dh), 0, 2, 1, 3)
        k = (lambda x, n, axis: torch.repeat_interleave(x, n, dim=axis))(k_cache, rep, axis=1)
        v = (lambda x, n, axis: torch.repeat_interleave(x, n, dim=axis))(v_cache, rep, axis=1)
        scores = torch.einsum("bhqd,bhkd->bhqk", q, k) * (Dh ** -0.5)
        p = _softmax(scores, axis=-1)
        o = torch.einsum("bhqk,bhkd->bhqd", p, v)
        return (lambda x, *d: x.permute(*d))(o, 0, 2, 1, 3).reshape(B, Sq, Hq * Dh) @ wo

    a = _A_ref(A_x, A_k_cache, A_v_cache, A_wq, A_wo)
    b = _B_ref(B_x, B_k_cache, B_v_cache, B_wq, B_wo)
    return torch.concatenate([a, b], axis=-1)
```

```python
import sys, math
KNAME = "concat_heads__sliding_block_cached__gqa_block_cached__decode_kernel"

class Cfg:
    stamps = False
    ldflags = "nt"
    R = 4

WS_EPOCH = 0
WS_QP   = 0x010000
WS_PO   = 0x110000
WS_PML  = 0x210000
WS_OP   = 0x220000
WS_END  = 0x420000
WS_STAMP = 0x500000
WS_SIZE = 0x600000

ROW = 196*4
LDS_R1 = 0
LDS_ML = 25088
LDS_R2 = 25344
LDS_SIZE = LDS_R2 + 50176

C_SCALE = math.log2(math.e)/math.sqrt(128.0)
import struct
def f32bits(x): return struct.unpack("<I", struct.pack("<f", x))[0]

def gen(cfg=Cfg):
    L = []
    def A(s): L.append(s)
    def I(s): L.append("  " + s)
    fl = cfg.ldflags
    R = cfg.R
    assert R == 4

    sAx, sAk, sAv, sAwq, sAwo, sBx, sBk, sBv = 4, 6, 8, 10, 12, 14, 16, 18
    sBwq, sBwo, sOut, sDbg = 20, 22, 24, 26
    sWs = 28
    sPc = 30
    sK, sV, sW, sT, sT2 = 32, 36, 40, 44, 48
    sWave = 52
    sOff = 53
    sOffB = 54
    sIss = 55
    sLand = 56
    sI = 57
    sLate = 58
    sC = 59
    sFF = 60
    sMaskHi = 61
    sT0, sT1, sT2s, sT3, sT4, sT5 = 62, 63, 64, 65, 66, 67
    sTo = 68
    sEp = 69
    sB, sG, sJ = 70, 71, 72
    sLand0 = 73
    sStamp = 76
    NS = 102

    vTid = 0
    vL = 1; vOffK = 2; vOffV = 3; vLdsW = 4; vTag = 5
    vM, vMC, vLs, vMA, vLA = 6, 7, 8, 9, 10
    vS, vP, vPlo, vPhi, vTmp, vTmp2 = 11, 12, 13, 14, 15, 16
    vMask0, vMask1 = 17, 18
    vZ = 19
    vQ = 20
    vQB = 24
    vAcc = 28
    vAccA = 36
    vBp = 44
    vD = 52
    vG = 68
    NV = 128

    def srd(q, ptr, size):
        I(f"s_mov_b32 s{q}, s{ptr}")
        I(f"s_and_b32 s{q+1}, s{ptr+1}, 0xffff")
        I(f"s_mov_b32 s{q+2}, {hex(size)}")
        I(f"s_mov_b32 s{q+3}, 0x20000")

    stamp_n = [0]
    def stamp():
        if cfg.stamps:
            n = stamp_n[0]; stamp_n[0] += 1
            assert n < 10
            I(f"s_memrealtime s[{sStamp+2*n}:{sStamp+2*n+1}]")

    A(f"; @launch grid=(256,1,1) block=(256,1,1) lds={LDS_SIZE}")
    A('.amdgcn_target "amdgcn-amd-amdhsa--gfx950"')
    A(".text"); A(f".globl {KNAME}"); A(".p2align 8"); A(f".type {KNAME},@function"); A(f"{KNAME}:")
    I("s_cmp_ge_u32 s2, 256")
    I("s_cbranch_scc1 L_end")
    stamp()
    I(f"s_load_dwordx16 s[4:19], s[0:1], 0")
    I(f"s_load_dwordx8 s[20:27], s[0:1], 64")
    I(f"s_load_dwordx2 s[28:29], s[0:1], 96")
    I(f"s_getpc_b64 s[{sPc}:{sPc+1}]")
    A("L_pc:")
    I(f"v_lshlrev_b32 v{vTmp}, 7, v0")
    I(f"v_min_u32 v{vTmp}, L_end-L_pc, v{vTmp}")
    I(f"global_load_dword v{vTmp2}, v{vTmp}, s[{sPc}:{sPc+1}]")
    I(f"v_and_b32 v{vL}, 63, v0")
    I(f"v_lshrrev_b32 v{vS}, 6, v0")
    I(f"v_mov_b32 v{vZ}, 0")
    I(f"v_readfirstlane_b32 s{sWave}, v{vS}")
    I(f"v_bfe_u32 v{vP}, v{vL}, 2, 2")
    I(f"v_lshrrev_b32 v{vPlo}, 4, v{vL}")
    I(f"v_and_b32 v{vPhi}, 3, v{vL}")
    I(f"v_and_b32 v{vM}, 15, v{vL}")
    I(f"v_lshlrev_b32 v{vOffV}, 4, v{vL}")
    I(f"v_lshlrev_b32 v{vOffK}, 8, v{vP}")
    I(f"v_lshl_add_u32 v{vOffK}, v{vPlo}, 6, v{vOffK}")
    I(f"v_lshl_add_u32 v{vOffK}, v{vPhi}, 4, v{vOffK}")
    I(f"v_mul_u32_u24 v{vLdsW}, 196, v{vPhi}")
    I(f"v_mad_u32_u24 v{vLdsW}, v{vPlo}, 48, v{vLdsW}")
    I(f"v_add_lshl_u32 v{vLdsW}, v{vLdsW}, v{vP}, 2")
    vWoff, vXoff = vG, vG+1
    I(f"v_lshlrev_b32 v{vWoff}, 16, v{vPlo}")
    I(f"v_lshl_add_u32 v{vWoff}, v{vM}, 4, v{vWoff}")
    I(f"v_lshlrev_b32 v{vXoff}, 10, v{vPhi}")
    I(f"v_lshl_add_u32 v{vXoff}, v{vPlo}, 4, v{vXoff}")
    I(f"s_lshr_b32 s{sB}, s2, 5")
    I(f"s_bfe_u32 s{sG}, s2, 0x30002")
    I(f"s_and_b32 s{sJ}, s2, 3")
    I(f"s_mov_b32 s{sC}, {hex(f32bits(C_SCALE))}")
    I(f"s_mov_b32 s{sFF}, 0xff")
    I(f"s_mov_b32 s{sMaskHi}, 0xffffff00")
    I(f"s_lshr_b32 s{sT0}, s2, 2")
    I(f"s_lshl_b32 s{sT0}, s{sT0}, 21")
    I(f"s_lshl_b32 s{sT1}, s{sWave}, 12")
    I(f"s_add_u32 s{sT0}, s{sT0}, s{sT1}")
    I(f"s_lshl_b32 s{sT1}, s{sJ}, 17")
    I(f"s_add_u32 s{sOff}, s{sT0}, s{sT1}")
    I(f"s_add_u32 s{sOff}, s{sOff}, {6144*256}")
    I(f"s_lshl_b32 s{sT1}, s{sJ}, 19")
    I(f"s_add_u32 s{sOffB}, s{sT0}, s{sT1}")
    I(f"s_lshl_b32 s{sT1}, s{sJ}, 2")
    I(f"s_add_u32 s{sT1}, s{sT1}, s{sWave}")
    I(f"s_lshl_b32 s{sT2s}, s{sT1}, 18")
    I(f"s_bfe_u32 s{sT3}, s2, 0x50002")
    I(f"s_lshl_b32 s{sT3}, s{sT3}, 8")
    I(f"s_add_u32 s{sT2s}, s{sT2s}, s{sT3}")
    I(f"s_lshl_b32 s{sT1}, s{sT1}, 6")
    I("s_waitcnt lgkmcnt(0)")
    stamp()
    srd(sW, sWs, WS_SIZE)
    I(f"buffer_load_dword v{vTag}, v{vZ}, s[{sW}:{sW+3}], 0 offen offset:{WS_EPOCH} sc1")
    I(f"s_cmp_lt_u32 s2, 128")
    I(f"s_cselect_b32 s{sT}, s{sAx}, s{sBx}")
    I(f"s_cselect_b32 s{sT+1}, s{sAx+1}, s{sBx+1}")
    I(f"s_cselect_b32 s{sT2}, s{sAwq}, s{sBwq}")
    I(f"s_cselect_b32 s{sT2+1}, s{sAwq+1}, s{sBwq+1}")
    I(f"s_and_b32 s{sT+1}, s{sT+1}, 0xffff")
    I(f"s_and_b32 s{sT2+1}, s{sT2+1}, 0xffff")
    I(f"s_mov_b32 s{sT+2}, 8192"); I(f"s_mov_b32 s{sT+3}, 0x20000")
    I(f"s_mov_b32 s{sT2+2}, 0x400000"); I(f"s_mov_b32 s{sT2+3}, 0x20000")
    vX = vG + 2
    assert vX % 2 == 0
    I(f"buffer_load_dwordx4 v[{vX}:{vX+3}], v{vXoff}, s[{sT}:{sT+3}], s{sT1} offen")
    I(f"s_add_u32 s{sT1}, s{sT1}, 4096")
    I(f"buffer_load_dwordx4 v[{vX+4}:{vX+7}], v{vXoff}, s[{sT}:{sT+3}], s{sT1} offen")
    WSLOT = 3
    for t in range(8):
        a = WSLOT*32 + 4*t
        I(f"buffer_load_dwordx4 a[{a}:{a+3}], v{vWoff}, s[{sT2}:{sT2+3}], s{sT2s} offen {fl}")
        if t < 7: I(f"s_add_u32 s{sT2s}, s{sT2s}, 8192")
    srd(sK, sAk, 0x8000000)
    srd(sV, sAv, 0x8000000)
    I(f"s_mov_b32 s{sIss}, 0")

    def issue_tile(slot):
        for t in range(4):
            a = slot*32 + 4*t
            I(f"buffer_load_dwordx4 a[{a}:{a+3}], v{vOffK}, s[{sK}:{sK+3}], s{sOff} offen offset:{t*1024} {fl}")
        for t in range(4):
            a = slot*32 + 16 + 4*t
            I(f"buffer_load_dwordx4 a[{a}:{a+3}], v{vOffV}, s[{sV}:{sV+3}], s{sOff} offen offset:{t*1024} {fl}")
        I(f"s_add_u32 s{sOff}, s{sOff}, 16384")
        I(f"s_add_u32 s{sIss}, s{sIss}, 1")
        I(f"s_cmp_eq_u32 s{sIss}, 8")
        I(f"s_cselect_b32 s{sOff}, s{sOffB}, s{sOff}")
        I(f"s_cselect_b32 s{sK}, s{sBk}, s{sK}")
        I(f"s_cselect_b32 s{sK+1}, s{sBk+1}, s{sK+1}")
        I(f"s_cselect_b32 s{sV}, s{sBv}, s{sV}")
        I(f"s_cselect_b32 s{sV+1}, s{sBv+1}, s{sV+1}")

    I(f"s_and_b32 s{sBk+1}, s{sBk+1}, 0xffff")
    I(f"s_and_b32 s{sBv+1}, s{sBv+1}, 0xffff")
    issue_tile(0)
    vSel = vG + 10
    def sel_build(dst, r, lo, hi):
        I(f"v_mov_b32 v{dst}, 0x0c0c0c0c")
        I(f"v_mov_b32 v{vTmp}, {hex(lo)}")
        I(f"v_cmp_eq_u32 vcc, {2*r}, v{vP}")
        I(f"s_nop 1")
        I(f"v_cndmask_b32 v{dst}, v{dst}, v{vTmp}, vcc")
        I(f"v_mov_b32 v{vTmp}, {hex(hi)}")
        I(f"v_cmp_eq_u32 vcc, {2*r+1}, v{vP}")
        I(f"s_nop 1")
        I(f"v_cndmask_b32 v{dst}, v{dst}, v{vTmp}, vcc")
    for r in range(2):
        sel_build(vSel + 2*r + 0, r, 0x0c0c0100, 0x01000c0c)
        sel_build(vSel + 2*r + 1, r, 0x0c0c0302, 0x03020c0c)
    for r, dst in ((0, vMask0), (1, vMask1)):
        I(f"v_mov_b32 v{dst}, 0")
        I(f"v_mov_b32 v{vTmp}, 0xffff")
        I(f"v_cmp_eq_u32 vcc, {2*r}, v{vP}")
        I(f"s_nop 1")
        I(f"v_cndmask_b32 v{dst}, v{dst}, v{vTmp}, vcc")
        I(f"v_mov_b32 v{vTmp}, 0xffff0000")
        I(f"v_cmp_eq_u32 vcc, {2*r+1}, v{vP}")
        I(f"s_nop 1")
        I(f"v_cndmask_b32 v{dst}, v{dst}, v{vTmp}, vcc")
    for k in range(8): I(f"v_mov_b32 v{vBp+k}, 0")
    I("s_waitcnt vmcnt(8)")
    stamp()
    issue_tile(1)
    I(f"v_add_u32 v{vTag}, 1, v{vTag}")
    vQacc = vG + 16
    vXB = vG + 32
    for t in range(8):
        bs = vXB + (t & 1)*4
        for m in range(2):
            for r in range(2):
                I(f"v_perm_b32 v{bs+2*m+r}, v{vX+4*m+(t>>1)}, v{vX+4*m+(t>>1)}, v{vSel+2*r+(t&1)}")
        for m in range(2):
            for h in range(2):
                d = vQacc + (m*2+h)*4
                a = WSLOT*32 + 4*t + 2*h
                c = "0" if t == 0 else f"v[{d}:{d+3}]"
                I(f"v_mfma_f32_16x16x16_bf16 v[{d}:{d+3}], a[{a}:{a+1}], v[{bs+2*m}:{bs+2*m+1}], {c}")
    I(f"s_mul_i32 s{sT0}, s{sWave}, {8*ROW}")
    I(f"v_add_u32 v{vTmp}, s{sT0}, v{vLdsW}")
    I("s_nop 7")
    for m in range(2):
        for h in range(2):
            for r in range(4):
                I(f"ds_write_b32 v{vTmp}, v{vQacc+(m*2+h)*4+r} offset:{LDS_R1 + m*4*ROW + (8*r+4*h)*4}")
    vRd = vG + 40
    I(f"v_lshrrev_b32 v{vRd}, 5, v0")
    I(f"v_mul_u32_u24 v{vRd}, 196, v{vRd}")
    I(f"v_bfe_u32 v{vTmp2}, v0, 3, 2")
    I(f"v_mad_u32_u24 v{vRd}, v{vTmp2}, 48, v{vRd}")
    I(f"v_and_b32 v{vTmp2}, 7, v0")
    I(f"v_lshl_add_u32 v{vRd}, v{vTmp2}, 2, v{vRd}")
    I(f"v_lshlrev_b32 v{vRd}, 2, v{vRd}")
    I("s_waitcnt lgkmcnt(0)")
    I("s_barrier")
    vR = vG + 44
    for w in range(4):
        I(f"ds_read_b128 v[{vR+4*w}:{vR+4*w+3}], v{vRd} offset:{LDS_R1 + w*8*ROW}")
    I(f"s_lshr_b32 s{sT0}, s2, 4")
    I(f"s_lshl_b32 s{sT0}, s{sT0}, 2")
    I(f"s_add_u32 s{sT0}, s{sT0}, s{sJ}")
    I(f"s_lshl_b32 s{sT0}, s{sT0}, 14")
    I(f"s_bfe_u32 s{sT1}, s2, 0x20002")
    I(f"s_lshl_b32 s{sT1}, s{sT1}, 9")
    I(f"s_add_u32 s{sT0}, s{sT0}, s{sT1}")
    I(f"s_add_u32 s{sT0}, s{sT0}, {WS_QP}")
    I(f"v_lshrrev_b32 v{vTmp}, 5, v0")
    I(f"v_lshlrev_b32 v{vTmp}, 11, v{vTmp}")
    I(f"v_and_b32 v{vTmp2}, 31, v0")
    I(f"v_lshl_add_u32 v{vTmp}, v{vTmp2}, 4, v{vTmp}")
    I("s_waitcnt lgkmcnt(0)")
    for k in range(4):
        I(f"v_add_f32 v{vR+k}, v{vR+k}, v{vR+4+k}")
        I(f"v_add_f32 v{vR+8+k}, v{vR+8+k}, v{vR+12+k}")
    for k in range(4):
        I(f"v_add_f32 v{vR+k}, v{vR+k}, v{vR+8+k}")
    for k in range(4):
        I(f"v_bfi_b32 v{vR+k}, s{sFF}, v{vTag}, v{vR+k}")
    I(f"buffer_store_dwordx4 v[{vR}:{vR+3}], v{vTmp}, s[{sW}:{sW+3}], s{sT0} offen sc1")
    stamp()
    vQoff = vG + 41
    I(f"v_lshlrev_b32 v{vQoff}, 9, v{vPhi}")
    I(f"v_lshl_add_u32 v{vQoff}, v{vPlo}, 7, v{vQoff}")
    I(f"v_lshl_add_u32 v{vQoff}, v{vP}, 5, v{vQoff}")
    I(f"s_lshl_b32 s{sT0}, s{sG}, 2")
    I(f"s_add_u32 s{sT0}, s{sT0}, s{sWave}")
    I(f"s_lshl_b32 s{sT0}, s{sT0}, 3")
    I(f"s_add_u32 s{sT0}, s{sT0}, s{sB}")
    I(f"s_lshl_b32 s{sT0}, s{sT0}, 11")
    I(f"s_add_u32 s{sT0}, s{sT0}, {WS_QP}")
    I(f"s_add_u32 s{sT1}, s{sT0}, 0x80000")
    vQL = vG + 16
    def qpoll_loads():
        I(f"buffer_load_dwordx4 v[{vQL}:{vQL+3}], v{vQoff}, s[{sW}:{sW+3}], s{sT0} offen sc1")
        I(f"buffer_load_dwordx4 v[{vQL+4}:{vQL+7}], v{vQoff}, s[{sW}:{sW+3}], s{sT0} offen offset:16 sc1")
        I(f"buffer_load_dwordx4 v[{vQL+8}:{vQL+11}], v{vQoff}, s[{sW}:{sW+3}], s{sT1} offen sc1")
        I(f"buffer_load_dwordx4 v[{vQL+12}:{vQL+15}], v{vQoff}, s[{sW}:{sW+3}], s{sT1} offen offset:16 sc1")
    def tagcheck(regs, okl):
        I(f"v_xor_b32 v{vTmp}, v{regs[0]}, v{vTag}")
        for r in regs[1:]:
            I(f"v_bitop3_b32 v{vTmp}, v{vTmp}, v{r}, v{vTag} bitop3:0xf6")
        I(f"v_and_b32 v{vTmp}, 0xff, v{vTmp}")
        I(f"v_cmp_ne_u32 vcc, 0, v{vTmp}")
        I(f"s_cbranch_vccz {okl}")
    qregs = list(range(vQL, vQL+16))
    I(f"s_mov_b32 s{sLate}, 0")
    qpoll_loads(); issue_tile(2)
    I(f"s_mov_b32 s{sLand}, 2")
    I("s_waitcnt vmcnt(8)")
    tagcheck(qregs, "L_qok")
    qpoll_loads(); issue_tile(3)
    I(f"s_mov_b32 s{sLand}, 3")
    I("s_waitcnt vmcnt(8)")
    tagcheck(qregs, "L_qok")
    I(f"s_mov_b32 s{sLand}, 4")
    I(f"s_mov_b32 s{sLate}, 1")
    I(f"s_mov_b32 s{sTo}, 0x40000")
    A("L_qpoll:")
    qpoll_loads()
    I("s_waitcnt vmcnt(0)")
    tagcheck(qregs, "L_qok")
    I(f"s_sub_u32 s{sTo}, s{sTo}, 1")
    I(f"s_cmp_lg_u32 s{sTo}, 0")
    I("s_cbranch_scc1 L_qpoll")
    A("L_qok:")
    stamp()
    if cfg.stamps: I(f"s_mov_b32 s{sLand0}, s{sLand}")
    for r in qregs: I(f"v_and_b32 v{r}, s{sMaskHi}, v{r}")
    I(f"s_lshl_b32 s{sT0}, s{sWave}, 12")
    I(f"v_add_u32 v{vTmp}, s{sT0}, v{vOffV}")
    for k in range(4):
        I(f"ds_write_b128 v{vTmp}, v[{vQL+4*k}:{vQL+4*k+3}] offset:{LDS_R2 + k*1024}")
    I("s_waitcnt lgkmcnt(0)")
    I("s_barrier")
    vQR = vG + 0
    for br in range(2):
        for w in range(4):
            for k in range(2):
                d = vQR + (w*2+k)*4
                I(f"ds_read_b128 v[{d}:{d+3}], v{vOffV} offset:{LDS_R2 + w*4096 + (br*2+k)*1024}")
        I("s_waitcnt lgkmcnt(0)")
        for e in range(8):
            I(f"v_add_f32 v{vQR+e}, v{vQR+e}, v{vQR+8+e}")
            I(f"v_add_f32 v{vQR+16+e}, v{vQR+16+e}, v{vQR+24+e}")
        for e in range(8):
            I(f"v_add_f32 v{vQR+e}, v{vQR+e}, v{vQR+16+e}")
        dq = vQ if br == 0 else vQB
        for r in range(4):
            I(f"v_cvt_pk_bf16_f32 v{dq+r}, v{vQR+2*r}, v{vQR+2*r+1}")
    def init_state():
        for k in range(8): I(f"v_mov_b32 v{vAcc+k}, 0")
        I(f"v_mov_b32 v{vM}, 0xff800000")
        I(f"v_mov_b32 v{vMC}, 0xff800000")
        I(f"v_mov_b32 v{vLs}, 0")
    init_state()
    I(f"s_mov_b32 s{sI}, 0")
    stamp()
    A(".p2align 3")
    A("L_round:")
    rare = []
    for s in range(R):
        I(f"s_cmp_lt_u32 s{sI}, s{sLand}")
        I(f"s_cbranch_scc1 L_nowait{s}")
        I("s_waitcnt vmcnt(0)")
        A(f"L_nowait{s}:")
        I(f"s_add_u32 s{sI}, s{sI}, 1")
        if s == 1:
            I(f"s_cmp_eq_u32 s{sLate}, 1")
            I(f"s_cbranch_scc1 L_late")
            A("L_late_ret:")
        I(f"s_cmp_eq_u32 s{sIss}, s{sI}")
        I(f"s_cbranch_scc0 L_noiss{s}")
        if s == R-1:
            I(f"s_cmp_eq_u32 s{sIss}, 40")
            I(f"s_cbranch_scc1 L_wo")
        issue_tile((s+1) % R)
        A(f"L_noiss{s}:")
        for t in range(4):
            a = s*32 + 4*t
            I(f"v_mfma_f32_16x16x32_bf16 v[{vD+4*t}:{vD+4*t+3}], a[{a}:{a+3}], v[{vQ}:{vQ+3}], 0")
        I("s_nop 4")
        for t in range(4):
            hbs = [(t+1) & 3, (t+2) & 3, (t+3) & 3]
            n = [(4*(t-hb)) % 16 for hb in hbs]
            I(f"v_add_f32_dpp v{vTmp}, v{vD+4*t+hbs[0]}, v{vD+4*t+t} row_ror:{n[0]} row_mask:0xf bank_mask:0xf")
            I(f"v_add_f32_dpp v{vTmp}, v{vD+4*t+hbs[1]}, v{vTmp} row_ror:{n[1]} row_mask:0xf bank_mask:0xf")
            I(f"v_add_f32_dpp v{vS}, v{vD+4*t+hbs[2]}, v{vTmp} row_ror:{n[2]} row_mask:0xf bank_mask:{hex(1<<t)}")
        I(f"v_cmp_gt_f32 vcc, v{vS}, v{vM}")
        I(f"s_cbranch_vccnz L_rare{s}")
        A(f"L_cont{s}:")
        I(f"v_fma_f32 v{vP}, v{vS}, s{sC}, -v{vMC}")
        I(f"v_exp_f32 v{vP}, v{vP}")
        I("s_nop 0")
        I(f"v_cvt_pk_bf16_f32 v{vPlo}, v{vP}, 0")
        I(f"v_cvt_pk_bf16_f32 v{vPhi}, 0, v{vP}")
        I(f"v_add_f32 v{vLs}, v{vLs}, v{vP}")
        I("s_nop 0")
        for t in range(4):
            for beta in range(4):
                src = vPlo if beta % 2 == 0 else vPhi
                n = (4*(beta - t)) % 16
                ctl = f"row_ror:{n}" if n else "quad_perm:[0,1,2,3]"
                I(f"v_mov_b32_dpp v{vBp+2*t+(beta>>1)}, v{src} {ctl} row_mask:0xf bank_mask:{hex(1<<beta)}")
        for t in range(4):
            for h in range(2):
                a = s*32 + 16 + 4*t + 2*h
                I(f"v_mfma_f32_16x16x16_bf16 v[{vAcc+4*h}:{vAcc+4*h+3}], a[{a}:{a+1}], v[{vBp+2*t}:{vBp+2*t+1}], v[{vAcc+4*h}:{vAcc+4*h+3}]")
        rare.append(s)
    I(f"s_cmp_eq_u32 s{sI}, 8")
    I("s_cbranch_scc1 L_switch")
    A("L_switch_ret:")
    I(f"s_cmp_lt_u32 s{sI}, 40")
    I("s_cbranch_scc1 L_round")
    stamp()
    def rowsum(v):
        I("s_nop 1")
        I(f"v_add_f32_dpp v{v}, v{v}, v{v} row_ror:4 row_mask:0xf bank_mask:0xf")
        I("s_nop 1")
        I(f"v_add_f32_dpp v{v}, v{v}, v{v} row_ror:8 row_mask:0xf bank_mask:0xf")
        I(f"v_mov_b32 v{vTmp}, v{v}")
        I("s_nop 1")
        I(f"v_permlane16_swap_b32 v{v}, v{vTmp}")
        I("s_nop 1")
        I(f"v_add_f32 v{v}, v{v}, v{vTmp}")
        I(f"v_mov_b32 v{vTmp}, v{v}")
        I("s_nop 1")
        I(f"v_permlane32_swap_b32 v{v}, v{vTmp}")
        I("s_nop 1")
        I(f"v_add_f32 v{v}, v{v}, v{vTmp}")
    rowsum(vLA); rowsum(vLs)
    I(f"s_mul_i32 s{sT0}, s{sWave}, {8*ROW}")
    I(f"v_add_u32 v{vTmp2}, s{sT0}, v{vLdsW}")
    for br, acc in ((0, vAccA), (1, vAcc)):
        for h in range(2):
            for r in range(4):
                I(f"ds_write_b32 v{vTmp2}, v{acc+4*h+r} offset:{LDS_R1 + br*4*ROW + (8*r+4*h)*4}")
    I(f"s_lshl_b32 s{sT0}, s{sWave}, 6")
    I(f"v_lshl_add_u32 v{vTmp}, v{vL}, 3, s{sT0}")
    I(f"v_mov_b32 v{vG}, v{vMA}"); I(f"v_mov_b32 v{vG+1}, v{vLA}")
    I(f"v_mov_b32 v{vG+2}, v{vM}"); I(f"v_mov_b32 v{vG+3}, v{vLs}")
    I("s_mov_b64 exec, 0xf")
    I(f"ds_write_b64 v{vTmp}, v[{vG}:{vG+1}] offset:{LDS_ML}")
    I(f"ds_write_b64 v{vTmp}, v[{vG+2}:{vG+3}] offset:{LDS_ML+32}")
    I("s_mov_b64 exec, -1")
    I(f"v_lshrrev_b32 v{vG+4}, 5, v0")
    I(f"v_mul_u32_u24 v{vG+5}, 196, v{vG+4}")
    I(f"v_bfe_u32 v{vG+6}, v0, 3, 2")
    I(f"v_mad_u32_u24 v{vG+5}, v{vG+6}, 48, v{vG+5}")
    I(f"v_and_b32 v{vG+6}, 7, v0")
    I(f"v_lshl_add_u32 v{vG+5}, v{vG+6}, 2, v{vG+5}")
    I(f"v_lshlrev_b32 v{vG+5}, 2, v{vG+5}")
    vRd2 = vG + 5
    I(f"v_lshlrev_b32 v{vG+6}, 3, v{vG+4}")
    I("s_waitcnt lgkmcnt(0)")
    I("s_barrier")
    vA = vG + 8
    vMl = vG + 24
    for w in range(4):
        I(f"ds_read_b64 v[{vMl+2*w}:{vMl+2*w+1}], v{vG+6} offset:{LDS_ML + w*64}")
    for w in range(4):
        I(f"ds_read_b128 v[{vA+4*w}:{vA+4*w+3}], v{vRd2} offset:{LDS_R1 + w*8*ROW}")
    I(f"s_lshl_b32 s{sT0}, s{sG}, 3"); I(f"s_add_u32 s{sT0}, s{sT0}, s{sB}")
    I(f"s_lshl_b32 s{sT0}, s{sT0}, 2"); I(f"s_add_u32 s{sT0}, s{sT0}, s{sJ}")
    I(f"s_lshl_b32 s{sT1}, s{sT0}, 5"); I(f"s_add_u32 s{sT1}, s{sT1}, {WS_PML}")
    I(f"s_lshl_b32 s{sT0}, s{sT0}, 11"); I(f"s_add_u32 s{sT0}, s{sT0}, {WS_PO}")
    vBr, vHd = vG+32, vG+33
    I(f"v_lshrrev_b32 v{vBr}, 7, v0")
    I(f"v_bfe_u32 v{vHd}, v0, 5, 2")
    vSo, vSm = vG+34, vG+35
    I(f"v_lshlrev_b32 v{vSo}, 19, v{vBr}")
    I(f"v_lshl_add_u32 v{vSo}, v{vHd}, 9, v{vSo}")
    I(f"v_and_b32 v{vTmp}, 31, v0")
    I(f"v_lshl_add_u32 v{vSo}, v{vTmp}, 4, v{vSo}")
    I(f"v_lshlrev_b32 v{vSm}, 13, v{vBr}")
    I(f"v_lshl_add_u32 v{vSm}, v{vHd}, 3, v{vSm}")
    I("s_waitcnt lgkmcnt(4)")
    vMx = vG + 36
    I(f"v_max_f32 v{vMx}, v{vMl}, v{vMl+2}")
    I(f"v_max3_f32 v{vMx}, v{vMx}, v{vMl+4}, v{vMl+6}")
    for w in range(4):
        I(f"v_sub_f32 v{vMl+2*w}, v{vMl+2*w}, v{vMx}")
        I(f"v_mul_f32 v{vMl+2*w}, s{sC}, v{vMl+2*w}")
        I(f"v_exp_f32 v{vMl+2*w}, v{vMl+2*w}")
    I("s_nop 0")
    vLt = vG + 37
    I(f"v_mul_f32 v{vLt}, v{vMl}, v{vMl+1}")
    for w in range(1, 4):
        I(f"v_fmac_f32 v{vLt}, v{vMl+2*w}, v{vMl+2*w+1}")
    I(f"v_mul_f32 v{vMx}, s{sC}, v{vMx}")
    I("s_waitcnt lgkmcnt(0)")
    for k in range(4):
        I(f"v_mul_f32 v{vA+k}, v{vMl}, v{vA+k}")
        for w in range(1, 4):
            I(f"v_fmac_f32 v{vA+k}, v{vMl+2*w}, v{vA+4*w+k}")
    for k in range(4):
        I(f"v_bfi_b32 v{vA+k}, s{sFF}, v{vTag}, v{vA+k}")
    I(f"buffer_store_dwordx4 v[{vA}:{vA+3}], v{vSo}, s[{sW}:{sW+3}], s{sT0} offen sc1")
    assert vMx % 2 == 0 and vLt == vMx+1
    I(f"v_bfi_b32 v{vMx}, s{sFF}, v{vTag}, v{vMx}")
    I(f"v_bfi_b32 v{vLt}, s{sFF}, v{vTag}, v{vLt}")
    I(f"v_and_b32 v{vTmp}, 31, v0")
    I(f"v_cmp_eq_u32 vcc, 0, v{vTmp}")
    I(f"s_and_saveexec_b64 s[{sT2s}:{sT3}], vcc")
    assert sT2s % 2 == 0 and sT3 == sT2s+1
    I(f"buffer_store_dwordx2 v[{vMx}:{vMx+1}], v{vSm}, s[{sW}:{sW+3}], s{sT1} offen sc1")
    I(f"s_mov_b64 exec, -1")
    stamp()
    vPo, vPm = vG+0, vG+1
    I(f"v_and_b32 v{vTmp}, 3, v{vL}")
    I(f"v_bfe_u32 v{vTmp2}, v{vL}, 2, 2")
    I(f"v_lshlrev_b32 v{vPo}, 13, v{vTmp}")
    I(f"v_lshl_add_u32 v{vPo}, v{vTmp2}, 11, v{vPo}")
    I(f"v_lshlrev_b32 v{vPm}, 7, v{vTmp}")
    I(f"v_lshl_add_u32 v{vPm}, v{vTmp2}, 5, v{vPm}")
    I(f"v_lshrrev_b32 v{vTmp}, 4, v{vL}")
    I(f"v_lshl_add_u32 v{vPo}, v{vTmp}, 4, v{vPo}")
    I(f"s_lshr_b32 s{sT0}, s2, 5")
    I(f"s_bfe_u32 s{sT1}, s2, 0x20003")
    I(f"s_bfe_u32 s{sT2s}, s2, 0x10002")
    I(f"s_lshl_b32 s{sT3}, s{sT0}, 16")
    I(f"s_lshl_b32 s{sT4}, s{sT1}, 9"); I(f"s_add_u32 s{sT3}, s{sT3}, s{sT4}")
    I(f"s_lshl_b32 s{sT4}, s{sT2s}, 8"); I(f"s_add_u32 s{sT3}, s{sT3}, s{sT4}")
    I(f"s_lshl_b32 s{sT4}, s{sWave}, 6"); I(f"s_add_u32 s{sT3}, s{sT3}, s{sT4}")
    I(f"s_add_u32 s{sT3}, s{sT3}, {WS_PO}")
    I(f"s_lshl_b32 s{sT4}, s{sT0}, 10")
    I(f"s_lshl_b32 s{sT5}, s{sT1}, 3"); I(f"s_add_u32 s{sT4}, s{sT4}, s{sT5}")
    I(f"s_add_u32 s{sT4}, s{sT4}, {WS_PML}")
    sO = [96, 97, 98, 99]
    I(f"s_mov_b32 s{sO[0]}, s{sT3}")
    I(f"s_add_u32 s{sO[1]}, s{sT3}, {4*8192}")
    I(f"s_add_u32 s{sO[2]}, s{sT3}, 0x80000")
    I(f"s_add_u32 s{sO[3]}, s{sT3}, {0x80000 + 4*8192}")
    I(f"s_add_u32 s{sT5}, s{sT4}, 8192")
    vO = vG + 8
    vN = vG + 24
    I(f"s_mov_b32 s{sTo}, 0x40000")
    A("L_h1poll:")
    for br in (1, 0):
        for m in range(2):
            d = vO + (br*2+m)*4
            I(f"buffer_load_dwordx4 v[{d}:{d+3}], v{vPo}, s[{sW}:{sW+3}], s{sO[br*2+m]} offen sc1")
            d = vN + (br*2+m)*2
            so = sT4 if br == 0 else sT5
            I(f"buffer_load_dwordx2 v[{d}:{d+1}], v{vPm}, s[{sW}:{sW+3}], s{so} offen offset:{m*512} sc1")
    I("s_waitcnt vmcnt(0)")
    tagcheck(list(range(vO, vO+24)), "L_h1ok")
    I(f"s_sub_u32 s{sTo}, s{sTo}, 1")
    I(f"s_cmp_lg_u32 s{sTo}, 0")
    I("s_cbranch_scc1 L_h1poll")
    A("L_h1ok:")
    stamp()
    for r in range(vO, vO+24): I(f"v_and_b32 v{r}, s{sMaskHi}, v{r}")
    vOB = vG + 32
    vOacc = vD
    oacc = {0: vD, 1: vAccA}
    oacc[1] = vAcc
    assert vAccA == vAcc + 8
    for br in range(2):
        for m in range(2):
            o = vO + (br*2+m)*4; n = vN + (br*2+m)*2
            bs = vOB + ((br*2+m) & 1)*8
            mx = vTmp2
            I(f"v_max_f32_dpp v{mx}, v{n}, v{n} row_ror:4 row_mask:0xf bank_mask:0xf")
            I("s_nop 1")
            I(f"v_max_f32_dpp v{mx}, v{mx}, v{mx} row_ror:8 row_mask:0xf bank_mask:0xf")
            I(f"v_sub_f32 v{n}, v{n}, v{mx}")
            I(f"v_exp_f32 v{n}, v{n}")
            I("s_nop 0")
            I(f"v_mul_f32 v{n+1}, v{n}, v{n+1}")
            I("s_nop 1")
            I(f"v_add_f32_dpp v{n+1}, v{n+1}, v{n+1} row_ror:4 row_mask:0xf bank_mask:0xf")
            I("s_nop 1")
            I(f"v_add_f32_dpp v{n+1}, v{n+1}, v{n+1} row_ror:8 row_mask:0xf bank_mask:0xf")
            I(f"v_rcp_f32 v{n+1}, v{n+1}")
            I("s_nop 0")
            I(f"v_mul_f32 v{n}, v{n}, v{n+1}")
            for k in range(4): I(f"v_mul_f32 v{o+k}, v{n}, v{o+k}")
            I("s_nop 0")
            for k in range(4): I(f"v_add_f32_dpp v{o+k}, v{o+k}, v{o+k} row_ror:4 row_mask:0xf bank_mask:0xf")
            for k in range(4): I(f"v_add_f32_dpp v{o+k}, v{o+k}, v{o+k} row_ror:8 row_mask:0xf bank_mask:0xf")
            for k in range(4): I(f"v_cvt_pk_bf16_f32 v{o+k}, v{o+k}, v{o+k}")
            for k in range(4):
                I(f"v_and_b32 v{bs+2*k}, v{o+k}, v{vMask0}")
                I(f"v_and_b32 v{bs+2*k+1}, v{o+k}, v{vMask1}")
            I("s_nop 1")
            for t in range(4):
                for h in range(2):
                    d = oacc[br] + (m*2+h)*4
                    a = br*16 + 4*t + 2*h
                    c = "0" if t == 0 else f"v[{d}:{d+3}]"
                    I(f"v_mfma_f32_16x16x16_bf16 v[{d}:{d+3}], a[{a}:{a+1}], v[{bs+2*t}:{bs+2*t+1}], {c}")
    I(f"s_mul_i32 s{sT0}, s{sWave}, {16*ROW}")
    I(f"v_add_u32 v{vTmp2}, s{sT0}, v{vLdsW}")
    I("s_nop 7")
    for br in range(2):
        for m in range(2):
            for h in range(2):
                for r in range(4):
                    I(f"ds_write_b32 v{vTmp2}, v{oacc[br]+(m*2+h)*4+r} offset:{LDS_R2 + br*8*ROW + m*4*ROW + (8*r+4*h)*4}")
    I(f"s_lshr_b32 s{sT0}, s2, 2")
    I(f"s_lshl_b32 s{sT1}, s{sJ}, 6")
    I(f"s_add_u32 s{sT0}, s{sT0}, s{sT1}")
    I(f"s_lshl_b32 s{sT0}, s{sT0}, 12")
    I(f"s_add_u32 s{sT0}, s{sT0}, {WS_OP}")
    I(f"s_add_u32 s{sT1}, s{sT0}, {4*64*8*512}")
    I(f"v_lshrrev_b32 v{vG}, 5, v0")
    I(f"v_lshlrev_b32 v{vG}, 9, v{vG}")
    I(f"v_and_b32 v{vTmp}, 31, v0")
    I(f"v_lshl_add_u32 v{vG}, v{vTmp}, 4, v{vG}")
    I(f"v_add_u32 v{vG+1}, {LDS_R2}, v{vRd2}")
    I("s_waitcnt lgkmcnt(0)")
    I("s_barrier")
    vA = vG + 8
    for br in (1, 0):
        for w in range(4):
            d = vA + br*16 + 4*w
            I(f"ds_read_b128 v[{d}:{d+3}], v{vG+1} offset:{w*16*ROW + br*8*ROW}")
    for br in (1, 0):
        I(f"s_waitcnt lgkmcnt({4 if br == 1 else 0})")
        d = vA + br*16
        for k in range(4):
            I(f"v_add_f32 v{d+k}, v{d+k}, v{d+4+k}")
            I(f"v_add_f32 v{d+8+k}, v{d+8+k}, v{d+12+k}")
        for k in range(4): I(f"v_add_f32 v{d+k}, v{d+k}, v{d+8+k}")
        for k in range(4): I(f"v_bfi_b32 v{d+k}, s{sFF}, v{vTag}, v{d+k}")
        I(f"buffer_store_dwordx4 v[{d}:{d+3}], v{vG}, s[{sW}:{sW+3}], s{sT1 if br else sT0} offen sc1")
    stamp()
    I(f"s_cmp_lg_u32 s{sWave}, 0")
    I("s_cbranch_scc1 L_fin")
    I(f"s_lshr_b32 s{sT0}, s2, 7")
    I(f"s_bfe_u32 s{sT1}, s2, 0x30004")
    I(f"s_bfe_u32 s{sT2s}, s2, 0x20002")
    I(f"s_lshl_b32 s{sT3}, s{sT0}, 2"); I(f"s_add_u32 s{sT3}, s{sT3}, s{sT2s}")
    I(f"s_lshl_b32 s{sT3}, s{sT3}, 18")
    I(f"s_lshl_b32 s{sT4}, s{sT1}, 9"); I(f"s_add_u32 s{sT3}, s{sT3}, s{sT4}")
    I(f"s_lshl_b32 s{sT4}, s{sJ}, 7"); I(f"s_add_u32 s{sT3}, s{sT3}, s{sT4}")
    I(f"s_add_u32 s{sT3}, s{sT3}, {WS_OP}")
    I(f"v_lshrrev_b32 v{vG}, 3, v{vL}")
    I(f"v_lshlrev_b32 v{vG}, 12, v{vG}")
    I(f"v_and_b32 v{vG+1}, 7, v{vL}")
    I(f"v_lshl_add_u32 v{vG}, v{vG+1}, 4, v{vG}")
    vF = vG + 8
    I(f"s_mov_b32 s{sTo}, 0x40000")
    A("L_h2poll:")
    I(f"s_mov_b32 s{sT4}, s{sT3}")
    for i in range(8):
        I(f"buffer_load_dwordx4 v[{vF+4*i}:{vF+4*i+3}], v{vG}, s[{sW}:{sW+3}], s{sT4} offen sc1")
        if i < 7: I(f"s_add_u32 s{sT4}, s{sT4}, 32768")
    I("s_waitcnt vmcnt(0)")
    tagcheck(list(range(vF, vF+32)), "L_h2ok")
    I(f"s_sub_u32 s{sTo}, s{sTo}, 1")
    I(f"s_cmp_lg_u32 s{sTo}, 0")
    I("s_cbranch_scc1 L_h2poll")
    A("L_h2ok:")
    for r in range(vF, vF+32): I(f"v_and_b32 v{r}, s{sMaskHi}, v{r}")
    for step in (16, 8, 4):
        for k in range(step): I(f"v_add_f32 v{vF+k}, v{vF+k}, v{vF+step+k}")
    I("s_nop 1")
    for k in range(4): I(f"v_add_f32_dpp v{vF+k}, v{vF+k}, v{vF+k} row_ror:8 row_mask:0xf bank_mask:0xf")
    for k in range(4): I(f"v_mov_b32 v{vF+4+k}, v{vF+k}")
    I("s_nop 1")
    for k in range(4): I(f"v_permlane16_swap_b32 v{vF+k}, v{vF+4+k}")
    I("s_nop 1")
    for k in range(4): I(f"v_add_f32 v{vF+k}, v{vF+k}, v{vF+4+k}")
    for k in range(4): I(f"v_mov_b32 v{vF+4+k}, v{vF+k}")
    I("s_nop 1")
    for k in range(4): I(f"v_permlane32_swap_b32 v{vF+k}, v{vF+4+k}")
    I("s_nop 1")
    for k in range(4): I(f"v_add_f32 v{vF+k}, v{vF+k}, v{vF+4+k}")
    I(f"v_cvt_pk_bf16_f32 v{vF+8}, v{vF}, v{vF+1}")
    I(f"v_cvt_pk_bf16_f32 v{vF+9}, v{vF+2}, v{vF+3}")
    I(f"s_lshl_b32 s{sT4}, s{sT1}, 11")
    I(f"s_lshl_b32 s{sT5}, s{sT0}, 10"); I(f"s_add_u32 s{sT4}, s{sT4}, s{sT5}")
    I(f"s_lshl_b32 s{sT5}, s{sT2s}, 8"); I(f"s_add_u32 s{sT4}, s{sT4}, s{sT5}")
    I(f"s_lshl_b32 s{sT5}, s{sJ}, 6"); I(f"s_add_u32 s{sT4}, s{sT4}, s{sT5}")
    srd(sT, sOut, 16384)
    I(f"v_lshlrev_b32 v{vG+1}, 3, v{vG+1}")
    I("s_mov_b64 exec, 0xff")
    I(f"buffer_store_dwordx2 v[{vF+8}:{vF+9}], v{vG+1}, s[{sT}:{sT+3}], s{sT4} offen")
    I("s_cmp_lg_u32 s2, 0")
    I("s_cbranch_scc1 L_fin")
    I("s_mov_b64 exec, 1")
    I(f"buffer_store_dword v{vTag}, v{vZ}, s[{sW}:{sW+3}], 0 offen offset:{WS_EPOCH} sc1")
    A("L_fin:")
    if cfg.stamps:
        I("s_mov_b64 exec, 1")
        I(f"s_memrealtime s[100:101]")
        I("s_waitcnt lgkmcnt(0)")
        I(f"s_lshl_b32 s{sT0}, s2, 2"); I(f"s_add_u32 s{sT0}, s{sT0}, s{sWave}"); I(f"s_lshl_b32 s{sT0}, s{sT0}, 7")
        I(f"s_add_u32 s{sT0}, s{sT0}, {WS_STAMP}")
        for q in range(5):
            for k in range(4): I(f"v_mov_b32 v{vG+4*q+k}, s{sStamp+4*q+k}")
            I(f"buffer_store_dwordx4 v[{vG+4*q}:{vG+4*q+3}], v{vZ}, s[{sW}:{sW+3}], s{sT0} offen offset:{16*q}")
        I(f"s_getreg_b32 s{sT1}, hwreg(HW_REG_XCC_ID)")
        I(f"v_mov_b32 v{vG+20}, s100"); I(f"v_mov_b32 v{vG+21}, s101"); I(f"v_mov_b32 v{vG+22}, s{sT1}"); I(f"v_mov_b32 v{vG+23}, s{sLand0}")
        I(f"buffer_store_dwordx4 v[{vG+20}:{vG+23}], v{vZ}, s[{sW}:{sW+3}], s{sT0} offen offset:80")
    I("s_endpgm")
    for s in rare:
        A(f"L_rare{s}:")
        I(f"v_mov_b32 v{vTmp}, v{vS}")
        I("s_nop 1")
        I(f"v_max_f32_dpp v{vTmp}, v{vTmp}, v{vTmp} row_ror:4 row_mask:0xf bank_mask:0xf")
        I("s_nop 1")
        I(f"v_max_f32_dpp v{vTmp}, v{vTmp}, v{vTmp} row_ror:8 row_mask:0xf bank_mask:0xf")
        I(f"v_mov_b32 v{vTmp2}, v{vTmp}")
        I("s_nop 1")
        I(f"v_permlane16_swap_b32 v{vTmp}, v{vTmp2}")
        I("s_nop 1")
        I(f"v_max_f32 v{vTmp}, v{vTmp}, v{vTmp2}")
        I(f"v_mov_b32 v{vTmp2}, v{vTmp}")
        I("s_nop 1")
        I(f"v_permlane32_swap_b32 v{vTmp}, v{vTmp2}")
        I("s_nop 1")
        I(f"v_max3_f32 v{vTmp}, v{vTmp}, v{vTmp2}, v{vM}")
        I(f"v_sub_f32 v{vTmp2}, v{vM}, v{vTmp}")
        I(f"v_mul_f32 v{vTmp2}, s{sC}, v{vTmp2}")
        I(f"v_exp_f32 v{vTmp2}, v{vTmp2}")
        I(f"v_mov_b32 v{vM}, v{vTmp}")
        I(f"v_mul_f32 v{vMC}, s{sC}, v{vTmp}")
        I(f"v_mul_f32 v{vLs}, v{vLs}, v{vTmp2}")
        for k in range(8): I(f"v_mul_f32 v{vAcc+k}, v{vAcc+k}, v{vTmp2}")
        I(f"s_branch L_cont{s}")
    A("L_late:")
    I(f"s_mov_b32 s{sLate}, 0")
    issue_tile(0)
    I("s_branch L_late_ret")
    A("L_switch:")
    I("s_nop 7")
    for k in range(8): I(f"v_mov_b32 v{vAccA+k}, v{vAcc+k}")
    I(f"v_mov_b32 v{vMA}, v{vM}"); I(f"v_mov_b32 v{vLA}, v{vLs}")
    init_state()
    for k in range(4): I(f"v_mov_b32 v{vQ+k}, v{vQB+k}")
    I("s_branch L_switch_ret")
    A("L_wo:")
    I(f"s_lshr_b32 s{sT0}, s2, 2")
    I(f"s_lshl_b32 s{sT0}, s{sT0}, 2"); I(f"s_add_u32 s{sT0}, s{sT0}, s{sWave}")
    I(f"s_lshl_b32 s{sT0}, s{sT0}, 14")
    I(f"s_lshl_b32 s{sT1}, s{sJ}, 8"); I(f"s_add_u32 s{sT0}, s{sT0}, s{sT1}")
    srd(sT, sAwo, 0x400000)
    srd(sT2, sBwo, 0x400000)
    I(f"v_lshrrev_b32 v{vTmp}, 4, v{vL}")
    I(f"v_lshlrev_b32 v{vTmp}, 12, v{vTmp}")
    I(f"v_and_b32 v{vTmp2}, 15, v{vL}")
    I(f"v_lshl_add_u32 v{vTmp}, v{vTmp2}, 4, v{vTmp}")
    for br, q in ((1, sT2), (0, sT)):
        for t in range(4):
            a = br*16 + 4*t
            I(f"buffer_load_dwordx4 a[{a}:{a+3}], v{vTmp}, s[{q}:{q+3}], s{sT0} offen offset:{t*1024} {fl}")
    I(f"s_add_u32 s{sIss}, s{sIss}, 1")
    I(f"s_branch L_noiss{R-1}")
    A("L_end:")
    I("s_endpgm")
    A('.section .rodata,"a"'); A(".p2align 6"); A(f".amdhsa_kernel {KNAME}")
    I(f".amdhsa_next_free_vgpr {NV + 32*R}")
    I(f".amdhsa_next_free_sgpr {NS}")
    I(f".amdhsa_accum_offset {NV}")
    I(".amdhsa_group_segment_fixed_size 0")
    I(".amdhsa_kernarg_size 104")
    I(".amdhsa_user_sgpr_count 2")
    I(".amdhsa_user_sgpr_kernarg_segment_ptr 1")
    I(".amdhsa_system_sgpr_workgroup_id_x 1")
    I(".amdhsa_float_denorm_mode_32 3")
    A(".end_amdhsa_kernel")
    return "\n".join(L) + "\n"

if __name__ == "__main__":
    out = sys.argv[1]
    cfg = Cfg()
    for kv in sys.argv[2:]:
        k, v = kv.split("=")
        cur = getattr(cfg, k)
        setattr(cfg, k, (v not in ("0", "False")) if isinstance(cur, bool) else type(cur)(v))
    open(out, "w").write(gen(cfg))
```

```python
import sys, math
KNAME = "concat_heads__sliding_block_cached__gqa_block_cached__decode_kernel"

class Cfg:
    stamps = False
    ldflags = "nt"
    fAk = "nt"; fAv = "nt"; fBk = "nt"; fBv = "nt"
    fWqA = "nt"; fWqB = "nt"; fWoA = "nt"; fWoB = "nt"
    R = 4

WS_EPOCH = 0
WS_QP   = 0x010000
WS_PO   = 0x110000
WS_PML  = 0x210000
WS_OP   = 0x220000
WS_END  = 0x420000
WS_STAMP = 0x500000
WS_SIZE = 0x600000

ROW = 196*4
LDS_R1 = 0
LDS_ML = 25088
LDS_R2 = 25344
LDS_SIZE = LDS_R2 + 50176

C_SCALE = math.log2(math.e)/math.sqrt(128.0)
import struct
def f32bits(x): return struct.unpack("<I", struct.pack("<f", x))[0]

def gen(cfg=Cfg):
    L = []
    def A(s): L.append(s)
    def I(s): L.append("  " + s)
    fl = cfg.ldflags
    R = cfg.R
    assert R == 4

    sAx, sAk, sAv, sAwq, sAwo, sBx, sBk, sBv = 4, 6, 8, 10, 12, 14, 16, 18
    sBwq, sBwo, sOut, sDbg = 20, 22, 24, 26
    sWs = 28
    sPc = 30
    sK, sV, sW, sT, sT2 = 32, 36, 40, 44, 48
    sWave = 52
    sOff = 53
    sOffB = 54
    sIss = 55
    sLand = 56
    sI = 57
    sLate = 58
    sC = 59
    sFF = 60
    sMaskHi = 61
    sT0, sT1, sT2s, sT3, sT4, sT5 = 62, 63, 64, 65, 66, 67
    sTo = 68
    sEp = 69
    sB, sG, sJ = 70, 71, 72
    sLand0 = 73
    sStamp = 76
    NS = 102

    vTid = 0
    vL = 1; vOffK = 2; vOffV = 3; vLdsW = 4; vTag = 5
    vM, vMC, vLs, vMA, vLA = 6, 7, 8, 9, 10
    vS, vP, vPlo, vPhi, vTmp, vTmp2 = 11, 12, 13, 14, 15, 16
    vMask0, vMask1 = 17, 18
    vZ = 19
    vQ = 20
    vQB = 24
    vAcc = 28
    vAccA = 36
    vBp = 44
    vD = 52
    vG = 68
    NV = 128

    def srd(q, ptr, size):
        I(f"s_mov_b32 s{q}, s{ptr}")
        I(f"s_and_b32 s{q+1}, s{ptr+1}, 0xffff")
        I(f"s_mov_b32 s{q+2}, {hex(size)}")
        I(f"s_mov_b32 s{q+3}, 0x20000")

    stamp_n = [0]
    def stamp():
        if cfg.stamps:
            n = stamp_n[0]; stamp_n[0] += 1
            assert n < 10
            I(f"s_memrealtime s[{sStamp+2*n}:{sStamp+2*n+1}]")

    A(f"; @launch grid=(256,1,1) block=(256,1,1) lds={LDS_SIZE}")
    A('.amdgcn_target "amdgcn-amd-amdhsa--gfx950"')
    A(".text"); A(f".globl {KNAME}"); A(".p2align 8"); A(f".type {KNAME},@function"); A(f"{KNAME}:")
    I("s_cmp_ge_u32 s2, 256")
    I("s_cbranch_scc1 L_end")
    stamp()
    I(f"s_load_dwordx16 s[4:19], s[0:1], 0")
    I(f"s_load_dwordx8 s[20:27], s[0:1], 64")
    I(f"s_load_dwordx2 s[28:29], s[0:1], 96")
    I(f"s_getpc_b64 s[{sPc}:{sPc+1}]")
    A("L_pc:")
    I(f"v_lshlrev_b32 v{vTmp}, 7, v0")
    I(f"v_min_u32 v{vTmp}, L_end-L_pc, v{vTmp}")
    I(f"global_load_dword v{vTmp2}, v{vTmp}, s[{sPc}:{sPc+1}]")
    I(f"v_and_b32 v{vL}, 63, v0")
    I(f"v_lshrrev_b32 v{vS}, 6, v0")
    I(f"v_mov_b32 v{vZ}, 0")
    I(f"v_readfirstlane_b32 s{sWave}, v{vS}")
    I(f"v_bfe_u32 v{vP}, v{vL}, 2, 2")
    I(f"v_lshrrev_b32 v{vPlo}, 4, v{vL}")
    I(f"v_and_b32 v{vPhi}, 3, v{vL}")
    I(f"v_and_b32 v{vM}, 15, v{vL}")
    I(f"v_lshlrev_b32 v{vOffV}, 4, v{vL}")
    I(f"v_lshlrev_b32 v{vOffK}, 8, v{vP}")
    I(f"v_lshl_add_u32 v{vOffK}, v{vPlo}, 6, v{vOffK}")
    I(f"v_lshl_add_u32 v{vOffK}, v{vPhi}, 4, v{vOffK}")
    I(f"v_mul_u32_u24 v{vLdsW}, 196, v{vPhi}")
    I(f"v_mad_u32_u24 v{vLdsW}, v{vPlo}, 48, v{vLdsW}")
    I(f"v_add_lshl_u32 v{vLdsW}, v{vLdsW}, v{vP}, 2")
    vWoff, vXoff = vG, vG+1
    I(f"v_lshlrev_b32 v{vWoff}, 16, v{vPlo}")
    I(f"v_lshl_add_u32 v{vWoff}, v{vM}, 4, v{vWoff}")
    I(f"v_lshlrev_b32 v{vXoff}, 10, v{vPhi}")
    I(f"v_lshl_add_u32 v{vXoff}, v{vPlo}, 4, v{vXoff}")
    I(f"s_lshr_b32 s{sB}, s2, 5")
    I(f"s_bfe_u32 s{sG}, s2, 0x30002")
    I(f"s_and_b32 s{sJ}, s2, 3")
    I(f"s_mov_b32 s{sC}, {hex(f32bits(C_SCALE))}")
    I(f"s_mov_b32 s{sFF}, 0xff")
    I(f"s_mov_b32 s{sMaskHi}, 0xffffff00")
    I(f"s_lshr_b32 s{sT0}, s2, 2")
    I(f"s_lshl_b32 s{sT0}, s{sT0}, 21")
    I(f"s_lshl_b32 s{sT1}, s{sWave}, 12")
    I(f"s_add_u32 s{sT0}, s{sT0}, s{sT1}")
    I(f"s_lshl_b32 s{sT1}, s{sJ}, 17")
    I(f"s_add_u32 s{sOff}, s{sT0}, s{sT1}")
    I(f"s_add_u32 s{sOff}, s{sOff}, {6144*256}")
    I(f"s_lshl_b32 s{sT1}, s{sJ}, 19")
    I(f"s_add_u32 s{sOffB}, s{sT0}, s{sT1}")
    I(f"s_lshl_b32 s{sT1}, s{sJ}, 2")
    I(f"s_add_u32 s{sT1}, s{sT1}, s{sWave}")
    I(f"s_lshl_b32 s{sT2s}, s{sT1}, 18")
    I(f"s_bfe_u32 s{sT3}, s2, 0x50002")
    I(f"s_lshl_b32 s{sT3}, s{sT3}, 8")
    I(f"s_add_u32 s{sT2s}, s{sT2s}, s{sT3}")
    I(f"s_lshl_b32 s{sT1}, s{sT1}, 6")
    I("s_waitcnt lgkmcnt(0)")
    stamp()
    srd(sW, sWs, WS_SIZE)
    I(f"buffer_load_dword v{vTag}, v{vZ}, s[{sW}:{sW+3}], 0 offen offset:{WS_EPOCH} sc1")
    I(f"s_cmp_lt_u32 s2, 128")
    I(f"s_cselect_b32 s{sT}, s{sAx}, s{sBx}")
    I(f"s_cselect_b32 s{sT+1}, s{sAx+1}, s{sBx+1}")
    I(f"s_cselect_b32 s{sT2}, s{sAwq}, s{sBwq}")
    I(f"s_cselect_b32 s{sT2+1}, s{sAwq+1}, s{sBwq+1}")
    I(f"s_and_b32 s{sT+1}, s{sT+1}, 0xffff")
    I(f"s_and_b32 s{sT2+1}, s{sT2+1}, 0xffff")
    I(f"s_mov_b32 s{sT+2}, 8192"); I(f"s_mov_b32 s{sT+3}, 0x20000")
    I(f"s_mov_b32 s{sT2+2}, 0x400000"); I(f"s_mov_b32 s{sT2+3}, 0x20000")
    vX = vG + 2
    assert vX % 2 == 0
    I(f"buffer_load_dwordx4 v[{vX}:{vX+3}], v{vXoff}, s[{sT}:{sT+3}], s{sT1} offen")
    I(f"s_add_u32 s{sT1}, s{sT1}, 4096")
    I(f"buffer_load_dwordx4 v[{vX+4}:{vX+7}], v{vXoff}, s[{sT}:{sT+3}], s{sT1} offen")
    WSLOT = 3
    wqf = "" if cfg.fWqA == "def" else cfg.fWqA.replace("+", " ")
    for t in range(8):
        a = WSLOT*32 + 4*t
        I(f"buffer_load_dwordx4 a[{a}:{a+3}], v{vWoff}, s[{sT2}:{sT2+3}], s{sT2s} offen {wqf}")
        if t < 7: I(f"s_add_u32 s{sT2s}, s{sT2s}, 8192")
    srd(sK, sAk, 0x8000000)
    srd(sV, sAv, 0x8000000)
    I(f"s_mov_b32 s{sIss}, 0")
    late_blocks = []
    uniq = [0]
    def tile_loads(slot, fk, fv):
        for t in range(4):
            a = slot*32 + 4*t
            I(f"buffer_load_dwordx4 a[{a}:{a+3}], v{vOffK}, s[{sK}:{sK+3}], s{sOff} offen offset:{t*1024} {fk}")
        for t in range(4):
            a = slot*32 + 16 + 4*t
            I(f"buffer_load_dwordx4 a[{a}:{a+3}], v{vOffV}, s[{sV}:{sV+3}], s{sOff} offen offset:{t*1024} {fv}")
    def pol(x): return "" if x == "def" else x.replace("+", " ")
    def issue_tile(slot, phase=None):
        pa = (pol(cfg.fAk), pol(cfg.fAv)); pb = (pol(cfg.fBk), pol(cfg.fBv))
        if phase == "A" or pa == pb:
            tile_loads(slot, *pa)
        elif phase == "B":
            tile_loads(slot, *pb)
        else:
            u = uniq[0]; uniq[0] += 1
            I(f"s_cmp_lt_u32 s{sIss}, 8")
            I(f"s_cbranch_scc1 L_ia{u}")
            tile_loads(slot, *pb)
            A(f"L_ib{u}:")
            late_blocks.append((u, slot, pa))
        I(f"s_add_u32 s{sOff}, s{sOff}, 16384")
        I(f"s_add_u32 s{sIss}, s{sIss}, 1")
        I(f"s_cmp_eq_u32 s{sIss}, 8")
        I(f"s_cselect_b32 s{sOff}, s{sOffB}, s{sOff}")
        I(f"s_cselect_b32 s{sK}, s{sBk}, s{sK}")
        I(f"s_cselect_b32 s{sK+1}, s{sBk+1}, s{sK+1}")
        I(f"s_cselect_b32 s{sV}, s{sBv}, s{sV}")
        I(f"s_cselect_b32 s{sV+1}, s{sBv+1}, s{sV+1}")

    I(f"s_and_b32 s{sBk+1}, s{sBk+1}, 0xffff")
    I(f"s_and_b32 s{sBv+1}, s{sBv+1}, 0xffff")
    issue_tile(0, "A")
    vSel = vG + 10
    def sel_build(dst, r, lo, hi):
        I(f"v_mov_b32 v{dst}, 0x0c0c0c0c")
        I(f"v_mov_b32 v{vTmp}, {hex(lo)}")
        I(f"v_cmp_eq_u32 vcc, {2*r}, v{vP}")
        I(f"s_nop 1")
        I(f"v_cndmask_b32 v{dst}, v{dst}, v{vTmp}, vcc")
        I(f"v_mov_b32 v{vTmp}, {hex(hi)}")
        I(f"v_cmp_eq_u32 vcc, {2*r+1}, v{vP}")
        I(f"s_nop 1")
        I(f"v_cndmask_b32 v{dst}, v{dst}, v{vTmp}, vcc")
    for r in range(2):
        sel_build(vSel + 2*r + 0, r, 0x0c0c0100, 0x01000c0c)
        sel_build(vSel + 2*r + 1, r, 0x0c0c0302, 0x03020c0c)
    for r, dst in ((0, vMask0), (1, vMask1)):
        I(f"v_mov_b32 v{dst}, 0")
        I(f"v_mov_b32 v{vTmp}, 0xffff")
        I(f"v_cmp_eq_u32 vcc, {2*r}, v{vP}")
        I(f"s_nop 1")
        I(f"v_cndmask_b32 v{dst}, v{dst}, v{vTmp}, vcc")
        I(f"v_mov_b32 v{vTmp}, 0xffff0000")
        I(f"v_cmp_eq_u32 vcc, {2*r+1}, v{vP}")
        I(f"s_nop 1")
        I(f"v_cndmask_b32 v{dst}, v{dst}, v{vTmp}, vcc")
    for k in range(8): I(f"v_mov_b32 v{vBp+k}, 0")
    I("s_waitcnt vmcnt(8)")
    stamp()
    issue_tile(1, "A")
    I(f"v_add_u32 v{vTag}, 1, v{vTag}")
    vQacc = vG + 16
    vXB = vG + 32
    for t in range(8):
        bs = vXB + (t & 1)*4
        for m in range(2):
            for r in range(2):
                I(f"v_perm_b32 v{bs+2*m+r}, v{vX+4*m+(t>>1)}, v{vX+4*m+(t>>1)}, v{vSel+2*r+(t&1)}")
        for m in range(2):
            for h in range(2):
                d = vQacc + (m*2+h)*4
                a = WSLOT*32 + 4*t + 2*h
                c = "0" if t == 0 else f"v[{d}:{d+3}]"
                I(f"v_mfma_f32_16x16x16_bf16 v[{d}:{d+3}], a[{a}:{a+1}], v[{bs+2*m}:{bs+2*m+1}], {c}")
    I(f"s_mul_i32 s{sT0}, s{sWave}, {8*ROW}")
    I(f"v_add_u32 v{vTmp}, s{sT0}, v{vLdsW}")
    I("s_nop 7")
    for m in range(2):
        for h in range(2):
            for r in range(4):
                I(f"ds_write_b32 v{vTmp}, v{vQacc+(m*2+h)*4+r} offset:{LDS_R1 + m*4*ROW + (8*r+4*h)*4}")
    vRd = vG + 40
    I(f"v_lshrrev_b32 v{vRd}, 5, v0")
    I(f"v_mul_u32_u24 v{vRd}, 196, v{vRd}")
    I(f"v_bfe_u32 v{vTmp2}, v0, 3, 2")
    I(f"v_mad_u32_u24 v{vRd}, v{vTmp2}, 48, v{vRd}")
    I(f"v_and_b32 v{vTmp2}, 7, v0")
    I(f"v_lshl_add_u32 v{vRd}, v{vTmp2}, 2, v{vRd}")
    I(f"v_lshlrev_b32 v{vRd}, 2, v{vRd}")
    I("s_waitcnt lgkmcnt(0)")
    I("s_barrier")
    vR = vG + 44
    for w in range(4):
        I(f"ds_read_b128 v[{vR+4*w}:{vR+4*w+3}], v{vRd} offset:{LDS_R1 + w*8*ROW}")
    I(f"s_lshr_b32 s{sT0}, s2, 4")
    I(f"s_lshl_b32 s{sT0}, s{sT0}, 2")
    I(f"s_add_u32 s{sT0}, s{sT0}, s{sJ}")
    I(f"s_lshl_b32 s{sT0}, s{sT0}, 14")
    I(f"s_bfe_u32 s{sT1}, s2, 0x20002")
    I(f"s_lshl_b32 s{sT1}, s{sT1}, 9")
    I(f"s_add_u32 s{sT0}, s{sT0}, s{sT1}")
    I(f"s_add_u32 s{sT0}, s{sT0}, {WS_QP}")
    I(f"v_lshrrev_b32 v{vTmp}, 5, v0")
    I(f"v_lshlrev_b32 v{vTmp}, 11, v{vTmp}")
    I(f"v_and_b32 v{vTmp2}, 31, v0")
    I(f"v_lshl_add_u32 v{vTmp}, v{vTmp2}, 4, v{vTmp}")
    I("s_waitcnt lgkmcnt(0)")
    for k in range(4):
        I(f"v_add_f32 v{vR+k}, v{vR+k}, v{vR+4+k}")
        I(f"v_add_f32 v{vR+8+k}, v{vR+8+k}, v{vR+12+k}")
    for k in range(4):
        I(f"v_add_f32 v{vR+k}, v{vR+k}, v{vR+8+k}")
    for k in range(4):
        I(f"v_bfi_b32 v{vR+k}, s{sFF}, v{vTag}, v{vR+k}")
    I(f"buffer_store_dwordx4 v[{vR}:{vR+3}], v{vTmp}, s[{sW}:{sW+3}], s{sT0} offen sc1")
    stamp()
    vQoff = vG + 41
    I(f"v_lshlrev_b32 v{vQoff}, 9, v{vPhi}")
    I(f"v_lshl_add_u32 v{vQoff}, v{vPlo}, 7, v{vQoff}")
    I(f"v_lshl_add_u32 v{vQoff}, v{vP}, 5, v{vQoff}")
    I(f"s_lshl_b32 s{sT0}, s{sG}, 2")
    I(f"s_add_u32 s{sT0}, s{sT0}, s{sWave}")
    I(f"s_lshl_b32 s{sT0}, s{sT0}, 3")
    I(f"s_add_u32 s{sT0}, s{sT0}, s{sB}")
    I(f"s_lshl_b32 s{sT0}, s{sT0}, 11")
    I(f"s_add_u32 s{sT0}, s{sT0}, {WS_QP}")
    I(f"s_add_u32 s{sT1}, s{sT0}, 0x80000")
    vQL = vG + 16
    def qpoll_loads():
        I(f"buffer_load_dwordx4 v[{vQL}:{vQL+3}], v{vQoff}, s[{sW}:{sW+3}], s{sT0} offen sc1")
        I(f"buffer_load_dwordx4 v[{vQL+4}:{vQL+7}], v{vQoff}, s[{sW}:{sW+3}], s{sT0} offen offset:16 sc1")
        I(f"buffer_load_dwordx4 v[{vQL+8}:{vQL+11}], v{vQoff}, s[{sW}:{sW+3}], s{sT1} offen sc1")
        I(f"buffer_load_dwordx4 v[{vQL+12}:{vQL+15}], v{vQoff}, s[{sW}:{sW+3}], s{sT1} offen offset:16 sc1")
    def tagcheck(regs, okl):
        I(f"v_xor_b32 v{vTmp}, v{regs[0]}, v{vTag}")
        for r in regs[1:]:
            I(f"v_bitop3_b32 v{vTmp}, v{vTmp}, v{r}, v{vTag} bitop3:0xf6")
        I(f"v_and_b32 v{vTmp}, 0xff, v{vTmp}")
        I(f"v_cmp_ne_u32 vcc, 0, v{vTmp}")
        I(f"s_cbranch_vccz {okl}")
    qregs = list(range(vQL, vQL+16))
    I(f"s_mov_b32 s{sLate}, 0")
    qpoll_loads(); issue_tile(2, "A")
    I(f"s_mov_b32 s{sLand}, 2")
    I("s_waitcnt vmcnt(8)")
    tagcheck(qregs, "L_qok")
    qpoll_loads(); issue_tile(3, "A")
    I(f"s_mov_b32 s{sLand}, 3")
    I("s_waitcnt vmcnt(8)")
    tagcheck(qregs, "L_qok")
    I(f"s_mov_b32 s{sLand}, 4")
    I(f"s_mov_b32 s{sLate}, 1")
    I(f"s_mov_b32 s{sTo}, 0x40000")
    A("L_qpoll:")
    qpoll_loads()
    I("s_waitcnt vmcnt(0)")
    tagcheck(qregs, "L_qok")
    I(f"s_sub_u32 s{sTo}, s{sTo}, 1")
    I(f"s_cmp_lg_u32 s{sTo}, 0")
    I("s_cbranch_scc1 L_qpoll")
    A("L_qok:")
    stamp()
    if cfg.stamps: I(f"s_mov_b32 s{sLand0}, s{sLand}")
    for r in qregs: I(f"v_and_b32 v{r}, s{sMaskHi}, v{r}")
    I(f"s_lshl_b32 s{sT0}, s{sWave}, 12")
    I(f"v_add_u32 v{vTmp}, s{sT0}, v{vOffV}")
    for k in range(4):
        I(f"ds_write_b128 v{vTmp}, v[{vQL+4*k}:{vQL+4*k+3}] offset:{LDS_R2 + k*1024}")
    I("s_waitcnt lgkmcnt(0)")
    I("s_barrier")
    vQR = vG + 0
    for br in range(2):
        for w in range(4):
            for k in range(2):
                d = vQR + (w*2+k)*4
                I(f"ds_read_b128 v[{d}:{d+3}], v{vOffV} offset:{LDS_R2 + w*4096 + (br*2+k)*1024}")
        I("s_waitcnt lgkmcnt(0)")
        for e in range(8):
            I(f"v_add_f32 v{vQR+e}, v{vQR+e}, v{vQR+8+e}")
            I(f"v_add_f32 v{vQR+16+e}, v{vQR+16+e}, v{vQR+24+e}")
        for e in range(8):
            I(f"v_add_f32 v{vQR+e}, v{vQR+e}, v{vQR+16+e}")
        dq = vQ if br == 0 else vQB
        for r in range(4):
            I(f"v_cvt_pk_bf16_f32 v{dq+r}, v{vQR+2*r}, v{vQR+2*r+1}")
    def init_state():
        for k in range(8): I(f"v_mov_b32 v{vAcc+k}, 0")
        I(f"v_mov_b32 v{vM}, 0xff800000")
        I(f"v_mov_b32 v{vMC}, 0xff800000")
        I(f"v_mov_b32 v{vLs}, 0")
    init_state()
    I(f"s_mov_b32 s{sI}, 0")
    stamp()
    A(".p2align 3")
    A("L_round:")
    rare = []
    for s in range(R):
        I(f"s_cmp_lt_u32 s{sI}, s{sLand}")
        I(f"s_cbranch_scc1 L_nowait{s}")
        I("s_waitcnt vmcnt(0)")
        A(f"L_nowait{s}:")
        I(f"s_add_u32 s{sI}, s{sI}, 1")
        if s == 1:
            I(f"s_cmp_eq_u32 s{sLate}, 1")
            I(f"s_cbranch_scc1 L_late")
            A("L_late_ret:")
        I(f"s_cmp_eq_u32 s{sIss}, s{sI}")
        I(f"s_cbranch_scc0 L_noiss{s}")
        if s == R-1:
            I(f"s_cmp_eq_u32 s{sIss}, 40")
            I(f"s_cbranch_scc1 L_wo")
        issue_tile((s+1) % R)
        A(f"L_noiss{s}:")
        for t in range(4):
            a = s*32 + 4*t
            I(f"v_mfma_f32_16x16x32_bf16 v[{vD+4*t}:{vD+4*t+3}], a[{a}:{a+3}], v[{vQ}:{vQ+3}], 0")
        I("s_nop 4")
        for t in range(4):
            hbs = [(t+1) & 3, (t+2) & 3, (t+3) & 3]
            n = [(4*(t-hb)) % 16 for hb in hbs]
            I(f"v_add_f32_dpp v{vTmp}, v{vD+4*t+hbs[0]}, v{vD+4*t+t} row_ror:{n[0]} row_mask:0xf bank_mask:0xf")
            I(f"v_add_f32_dpp v{vTmp}, v{vD+4*t+hbs[1]}, v{vTmp} row_ror:{n[1]} row_mask:0xf bank_mask:0xf")
            I(f"v_add_f32_dpp v{vS}, v{vD+4*t+hbs[2]}, v{vTmp} row_ror:{n[2]} row_mask:0xf bank_mask:{hex(1<<t)}")
        I(f"v_cmp_gt_f32 vcc, v{vS}, v{vM}")
        I(f"s_cbranch_vccnz L_rare{s}")
        A(f"L_cont{s}:")
        I(f"v_fma_f32 v{vP}, v{vS}, s{sC}, -v{vMC}")
        I(f"v_exp_f32 v{vP}, v{vP}")
        I("s_nop 0")
        I(f"v_cvt_pk_bf16_f32 v{vPlo}, v{vP}, 0")
        I(f"v_cvt_pk_bf16_f32 v{vPhi}, 0, v{vP}")
        I(f"v_add_f32 v{vLs}, v{vLs}, v{vP}")
        I("s_nop 0")
        for t in range(4):
            for beta in range(4):
                src = vPlo if beta % 2 == 0 else vPhi
                n = (4*(beta - t)) % 16
                ctl = f"row_ror:{n}" if n else "quad_perm:[0,1,2,3]"
                I(f"v_mov_b32_dpp v{vBp+2*t+(beta>>1)}, v{src} {ctl} row_mask:0xf bank_mask:{hex(1<<beta)}")
        for t in range(4):
            for h in range(2):
                a = s*32 + 16 + 4*t + 2*h
                I(f"v_mfma_f32_16x16x16_bf16 v[{vAcc+4*h}:{vAcc+4*h+3}], a[{a}:{a+1}], v[{vBp+2*t}:{vBp+2*t+1}], v[{vAcc+4*h}:{vAcc+4*h+3}]")
        rare.append(s)
    I(f"s_cmp_eq_u32 s{sI}, 8")
    I("s_cbranch_scc1 L_switch")
    A("L_switch_ret:")
    I(f"s_cmp_lt_u32 s{sI}, 40")
    I("s_cbranch_scc1 L_round")
    stamp()
    def rowsum(v):
        I("s_nop 1")
        I(f"v_add_f32_dpp v{v}, v{v}, v{v} row_ror:4 row_mask:0xf bank_mask:0xf")
        I("s_nop 1")
        I(f"v_add_f32_dpp v{v}, v{v}, v{v} row_ror:8 row_mask:0xf bank_mask:0xf")
        I(f"v_mov_b32 v{vTmp}, v{v}")
        I("s_nop 1")
        I(f"v_permlane16_swap_b32 v{v}, v{vTmp}")
        I("s_nop 1")
        I(f"v_add_f32 v{v}, v{v}, v{vTmp}")
        I(f"v_mov_b32 v{vTmp}, v{v}")
        I("s_nop 1")
        I(f"v_permlane32_swap_b32 v{v}, v{vTmp}")
        I("s_nop 1")
        I(f"v_add_f32 v{v}, v{v}, v{vTmp}")
    rowsum(vLA); rowsum(vLs)
    I(f"s_mul_i32 s{sT0}, s{sWave}, {8*ROW}")
    I(f"v_add_u32 v{vTmp2}, s{sT0}, v{vLdsW}")
    for br, acc in ((0, vAccA), (1, vAcc)):
        for h in range(2):
            for r in range(4):
                I(f"ds_write_b32 v{vTmp2}, v{acc+4*h+r} offset:{LDS_R1 + br*4*ROW + (8*r+4*h)*4}")
    I(f"s_lshl_b32 s{sT0}, s{sWave}, 6")
    I(f"v_lshl_add_u32 v{vTmp}, v{vL}, 3, s{sT0}")
    I(f"v_mov_b32 v{vG}, v{vMA}"); I(f"v_mov_b32 v{vG+1}, v{vLA}")
    I(f"v_mov_b32 v{vG+2}, v{vM}"); I(f"v_mov_b32 v{vG+3}, v{vLs}")
    I("s_mov_b64 exec, 0xf")
    I(f"ds_write_b64 v{vTmp}, v[{vG}:{vG+1}] offset:{LDS_ML}")
    I(f"ds_write_b64 v{vTmp}, v[{vG+2}:{vG+3}] offset:{LDS_ML+32}")
    I("s_mov_b64 exec, -1")
    I(f"v_lshrrev_b32 v{vG+4}, 5, v0")
    I(f"v_mul_u32_u24 v{vG+5}, 196, v{vG+4}")
    I(f"v_bfe_u32 v{vG+6}, v0, 3, 2")
    I(f"v_mad_u32_u24 v{vG+5}, v{vG+6}, 48, v{vG+5}")
    I(f"v_and_b32 v{vG+6}, 7, v0")
    I(f"v_lshl_add_u32 v{vG+5}, v{vG+6}, 2, v{vG+5}")
    I(f"v_lshlrev_b32 v{vG+5}, 2, v{vG+5}")
    vRd2 = vG + 5
    I(f"v_lshlrev_b32 v{vG+6}, 3, v{vG+4}")
    I("s_waitcnt lgkmcnt(0)")
    I("s_barrier")
    vA = vG + 8
    vMl = vG + 24
    for w in range(4):
        I(f"ds_read_b64 v[{vMl+2*w}:{vMl+2*w+1}], v{vG+6} offset:{LDS_ML + w*64}")
    for w in range(4):
        I(f"ds_read_b128 v[{vA+4*w}:{vA+4*w+3}], v{vRd2} offset:{LDS_R1 + w*8*ROW}")
    I(f"s_lshl_b32 s{sT0}, s{sG}, 3"); I(f"s_add_u32 s{sT0}, s{sT0}, s{sB}")
    I(f"s_lshl_b32 s{sT0}, s{sT0}, 2"); I(f"s_add_u32 s{sT0}, s{sT0}, s{sJ}")
    I(f"s_lshl_b32 s{sT1}, s{sT0}, 5"); I(f"s_add_u32 s{sT1}, s{sT1}, {WS_PML}")
    I(f"s_lshl_b32 s{sT0}, s{sT0}, 11"); I(f"s_add_u32 s{sT0}, s{sT0}, {WS_PO}")
    vBr, vHd = vG+32, vG+33
    I(f"v_lshrrev_b32 v{vBr}, 7, v0")
    I(f"v_bfe_u32 v{vHd}, v0, 5, 2")
    vSo, vSm = vG+34, vG+35
    I(f"v_lshlrev_b32 v{vSo}, 19, v{vBr}")
    I(f"v_lshl_add_u32 v{vSo}, v{vHd}, 9, v{vSo}")
    I(f"v_and_b32 v{vTmp}, 31, v0")
    I(f"v_lshl_add_u32 v{vSo}, v{vTmp}, 4, v{vSo}")
    I(f"v_lshlrev_b32 v{vSm}, 13, v{vBr}")
    I(f"v_lshl_add_u32 v{vSm}, v{vHd}, 3, v{vSm}")
    I("s_waitcnt lgkmcnt(4)")
    vMx = vG + 36
    I(f"v_max_f32 v{vMx}, v{vMl}, v{vMl+2}")
    I(f"v_max3_f32 v{vMx}, v{vMx}, v{vMl+4}, v{vMl+6}")
    for w in range(4):
        I(f"v_sub_f32 v{vMl+2*w}, v{vMl+2*w}, v{vMx}")
        I(f"v_mul_f32 v{vMl+2*w}, s{sC}, v{vMl+2*w}")
        I(f"v_exp_f32 v{vMl+2*w}, v{vMl+2*w}")
    I("s_nop 0")
    vLt = vG + 37
    I(f"v_mul_f32 v{vLt}, v{vMl}, v{vMl+1}")
    for w in range(1, 4):
        I(f"v_fmac_f32 v{vLt}, v{vMl+2*w}, v{vMl+2*w+1}")
    I(f"v_mul_f32 v{vMx}, s{sC}, v{vMx}")
    I("s_waitcnt lgkmcnt(0)")
    for k in range(4):
        I(f"v_mul_f32 v{vA+k}, v{vMl}, v{vA+k}")
        for w in range(1, 4):
            I(f"v_fmac_f32 v{vA+k}, v{vMl+2*w}, v{vA+4*w+k}")
    for k in range(4):
        I(f"v_bfi_b32 v{vA+k}, s{sFF}, v{vTag}, v{vA+k}")
    I(f"buffer_store_dwordx4 v[{vA}:{vA+3}], v{vSo}, s[{sW}:{sW+3}], s{sT0} offen sc1")
    assert vMx % 2 == 0 and vLt == vMx+1
    I(f"v_bfi_b32 v{vMx}, s{sFF}, v{vTag}, v{vMx}")
    I(f"v_bfi_b32 v{vLt}, s{sFF}, v{vTag}, v{vLt}")
    I(f"v_and_b32 v{vTmp}, 31, v0")
    I(f"v_cmp_eq_u32 vcc, 0, v{vTmp}")
    I(f"s_and_saveexec_b64 s[{sT2s}:{sT3}], vcc")
    assert sT2s % 2 == 0 and sT3 == sT2s+1
    I(f"buffer_store_dwordx2 v[{vMx}:{vMx+1}], v{vSm}, s[{sW}:{sW+3}], s{sT1} offen sc1")
    I(f"s_mov_b64 exec, -1")
    stamp()
    vPo, vPm = vG+0, vG+1
    I(f"v_and_b32 v{vTmp}, 3, v{vL}")
    I(f"v_bfe_u32 v{vTmp2}, v{vL}, 2, 2")
    I(f"v_lshlrev_b32 v{vPo}, 13, v{vTmp}")
    I(f"v_lshl_add_u32 v{vPo}, v{vTmp2}, 11, v{vPo}")
    I(f"v_lshlrev_b32 v{vPm}, 7, v{vTmp}")
    I(f"v_lshl_add_u32 v{vPm}, v{vTmp2}, 5, v{vPm}")
    I(f"v_lshrrev_b32 v{vTmp}, 4, v{vL}")
    I(f"v_lshl_add_u32 v{vPo}, v{vTmp}, 4, v{vPo}")
    I(f"s_lshr_b32 s{sT0}, s2, 5")
    I(f"s_bfe_u32 s{sT1}, s2, 0x20003")
    I(f"s_bfe_u32 s{sT2s}, s2, 0x10002")
    I(f"s_lshl_b32 s{sT3}, s{sT0}, 16")
    I(f"s_lshl_b32 s{sT4}, s{sT1}, 9"); I(f"s_add_u32 s{sT3}, s{sT3}, s{sT4}")
    I(f"s_lshl_b32 s{sT4}, s{sT2s}, 8"); I(f"s_add_u32 s{sT3}, s{sT3}, s{sT4}")
    I(f"s_lshl_b32 s{sT4}, s{sWave}, 6"); I(f"s_add_u32 s{sT3}, s{sT3}, s{sT4}")
    I(f"s_add_u32 s{sT3}, s{sT3}, {WS_PO}")
    I(f"s_lshl_b32 s{sT4}, s{sT0}, 10")
    I(f"s_lshl_b32 s{sT5}, s{sT1}, 3"); I(f"s_add_u32 s{sT4}, s{sT4}, s{sT5}")
    I(f"s_add_u32 s{sT4}, s{sT4}, {WS_PML}")
    sO = [96, 97, 98, 99]
    I(f"s_mov_b32 s{sO[0]}, s{sT3}")
    I(f"s_add_u32 s{sO[1]}, s{sT3}, {4*8192}")
    I(f"s_add_u32 s{sO[2]}, s{sT3}, 0x80000")
    I(f"s_add_u32 s{sO[3]}, s{sT3}, {0x80000 + 4*8192}")
    I(f"s_add_u32 s{sT5}, s{sT4}, 8192")
    vO = vG + 8
    vN = vG + 24
    I(f"s_mov_b32 s{sTo}, 0x40000")
    A("L_h1poll:")
    for br in (1, 0):
        for m in range(2):
            d = vO + (br*2+m)*4
            I(f"buffer_load_dwordx4 v[{d}:{d+3}], v{vPo}, s[{sW}:{sW+3}], s{sO[br*2+m]} offen sc1")
            d = vN + (br*2+m)*2
            so = sT4 if br == 0 else sT5
            I(f"buffer_load_dwordx2 v[{d}:{d+1}], v{vPm}, s[{sW}:{sW+3}], s{so} offen offset:{m*512} sc1")
    I("s_waitcnt vmcnt(0)")
    tagcheck(list(range(vO, vO+24)), "L_h1ok")
    I(f"s_sub_u32 s{sTo}, s{sTo}, 1")
    I(f"s_cmp_lg_u32 s{sTo}, 0")
    I("s_cbranch_scc1 L_h1poll")
    A("L_h1ok:")
    stamp()
    for r in range(vO, vO+24): I(f"v_and_b32 v{r}, s{sMaskHi}, v{r}")
    vOB = vG + 32
    vOacc = vD
    oacc = {0: vD, 1: vAccA}
    oacc[1] = vAcc
    assert vAccA == vAcc + 8
    for br in range(2):
        for m in range(2):
            o = vO + (br*2+m)*4; n = vN + (br*2+m)*2
            bs = vOB + ((br*2+m) & 1)*8
            mx = vTmp2
            I(f"v_max_f32_dpp v{mx}, v{n}, v{n} row_ror:4 row_mask:0xf bank_mask:0xf")
            I("s_nop 1")
            I(f"v_max_f32_dpp v{mx}, v{mx}, v{mx} row_ror:8 row_mask:0xf bank_mask:0xf")
            I(f"v_sub_f32 v{n}, v{n}, v{mx}")
            I(f"v_exp_f32 v{n}, v{n}")
            I("s_nop 0")
            I(f"v_mul_f32 v{n+1}, v{n}, v{n+1}")
            I("s_nop 1")
            I(f"v_add_f32_dpp v{n+1}, v{n+1}, v{n+1} row_ror:4 row_mask:0xf bank_mask:0xf")
            I("s_nop 1")
            I(f"v_add_f32_dpp v{n+1}, v{n+1}, v{n+1} row_ror:8 row_mask:0xf bank_mask:0xf")
            I(f"v_rcp_f32 v{n+1}, v{n+1}")
            I("s_nop 0")
            I(f"v_mul_f32 v{n}, v{n}, v{n+1}")
            for k in range(4): I(f"v_mul_f32 v{o+k}, v{n}, v{o+k}")
            I("s_nop 0")
            for k in range(4): I(f"v_add_f32_dpp v{o+k}, v{o+k}, v{o+k} row_ror:4 row_mask:0xf bank_mask:0xf")
            for k in range(4): I(f"v_add_f32_dpp v{o+k}, v{o+k}, v{o+k} row_ror:8 row_mask:0xf bank_mask:0xf")
            for k in range(4): I(f"v_cvt_pk_bf16_f32 v{o+k}, v{o+k}, v{o+k}")
            for k in range(4):
                I(f"v_and_b32 v{bs+2*k}, v{o+k}, v{vMask0}")
                I(f"v_and_b32 v{bs+2*k+1}, v{o+k}, v{vMask1}")
            I("s_nop 1")
            for t in range(4):
                for h in range(2):
                    d = oacc[br] + (m*2+h)*4
                    a = br*16 + 4*t + 2*h
                    c = "0" if t == 0 else f"v[{d}:{d+3}]"
                    I(f"v_mfma_f32_16x16x16_bf16 v[{d}:{d+3}], a[{a}:{a+1}], v[{bs+2*t}:{bs+2*t+1}], {c}")
    I(f"s_mul_i32 s{sT0}, s{sWave}, {16*ROW}")
    I(f"v_add_u32 v{vTmp2}, s{sT0}, v{vLdsW}")
    I("s_nop 7")
    for br in range(2):
        for m in range(2):
            for h in range(2):
                for r in range(4):
                    I(f"ds_write_b32 v{vTmp2}, v{oacc[br]+(m*2+h)*4+r} offset:{LDS_R2 + br*8*ROW + m*4*ROW + (8*r+4*h)*4}")
    I(f"s_lshr_b32 s{sT0}, s2, 2")
    I(f"s_lshl_b32 s{sT1}, s{sJ}, 6")
    I(f"s_add_u32 s{sT0}, s{sT0}, s{sT1}")
    I(f"s_lshl_b32 s{sT0}, s{sT0}, 12")
    I(f"s_add_u32 s{sT0}, s{sT0}, {WS_OP}")
    I(f"s_add_u32 s{sT1}, s{sT0}, {4*64*8*512}")
    I(f"v_lshrrev_b32 v{vG}, 5, v0")
    I(f"v_lshlrev_b32 v{vG}, 9, v{vG}")
    I(f"v_and_b32 v{vTmp}, 31, v0")
    I(f"v_lshl_add_u32 v{vG}, v{vTmp}, 4, v{vG}")
    I(f"v_add_u32 v{vG+1}, {LDS_R2}, v{vRd2}")
    I("s_waitcnt lgkmcnt(0)")
    I("s_barrier")
    vA = vG + 8
    for br in (1, 0):
        for w in range(4):
            d = vA + br*16 + 4*w
            I(f"ds_read_b128 v[{d}:{d+3}], v{vG+1} offset:{w*16*ROW + br*8*ROW}")
    for br in (1, 0):
        I(f"s_waitcnt lgkmcnt({4 if br == 1 else 0})")
        d = vA + br*16
        for k in range(4):
            I(f"v_add_f32 v{d+k}, v{d+k}, v{d+4+k}")
            I(f"v_add_f32 v{d+8+k}, v{d+8+k}, v{d+12+k}")
        for k in range(4): I(f"v_add_f32 v{d+k}, v{d+k}, v{d+8+k}")
        for k in range(4): I(f"v_bfi_b32 v{d+k}, s{sFF}, v{vTag}, v{d+k}")
        I(f"buffer_store_dwordx4 v[{d}:{d+3}], v{vG}, s[{sW}:{sW+3}], s{sT1 if br else sT0} offen sc1")
    stamp()
    I(f"s_cmp_lg_u32 s{sWave}, 0")
    I("s_cbranch_scc1 L_fin")
    I(f"s_lshr_b32 s{sT0}, s2, 7")
    I(f"s_bfe_u32 s{sT1}, s2, 0x30004")
    I(f"s_bfe_u32 s{sT2s}, s2, 0x20002")
    I(f"s_lshl_b32 s{sT3}, s{sT0}, 2"); I(f"s_add_u32 s{sT3}, s{sT3}, s{sT2s}")
    I(f"s_lshl_b32 s{sT3}, s{sT3}, 18")
    I(f"s_lshl_b32 s{sT4}, s{sT1}, 9"); I(f"s_add_u32 s{sT3}, s{sT3}, s{sT4}")
    I(f"s_lshl_b32 s{sT4}, s{sJ}, 7"); I(f"s_add_u32 s{sT3}, s{sT3}, s{sT4}")
    I(f"s_add_u32 s{sT3}, s{sT3}, {WS_OP}")
    I(f"v_lshrrev_b32 v{vG}, 3, v{vL}")
    I(f"v_lshlrev_b32 v{vG}, 12, v{vG}")
    I(f"v_and_b32 v{vG+1}, 7, v{vL}")
    I(f"v_lshl_add_u32 v{vG}, v{vG+1}, 4, v{vG}")
    vF = vG + 8
    I(f"s_mov_b32 s{sTo}, 0x40000")
    A("L_h2poll:")
    I(f"s_mov_b32 s{sT4}, s{sT3}")
    for i in range(8):
        I(f"buffer_load_dwordx4 v[{vF+4*i}:{vF+4*i+3}], v{vG}, s[{sW}:{sW+3}], s{sT4} offen sc1")
        if i < 7: I(f"s_add_u32 s{sT4}, s{sT4}, 32768")
    I("s_waitcnt vmcnt(0)")
    tagcheck(list(range(vF, vF+32)), "L_h2ok")
    I(f"s_sub_u32 s{sTo}, s{sTo}, 1")
    I(f"s_cmp_lg_u32 s{sTo}, 0")
    I("s_cbranch_scc1 L_h2poll")
    A("L_h2ok:")
    for r in range(vF, vF+32): I(f"v_and_b32 v{r}, s{sMaskHi}, v{r}")
    for step in (16, 8, 4):
        for k in range(step): I(f"v_add_f32 v{vF+k}, v{vF+k}, v{vF+step+k}")
    I("s_nop 1")
    for k in range(4): I(f"v_add_f32_dpp v{vF+k}, v{vF+k}, v{vF+k} row_ror:8 row_mask:0xf bank_mask:0xf")
    for k in range(4): I(f"v_mov_b32 v{vF+4+k}, v{vF+k}")
    I("s_nop 1")
    for k in range(4): I(f"v_permlane16_swap_b32 v{vF+k}, v{vF+4+k}")
    I("s_nop 1")
    for k in range(4): I(f"v_add_f32 v{vF+k}, v{vF+k}, v{vF+4+k}")
    for k in range(4): I(f"v_mov_b32 v{vF+4+k}, v{vF+k}")
    I("s_nop 1")
    for k in range(4): I(f"v_permlane32_swap_b32 v{vF+k}, v{vF+4+k}")
    I("s_nop 1")
    for k in range(4): I(f"v_add_f32 v{vF+k}, v{vF+k}, v{vF+4+k}")
    I(f"v_cvt_pk_bf16_f32 v{vF+8}, v{vF}, v{vF+1}")
    I(f"v_cvt_pk_bf16_f32 v{vF+9}, v{vF+2}, v{vF+3}")
    I(f"s_lshl_b32 s{sT4}, s{sT1}, 11")
    I(f"s_lshl_b32 s{sT5}, s{sT0}, 10"); I(f"s_add_u32 s{sT4}, s{sT4}, s{sT5}")
    I(f"s_lshl_b32 s{sT5}, s{sT2s}, 8"); I(f"s_add_u32 s{sT4}, s{sT4}, s{sT5}")
    I(f"s_lshl_b32 s{sT5}, s{sJ}, 6"); I(f"s_add_u32 s{sT4}, s{sT4}, s{sT5}")
    srd(sT, sOut, 16384)
    I(f"v_lshlrev_b32 v{vG+1}, 3, v{vG+1}")
    I("s_mov_b64 exec, 0xff")
    I(f"buffer_store_dwordx2 v[{vF+8}:{vF+9}], v{vG+1}, s[{sT}:{sT+3}], s{sT4} offen")
    I("s_cmp_lg_u32 s2, 0")
    I("s_cbranch_scc1 L_fin")
    I("s_mov_b64 exec, 1")
    I(f"buffer_store_dword v{vTag}, v{vZ}, s[{sW}:{sW+3}], 0 offen offset:{WS_EPOCH} sc1")
    A("L_fin:")
    if cfg.stamps:
        I("s_mov_b64 exec, 1")
        I(f"s_memrealtime s[100:101]")
        I("s_waitcnt lgkmcnt(0)")
        I(f"s_lshl_b32 s{sT0}, s2, 2"); I(f"s_add_u32 s{sT0}, s{sT0}, s{sWave}"); I(f"s_lshl_b32 s{sT0}, s{sT0}, 7")
        I(f"s_add_u32 s{sT0}, s{sT0}, {WS_STAMP}")
        for q in range(5):
            for k in range(4): I(f"v_mov_b32 v{vG+4*q+k}, s{sStamp+4*q+k}")
            I(f"buffer_store_dwordx4 v[{vG+4*q}:{vG+4*q+3}], v{vZ}, s[{sW}:{sW+3}], s{sT0} offen offset:{16*q}")
        I(f"s_getreg_b32 s{sT1}, hwreg(HW_REG_XCC_ID)")
        I(f"v_mov_b32 v{vG+20}, s100"); I(f"v_mov_b32 v{vG+21}, s101"); I(f"v_mov_b32 v{vG+22}, s{sT1}"); I(f"v_mov_b32 v{vG+23}, s{sLand0}")
        I(f"buffer_store_dwordx4 v[{vG+20}:{vG+23}], v{vZ}, s[{sW}:{sW+3}], s{sT0} offen offset:80")
    I("s_endpgm")
    for s in rare:
        A(f"L_rare{s}:")
        I(f"v_mov_b32 v{vTmp}, v{vS}")
        I("s_nop 1")
        I(f"v_max_f32_dpp v{vTmp}, v{vTmp}, v{vTmp} row_ror:4 row_mask:0xf bank_mask:0xf")
        I("s_nop 1")
        I(f"v_max_f32_dpp v{vTmp}, v{vTmp}, v{vTmp} row_ror:8 row_mask:0xf bank_mask:0xf")
        I(f"v_mov_b32 v{vTmp2}, v{vTmp}")
        I("s_nop 1")
        I(f"v_permlane16_swap_b32 v{vTmp}, v{vTmp2}")
        I("s_nop 1")
        I(f"v_max_f32 v{vTmp}, v{vTmp}, v{vTmp2}")
        I(f"v_mov_b32 v{vTmp2}, v{vTmp}")
        I("s_nop 1")
        I(f"v_permlane32_swap_b32 v{vTmp}, v{vTmp2}")
        I("s_nop 1")
        I(f"v_max3_f32 v{vTmp}, v{vTmp}, v{vTmp2}, v{vM}")
        I(f"v_sub_f32 v{vTmp2}, v{vM}, v{vTmp}")
        I(f"v_mul_f32 v{vTmp2}, s{sC}, v{vTmp2}")
        I(f"v_exp_f32 v{vTmp2}, v{vTmp2}")
        I(f"v_mov_b32 v{vM}, v{vTmp}")
        I(f"v_mul_f32 v{vMC}, s{sC}, v{vTmp}")
        I(f"v_mul_f32 v{vLs}, v{vLs}, v{vTmp2}")
        for k in range(8): I(f"v_mul_f32 v{vAcc+k}, v{vAcc+k}, v{vTmp2}")
        I(f"s_branch L_cont{s}")
    A("L_late:")
    I(f"s_mov_b32 s{sLate}, 0")
    issue_tile(0, "A")
    I("s_branch L_late_ret")
    A("L_switch:")
    I("s_nop 7")
    for k in range(8): I(f"v_mov_b32 v{vAccA+k}, v{vAcc+k}")
    I(f"v_mov_b32 v{vMA}, v{vM}"); I(f"v_mov_b32 v{vLA}, v{vLs}")
    init_state()
    for k in range(4): I(f"v_mov_b32 v{vQ+k}, v{vQB+k}")
    I("s_branch L_switch_ret")
    A("L_wo:")
    I(f"s_lshr_b32 s{sT0}, s2, 2")
    I(f"s_lshl_b32 s{sT0}, s{sT0}, 2"); I(f"s_add_u32 s{sT0}, s{sT0}, s{sWave}")
    I(f"s_lshl_b32 s{sT0}, s{sT0}, 14")
    I(f"s_lshl_b32 s{sT1}, s{sJ}, 8"); I(f"s_add_u32 s{sT0}, s{sT0}, s{sT1}")
    srd(sT, sAwo, 0x400000)
    srd(sT2, sBwo, 0x400000)
    I(f"v_lshrrev_b32 v{vTmp}, 4, v{vL}")
    I(f"v_lshlrev_b32 v{vTmp}, 12, v{vTmp}")
    I(f"v_and_b32 v{vTmp2}, 15, v{vL}")
    I(f"v_lshl_add_u32 v{vTmp}, v{vTmp2}, 4, v{vTmp}")
    for br, q in ((1, sT2), (0, sT)):
        for t in range(4):
            a = br*16 + 4*t
            I(f"buffer_load_dwordx4 a[{a}:{a+3}], v{vTmp}, s[{q}:{q+3}], s{sT0} offen offset:{t*1024} {pol(cfg.fWoB if br else cfg.fWoA)}")
    I(f"s_add_u32 s{sIss}, s{sIss}, 1")
    I(f"s_branch L_noiss{R-1}")
    for (u, slot, pa) in late_blocks:
        A(f"L_ia{u}:")
        tile_loads(slot, *pa)
        I(f"s_branch L_ib{u}")
    A("L_end:")
    I("s_endpgm")
    A('.section .rodata,"a"'); A(".p2align 6"); A(f".amdhsa_kernel {KNAME}")
    I(f".amdhsa_next_free_vgpr {NV + 32*R}")
    I(f".amdhsa_next_free_sgpr {NS}")
    I(f".amdhsa_accum_offset {NV}")
    I(".amdhsa_group_segment_fixed_size 0")
    I(".amdhsa_kernarg_size 104")
    I(".amdhsa_user_sgpr_count 2")
    I(".amdhsa_user_sgpr_kernarg_segment_ptr 1")
    I(".amdhsa_system_sgpr_workgroup_id_x 1")
    I(".amdhsa_float_denorm_mode_32 3")
    A(".end_amdhsa_kernel")
    return "\n".join(L) + "\n"

if __name__ == "__main__":
    out = sys.argv[1]
    cfg = Cfg()
    for kv in sys.argv[2:]:
        k, v = kv.split("=")
        cur = getattr(cfg, k)
        setattr(cfg, k, (v not in ("0", "False")) if isinstance(cur, bool) else type(cur)(v))
    open(out, "w").write(gen(cfg))
```

```python
import sys, math, struct
KNAME = "concat_heads__sliding_block_cached__gqa_block_cached__decode_kernel"

class Cfg:
    stamps = False
    fAk = "nt"; fAv = "nt"; fBk = "nt"; fBv = "nt"
    fWq = "nt"; fWoA = "nt"; fWoB = "nt"
    R = 8
    W = 1
    SB = 24
    TO = 0x40000
    diag = 0
    ahead = 2
    amode = 'tail'
    probe = False
    swbar = False
    masked = True
    wexcl = False
    iA = 16
    iA2 = 24
    iF = 24

WS_EPOCH = 0
WS_CNT  = 0x008000
WS_QP   = 0x010000
WS_PO   = 0x110000
WS_PML  = 0x210000
WS_OP   = 0x220000
WS_STAMP = 0x500000
WS_SIZE = 0x600000

ROW = 196*4
LDS_QR  = 0
LDS_PRA = 0
LDS_MLA = 12544
LDS_PRB = 12800
LDS_MLB = 25344
LDS_ORB = 25600
LDS_ORB2 = 0
LDS_QX  = 25600
LDS_ORA = 25600
LDS_CNT = 25600 + 25088
LDS_SIZE = LDS_CNT + 16

C_SCALE = math.log2(math.e)/math.sqrt(128.0)
def f32bits(x): return struct.unpack("<I", struct.pack("<f", x))[0]
def pol(x): return "" if x == "def" else x.replace("+", " ")

def gen(cfg):
    L = []
    def A(s): L.append(s)
    def I(s): L.append("  " + s)
    R, W, SB = cfg.R, cfg.W, cfg.SB
    assert R in (4, 8) and W == 1
    NST = 8 + SB
    assert cfg.iA % R == 0 and cfg.iF % R == 0 and 8 < cfg.iA < cfg.iF and cfg.iA2 % R == 0 and cfg.iA < cfg.iA2 and cfg.iA2 + cfg.ahead < NST - 1

    sAx, sAk, sAv, sAwq, sAwo, sBx, sBk, sBv = 4, 6, 8, 10, 12, 14, 16, 18
    sBwq, sBwo, sOut, sDbg = 20, 22, 24, 26
    sWs = 28
    sPc = 30
    sK, sV, sW, sT, sT2 = 32, 36, 40, 44, 48
    sWave = 52; sOff = 53; sOffB = 54; sIss = 55; sLand = 56; sI = 57; sLate = 58
    sC = 59; sFF = 60; sMaskHi = 61
    s0_, s1_, s2_, s3_, s4_, s5_ = 62, 63, 64, 65, 66, 67
    sTo = 68; sStep = 69; sB, sG, sJ = 70, 71, 72
    sLand0 = 73; sPair = 74; sEnd = 75
    sStamp = 76
    sCnt = 96; sO = [97, 98, 99]; sAh = 26
    NS = 102

    vL = 1; vOffK = 2; vOffV = 3; vLdsW = 4; vTag = 5
    vM, vMC, vLs, vRd, vClaim = 6, 7, 8, 9, 10
    vS, vP, vPlo, vPhi, vTmp, vTmp2 = 11, 12, 13, 14, 15, 16
    vMask0, vMask1 = 17, 18
    vZ = 19
    vQ = 20; vQB = 24
    vAcc = 28
    vBp = 44
    vD = 52
    vG = 68
    NV = 128

    def srd(q, ptr, size):
        I(f"s_mov_b32 s{q}, s{ptr}")
        I(f"s_and_b32 s{q+1}, s{ptr+1}, 0xffff")
        I(f"s_mov_b32 s{q+2}, {hex(size)}")
        I(f"s_mov_b32 s{q+3}, 0x20000")
    stamp_n = [0]
    def stamp(level=0):
        if not cfg.stamps: return
        if cfg.diag == 0 and level not in (0, 2, 4): return
        if cfg.diag == 1 and level not in (1, 2): return
        if cfg.diag == 3 and level not in (3, 4): return
        if cfg.diag == 5 and level != 5: return
        n = stamp_n[0]; stamp_n[0] += 1
        assert n < 10
        I(f"s_memrealtime s[{sStamp+2*n}:{sStamp+2*n+1}]")
    def tagcheck(regs, okl):
        I(f"v_xor_b32 v{vTmp}, v{regs[0]}, v{vTag}")
        for r in regs[1:]:
            I(f"v_bitop3_b32 v{vTmp}, v{vTmp}, v{r}, v{vTag} bitop3:0xf6")
        I(f"v_and_b32 v{vTmp}, 0xff, v{vTmp}")
        I(f"v_cmp_ne_u32 vcc, 0, v{vTmp}")
        I(f"s_cbranch_vccz {okl}")
    def tagbad(regs):
        I(f"v_xor_b32 v{vTmp}, v{regs[0]}, v{vTag}")
        for r in regs[1:]:
            I(f"v_bitop3_b32 v{vTmp}, v{vTmp}, v{r}, v{vTag} bitop3:0xf6")
        I(f"v_and_b32 v{vTmp}, 0xff, v{vTmp}")
        I(f"v_cmp_ne_u32 vcc, 0, v{vTmp}")
    def poll_loop(name, loads, regs, masked):
        I(f"s_mov_b32 s{sTo}, {hex(cfg.TO)}")
        A(f"L_{name}_chk:")
        tagbad(regs)
        I(f"s_cbranch_vccz L_{name}_ok")
        I(f"s_sub_u32 s{sTo}, s{sTo}, 1")
        I(f"s_cmp_eq_u32 s{sTo}, 0")
        I(f"s_cbranch_scc1 L_{name}_ok")
        if masked: I("s_mov_b64 exec, vcc")
        loads()
        I("s_waitcnt vmcnt(0)")
        I(f"s_branch L_{name}_chk")
        A(f"L_{name}_ok:")
        if masked: I("s_mov_b64 exec, -1")
    def arrive(idx, notlast):
        I(f"v_mov_b32 v{vTmp}, 1")
        I("s_mov_b64 exec, 1")
        I(f"ds_add_rtn_u32 v{vTmp}, v{vZ}, v{vTmp} offset:{LDS_CNT + 4*idx}")
        I("s_mov_b64 exec, -1")
        I("s_waitcnt lgkmcnt(0)")
        I(f"v_readfirstlane_b32 s{s0_}, v{vTmp}")
        I("s_nop 1")
        I(f"s_cmp_lg_u32 s{s0_}, 3")
        I(f"s_cbranch_scc1 {notlast}")
    def allsum(v, op="add"):
        o = f"v_{op}_f32"
        I("s_nop 1")
        I(f"{o}_dpp v{v}, v{v}, v{v} row_ror:4 row_mask:0xf bank_mask:0xf")
        I("s_nop 1")
        I(f"{o}_dpp v{v}, v{v}, v{v} row_ror:8 row_mask:0xf bank_mask:0xf")
        I(f"v_mov_b32 v{vTmp2}, v{v}")
        I("s_nop 1")
        I(f"v_permlane16_swap_b32 v{v}, v{vTmp2}")
        I("s_nop 1")
        I(f"{o} v{v}, v{v}, v{vTmp2}")
        I(f"v_mov_b32 v{vTmp2}, v{v}")
        I("s_nop 1")
        I(f"v_permlane32_swap_b32 v{v}, v{vTmp2}")
        I("s_nop 1")
        I(f"{o} v{v}, v{v}, v{vTmp2}")

    A(f"; @launch grid=(256,1,1) block=(256,1,1) lds={LDS_SIZE}")
    A('.amdgcn_target "amdgcn-amd-amdhsa--gfx950"')
    A(".text"); A(f".globl {KNAME}"); A(".p2align 8"); A(f".type {KNAME},@function"); A(f"{KNAME}:")
    I("s_cmp_ge_u32 s2, 256")
    I("s_cbranch_scc1 L_end")
    stamp(2)
    if cfg.diag in (3, 5): I(f"s_memrealtime s[{sStamp}:{sStamp+1}]"); stamp_n[0] = 1
    I(f"s_load_dwordx16 s[4:19], s[0:1], 0")
    I(f"s_load_dwordx8 s[20:27], s[0:1], 64")
    I(f"s_load_dwordx2 s[28:29], s[0:1], 96")
    I(f"s_getpc_b64 s[{sPc}:{sPc+1}]")
    A("L_pc:")
    I(f"v_lshlrev_b32 v{vTmp}, 7, v0")
    I(f"v_min_u32 v{vTmp}, L_end-L_pc, v{vTmp}")
    I(f"global_load_dword v{vTmp2}, v{vTmp}, s[{sPc}:{sPc+1}]")
    I(f"v_and_b32 v{vL}, 63, v0")
    I(f"v_lshrrev_b32 v{vS}, 6, v0")
    I(f"v_mov_b32 v{vZ}, 0")
    I(f"v_readfirstlane_b32 s{sWave}, v{vS}")
    I(f"v_bfe_u32 v{vP}, v{vL}, 2, 2")
    I(f"v_lshrrev_b32 v{vPlo}, 4, v{vL}")
    I(f"v_and_b32 v{vPhi}, 3, v{vL}")
    I(f"v_and_b32 v{vM}, 15, v{vL}")
    I(f"v_lshlrev_b32 v{vOffV}, 4, v{vL}")
    I(f"v_lshlrev_b32 v{vOffK}, 8, v{vP}")
    I(f"v_lshl_add_u32 v{vOffK}, v{vPlo}, 6, v{vOffK}")
    I(f"v_lshl_add_u32 v{vOffK}, v{vPhi}, 4, v{vOffK}")
    vWoff, vXoff = vG, vG+1
    I(f"v_lshlrev_b32 v{vWoff}, 16, v{vPlo}")
    I(f"v_lshl_add_u32 v{vWoff}, v{vM}, 4, v{vWoff}")
    I(f"v_lshlrev_b32 v{vXoff}, 10, v{vPhi}")
    I(f"v_lshl_add_u32 v{vXoff}, v{vPlo}, 4, v{vXoff}")
    I(f"s_lshr_b32 s{sB}, s2, 5")
    I(f"s_bfe_u32 s{sG}, s2, 0x30002")
    I(f"s_and_b32 s{sJ}, s2, 3")
    I(f"s_lshr_b32 s{sPair}, s2, 2")
    I(f"s_lshl_b32 s{sCnt}, s{sPair}, 8")
    I(f"s_add_u32 s{sCnt}, s{sCnt}, {WS_CNT}")
    I(f"s_lshl_b32 s{sPair}, s{sPair}, 21")
    I(f"s_lshl_b32 s{s1_}, s{sJ}, 2")
    I(f"s_add_u32 s{s1_}, s{s1_}, s{sWave}")
    I(f"s_lshl_b32 s{s0_}, s{s1_}, 12")
    I(f"s_add_u32 s{sOffB}, s{sPair}, s{s0_}")
    I(f"s_lshl_b32 s{s0_}, s{sWave}, 12")
    I(f"s_add_u32 s{sOff}, s{sPair}, s{s0_}")
    I(f"s_lshl_b32 s{s0_}, s{sJ}, 17")
    I(f"s_add_u32 s{sOff}, s{sOff}, s{s0_}")
    I(f"s_add_u32 s{sOff}, s{sOff}, {6144*256}")
    I(f"s_lshl_b32 s{s2_}, s{s1_}, 18")
    I(f"s_bfe_u32 s{s3_}, s2, 0x50002")
    I(f"s_lshl_b32 s{s3_}, s{s3_}, 8")
    I(f"s_add_u32 s{s2_}, s{s2_}, s{s3_}")
    I(f"s_lshl_b32 s{s1_}, s{s1_}, 6")
    I("s_waitcnt lgkmcnt(0)")
    stamp(2)
    srd(sW, sWs, WS_SIZE)
    I(f"buffer_load_dword v{vTag}, v{vZ}, s[{sW}:{sW+3}], 0 offen offset:{WS_EPOCH} sc1")
    I(f"s_and_b32 s{s0_}, s2, 0x8f")
    I(f"s_or_b32 s{s0_}, s{s0_}, s{sWave}")
    I(f"s_cmp_lg_u32 s{s0_}, 0")
    I("s_cbranch_scc1 L_nocnt")
    I(f"s_lshr_b32 s{s0_}, s2, 4")
    I(f"s_lshl_b32 s{s0_}, s{s0_}, 8")
    I(f"s_add_u32 s{s0_}, s{s0_}, {WS_CNT}")
    I(f"v_lshlrev_b32 v{vTmp}, 11, v{vL}")
    I("s_mov_b64 exec, 0xff")
    I(f"buffer_store_dword v{vZ}, v{vTmp}, s[{sW}:{sW+3}], s{s0_} offen sc1")
    I("s_mov_b64 exec, -1")
    A("L_nocnt:")
    I(f"s_cmp_lt_u32 s2, 128")
    I(f"s_cselect_b32 s{sT}, s{sAx}, s{sBx}")
    I(f"s_cselect_b32 s{sT+1}, s{sAx+1}, s{sBx+1}")
    I(f"s_cselect_b32 s{sT2}, s{sAwq}, s{sBwq}")
    I(f"s_cselect_b32 s{sT2+1}, s{sAwq+1}, s{sBwq+1}")
    I(f"s_and_b32 s{sT+1}, s{sT+1}, 0xffff")
    I(f"s_and_b32 s{sT2+1}, s{sT2+1}, 0xffff")
    I(f"s_mov_b32 s{sT+2}, 8192"); I(f"s_mov_b32 s{sT+3}, 0x20000")
    I(f"s_mov_b32 s{sT2+2}, 0x400000"); I(f"s_mov_b32 s{sT2+3}, 0x20000")
    vX = vG + 2
    I(f"buffer_load_dwordx4 v[{vX}:{vX+3}], v{vXoff}, s[{sT}:{sT+3}], s{s1_} offen")
    I(f"s_add_u32 s{s1_}, s{s1_}, 4096")
    I(f"buffer_load_dwordx4 v[{vX+4}:{vX+7}], v{vXoff}, s[{sT}:{sT+3}], s{s1_} offen")
    WSLOT = R - 1
    for t in range(8):
        a = WSLOT*32 + 4*t
        I(f"buffer_load_dwordx4 a[{a}:{a+3}], v{vWoff}, s[{sT2}:{sT2+3}], s{s2_} offen {pol(cfg.fWq)}")
        if t < 7: I(f"s_add_u32 s{s2_}, s{s2_}, 8192")
    srd(sK, sAk, 0x8000000)
    srd(sV, sAv, 0x8000000)
    I(f"s_mov_b32 s{sIss}, 0")
    I(f"s_mov_b32 s{sStep}, 16384")
    I(f"s_and_b32 s{sBk+1}, s{sBk+1}, 0xffff")
    I(f"s_and_b32 s{sBv+1}, s{sBv+1}, 0xffff")

    late_blocks = []; uniq = [0]
    def tile_loads(slot, fk, fv):
        for t in range(4):
            a = slot*32 + 4*t
            I(f"buffer_load_dwordx4 a[{a}:{a+3}], v{vOffK}, s[{sK}:{sK+3}], s{sOff} offen offset:{t*1024} {fk}")
        for t in range(4):
            a = slot*32 + 16 + 4*t
            I(f"buffer_load_dwordx4 a[{a}:{a+3}], v{vOffV}, s[{sV}:{sV+3}], s{sOff} offen offset:{t*1024} {fv}")
    def issue_tile(slot, phase=None):
        pa = (pol(cfg.fAk), pol(cfg.fAv)); pb = (pol(cfg.fBk), pol(cfg.fBv))
        if phase == "A" or pa == pb:
            tile_loads(slot, *pa)
        else:
            u = uniq[0]; uniq[0] += 1
            I(f"s_cmp_lt_u32 s{sIss}, 8")
            I(f"s_cbranch_scc1 L_ia{u}")
            tile_loads(slot, *pb)
            A(f"L_ib{u}:")
            late_blocks.append((u, slot, pa))
        I(f"s_add_u32 s{sOff}, s{sOff}, s{sStep}")
        I(f"s_add_u32 s{sIss}, s{sIss}, 1")
        I(f"s_cmp_eq_u32 s{sIss}, 8")
        I(f"s_cselect_b32 s{sOff}, s{sOffB}, s{sOff}")
        I(f"s_cselect_b32 s{sStep}, 0x10000, s{sStep}")
        I(f"s_cselect_b32 s{sK}, s{sBk}, s{sK}")
        I(f"s_cselect_b32 s{sK+1}, s{sBk+1}, s{sK+1}")
        I(f"s_cselect_b32 s{sV}, s{sBv}, s{sV}")
        I(f"s_cselect_b32 s{sV+1}, s{sBv+1}, s{sV+1}")

    if not cfg.wexcl: issue_tile(0, "A")
    I(f"s_mov_b32 s{sC}, {hex(f32bits(C_SCALE))}")
    I(f"s_mov_b32 s{sFF}, 0xff")
    I(f"s_mov_b32 s{sMaskHi}, 0xffffff00")
    I(f"v_mul_u32_u24 v{vLdsW}, 196, v{vPhi}")
    I(f"v_mad_u32_u24 v{vLdsW}, v{vPlo}, 48, v{vLdsW}")
    I(f"v_add_lshl_u32 v{vLdsW}, v{vLdsW}, v{vP}, 2")
    I(f"v_lshrrev_b32 v{vRd}, 5, v0")
    I(f"v_mul_u32_u24 v{vRd}, 196, v{vRd}")
    I(f"v_bfe_u32 v{vTmp}, v0, 3, 2")
    I(f"v_mad_u32_u24 v{vRd}, v{vTmp}, 48, v{vRd}")
    I(f"v_and_b32 v{vTmp}, 7, v0")
    I(f"v_lshl_add_u32 v{vRd}, v{vTmp}, 2, v{vRd}")
    I(f"v_lshlrev_b32 v{vRd}, 2, v{vRd}")
    vSel = vG + 10
    def pick(dst, r, lo, hi, other):
        I(f"v_mov_b32 v{dst}, {hex(other)}")
        I(f"v_mov_b32 v{vTmp}, {hex(lo)}")
        I(f"v_cmp_eq_u32 vcc, {2*r}, v{vP}")
        I(f"s_nop 1")
        I(f"v_cndmask_b32 v{dst}, v{dst}, v{vTmp}, vcc")
        I(f"v_mov_b32 v{vTmp}, {hex(hi)}")
        I(f"v_cmp_eq_u32 vcc, {2*r+1}, v{vP}")
        I(f"s_nop 1")
        I(f"v_cndmask_b32 v{dst}, v{dst}, v{vTmp}, vcc")
    for r in range(2):
        pick(vSel + 2*r + 0, r, 0x0c0c0100, 0x01000c0c, 0x0c0c0c0c)
        pick(vSel + 2*r + 1, r, 0x0c0c0302, 0x03020c0c, 0x0c0c0c0c)
    pick(vMask0, 0, 0xffff, 0xffff0000, 0)
    pick(vMask1, 1, 0xffff, 0xffff0000, 0)
    for k in range(8): I(f"v_mov_b32 v{vBp+k}, 0")
    I(f"v_lshlrev_b32 v{vTmp}, 2, v{vL}")
    I("s_mov_b64 exec, 3")
    I(f"ds_write_b32 v{vTmp}, v{vZ} offset:{LDS_CNT}")
    I("s_mov_b64 exec, -1")
    WB = 0 if cfg.wexcl else 8
    I(f"s_waitcnt vmcnt({7+WB})")
    I(f"v_add_u32 v{vTag}, 1, v{vTag}")
    vQacc = vG + 16
    vXB = vG + 32
    for t in range(8):
        bs = vXB + (t & 1)*4
        if t > 0:
            I(f"s_waitcnt vmcnt({7+WB-t})")
            if t == 7:
                stamp(2)
                if cfg.wexcl: issue_tile(0, "A")
                issue_tile(1, "A")
                stamp(1)
        for m in range(2):
            for r in range(2):
                I(f"v_perm_b32 v{bs+2*m+r}, v{vX+4*m+(t>>1)}, v{vX+4*m+(t>>1)}, v{vSel+2*r+(t&1)}")
        for m in range(2):
            for h in range(2):
                d = vQacc + (m*2+h)*4
                a = WSLOT*32 + 4*t + 2*h
                c = "0" if t == 0 else f"v[{d}:{d+3}]"
                I(f"v_mfma_f32_16x16x16_bf16 v[{d}:{d+3}], a[{a}:{a+1}], v[{bs+2*m}:{bs+2*m+1}], {c}")
    I(f"s_mul_i32 s{s0_}, s{sWave}, {8*ROW}")
    I(f"v_add_u32 v{vTmp}, s{s0_}, v{vLdsW}")
    I(f"s_lshr_b32 s{s0_}, s2, 4")
    I(f"s_lshl_b32 s{s0_}, s{s0_}, 2")
    I(f"s_add_u32 s{s0_}, s{s0_}, s{sJ}")
    I(f"s_lshl_b32 s{s0_}, s{s0_}, 14")
    I(f"s_bfe_u32 s{s1_}, s2, 0x20002")
    I(f"s_lshl_b32 s{s1_}, s{s1_}, 9")
    I(f"s_add_u32 s{s0_}, s{s0_}, s{s1_}")
    I(f"s_add_u32 s{s0_}, s{s0_}, {WS_QP}")
    for m in range(2):
        for h in range(2):
            for r in range(4):
                I(f"ds_write_b32 v{vTmp}, v{vQacc+(m*2+h)*4+r} offset:{LDS_QR + m*4*ROW + (8*r+4*h)*4}")
    I(f"v_lshrrev_b32 v{vTmp}, 5, v0")
    I(f"v_lshlrev_b32 v{vTmp}, 11, v{vTmp}")
    I(f"v_and_b32 v{vTmp2}, 31, v0")
    I(f"v_lshl_add_u32 v{vTmp}, v{vTmp2}, 4, v{vTmp}")
    I("s_waitcnt lgkmcnt(0)")
    stamp(1)
    I("s_barrier")
    stamp(1)
    vR = vG + 44
    for w in range(4):
        I(f"ds_read_b128 v[{vR+4*w}:{vR+4*w+3}], v{vRd} offset:{LDS_QR + w*8*ROW}")
    vQoff = vG + 41
    I(f"v_lshlrev_b32 v{vQoff}, 9, v{vPhi}")
    I(f"v_lshl_add_u32 v{vQoff}, v{vPlo}, 7, v{vQoff}")
    I(f"v_lshl_add_u32 v{vQoff}, v{vP}, 5, v{vQoff}")
    I(f"s_lshl_b32 s{s2_}, s{sG}, 2")
    I(f"s_add_u32 s{s2_}, s{s2_}, s{sWave}")
    I(f"s_lshl_b32 s{s2_}, s{s2_}, 3")
    I(f"s_add_u32 s{s2_}, s{s2_}, s{sB}")
    I(f"s_lshl_b32 s{s2_}, s{s2_}, 11")
    I(f"s_add_u32 s{s2_}, s{s2_}, {WS_QP}")
    I(f"s_add_u32 s{s3_}, s{s2_}, 0x80000")
    I("s_waitcnt lgkmcnt(0)")
    for k in range(4):
        I(f"v_add_f32 v{vR+k}, v{vR+k}, v{vR+4+k}")
        I(f"v_add_f32 v{vR+8+k}, v{vR+8+k}, v{vR+12+k}")
    for k in range(4): I(f"v_add_f32 v{vR+k}, v{vR+k}, v{vR+8+k}")
    for k in range(4): I(f"v_bfi_b32 v{vR+k}, s{sFF}, v{vTag}, v{vR+k}")
    I(f"buffer_store_dwordx4 v[{vR}:{vR+3}], v{vTmp}, s[{sW}:{sW+3}], s{s0_} offen sc1")
    stamp(2)
    vQL = vG + 16
    def qpoll_loads():
        I(f"buffer_load_dwordx4 v[{vQL}:{vQL+3}], v{vQoff}, s[{sW}:{sW+3}], s{s2_} offen sc1")
        I(f"buffer_load_dwordx4 v[{vQL+4}:{vQL+7}], v{vQoff}, s[{sW}:{sW+3}], s{s2_} offen offset:16 sc1")
        I(f"buffer_load_dwordx4 v[{vQL+8}:{vQL+11}], v{vQoff}, s[{sW}:{sW+3}], s{s3_} offen sc1")
        I(f"buffer_load_dwordx4 v[{vQL+12}:{vQL+15}], v{vQoff}, s[{sW}:{sW+3}], s{s3_} offen offset:16 sc1")
    qregs = list(range(vQL, vQL+16))
    I(f"s_mov_b32 s{sLate}, 0")
    for k in range(2, R):
        qpoll_loads(); issue_tile(k, "A")
        I(f"s_mov_b32 s{sLand}, {k}")
        I("s_waitcnt vmcnt(8)")
        if k == 2: stamp(1)
        tagcheck(qregs, f"L_qok{k}")
    I(f"s_mov_b32 s{sLand}, {R}")
    I(f"s_mov_b32 s{sLate}, 1")
    qpoll_loads()
    I("s_waitcnt vmcnt(0)")
    poll_loop("qp", qpoll_loads, qregs, cfg.masked)
    I("s_branch L_qok")
    for k in range(R-1, 1, -1):
        A(f"L_qok{k}:")
        if R == 4:
            if k == 2: issue_tile(3, "A")
            I(f"s_mov_b32 s{sLate}, 1")
        else:
            extra = [k+1] if k < 4 else [k+1, k+2]
            for n_ in extra:
                if n_ < R: issue_tile(n_, "A")
            if k >= 6: I(f"s_mov_b32 s{sLate}, 1")
        if k > 2: I("s_branch L_qok")
    A("L_qok:")
    stamp(2)
    if cfg.stamps: I(f"s_mov_b32 s{sLand0}, s{sLand}")
    for r in qregs: I(f"v_and_b32 v{r}, s{sMaskHi}, v{r}")
    I(f"s_lshl_b32 s{s0_}, s{sWave}, 12")
    I(f"v_add_u32 v{vTmp}, s{s0_}, v{vOffV}")
    for k in range(4):
        I(f"ds_write_b128 v{vTmp}, v[{vQL+4*k}:{vQL+4*k+3}] offset:{LDS_QX + k*1024}")
    I("s_waitcnt lgkmcnt(0)")
    I("s_barrier")
    vQR = vG + 0
    for br in range(2):
        for w in range(4):
            for k in range(2):
                d = vQR + (w*2+k)*4
                I(f"ds_read_b128 v[{d}:{d+3}], v{vOffV} offset:{LDS_QX + w*4096 + (br*2+k)*1024}")
        I("s_waitcnt lgkmcnt(0)")
        for e in range(8):
            I(f"v_add_f32 v{vQR+e}, v{vQR+e}, v{vQR+8+e}")
            I(f"v_add_f32 v{vQR+16+e}, v{vQR+16+e}, v{vQR+24+e}")
        for e in range(8): I(f"v_add_f32 v{vQR+e}, v{vQR+e}, v{vQR+16+e}")
        dq = vQ if br == 0 else vQB
        for r in range(4): I(f"v_cvt_pk_bf16_f32 v{dq+r}, v{vQR+2*r}, v{vQR+2*r+1}")
    def init_state():
        for k in range(8): I(f"v_mov_b32 v{vAcc+k}, 0")
        I(f"v_mov_b32 v{vM}, 0xff800000")
        I(f"v_mov_b32 v{vMC}, 0xff800000")
        I(f"v_mov_b32 v{vLs}, 0")
    init_state()
    I(f"s_mov_b32 s{sI}, 0")
    I(f"s_mov_b32 s{sEnd}, -1")
    stamp(2)
    late_steps = {1: 0} if R == 4 else {1: 0, 4: 1}
    A(".p2align 3")
    A("L_round:")
    for s in range(R):
        I(f"s_cmp_lt_u32 s{sI}, s{sLand}")
        I(f"s_cbranch_scc1 L_nowait{s}")
        I(f"s_sub_u32 s{s0_}, s{sIss}, s{sI}")
        I(f"s_cmp_eq_u32 s{s0_}, {W}")
        I(f"s_cbranch_scc0 L_wait{s}")
        I(f"s_waitcnt vmcnt({8*(W-1)})")
        A(f"L_nowait{s}:")
        if cfg.stamps and cfg.diag == 5 and s < 4:
            I(f"s_cmp_eq_u32 s{sI}, {cfg.iA + s}")
            I(f"s_cbranch_scc0 L_nost{s}")
            I(f"s_memrealtime s[{sStamp+2*(6+s)}:{sStamp+2*(6+s)+1}]")
            A(f"L_nost{s}:")
        I(f"s_add_u32 s{s0_}, s{sI}, {W}")
        I(f"s_add_u32 s{sI}, s{sI}, 1")
        if s in late_steps:
            I(f"s_cmp_eq_u32 s{sLate}, 1")
            I(f"s_cbranch_scc1 L_late{s}")
        I(f"s_cmp_eq_u32 s{sIss}, s{s0_}")
        I(f"s_cbranch_scc0 L_noiss{s}")
        I(f"s_cmp_ge_u32 s{sIss}, {NST-1}")
        I(f"s_cbranch_scc1 L_dyn{s}")
        A(f"L_loads{s}:")
        issue_tile((s+W) % R)
        A(f"L_noiss{s}:")
        for t in range(4):
            a = s*32 + 4*t
            I(f"v_mfma_f32_16x16x32_bf16 v[{vD+4*t}:{vD+4*t+3}], a[{a}:{a+3}], v[{vQ}:{vQ+3}], 0")
        I("s_nop 4")
        for t in range(4):
            hbs = [(t+1) & 3, (t+2) & 3, (t+3) & 3]
            n = [(4*(t-hb)) % 16 for hb in hbs]
            I(f"v_add_f32_dpp v{vTmp}, v{vD+4*t+hbs[0]}, v{vD+4*t+t} row_ror:{n[0]} row_mask:0xf bank_mask:0xf")
            I(f"v_add_f32_dpp v{vTmp}, v{vD+4*t+hbs[1]}, v{vTmp} row_ror:{n[1]} row_mask:0xf bank_mask:0xf")
            I(f"v_add_f32_dpp v{vS}, v{vD+4*t+hbs[2]}, v{vTmp} row_ror:{n[2]} row_mask:0xf bank_mask:{hex(1<<t)}")
        I(f"v_cmp_gt_f32 vcc, v{vS}, v{vM}")
        I(f"s_cbranch_vccnz L_rare{s}")
        A(f"L_cont{s}:")
        I(f"v_fma_f32 v{vP}, v{vS}, s{sC}, -v{vMC}")
        I(f"v_exp_f32 v{vP}, v{vP}")
        I("s_nop 0")
        I(f"v_cvt_pk_bf16_f32 v{vPlo}, v{vP}, 0")
        I(f"v_cvt_pk_bf16_f32 v{vPhi}, 0, v{vP}")
        I(f"v_add_f32 v{vLs}, v{vLs}, v{vP}")
        I("s_nop 0")
        for t in range(4):
            for beta in range(4):
                src = vPlo if beta % 2 == 0 else vPhi
                n = (4*(beta - t)) % 16
                ctl = f"row_ror:{n}" if n else "quad_perm:[0,1,2,3]"
                I(f"v_mov_b32_dpp v{vBp+2*t+(beta>>1)}, v{src} {ctl} row_mask:0xf bank_mask:{hex(1<<beta)}")
        for t in range(4):
            for h in range(2):
                a = s*32 + 16 + 4*t + 2*h
                I(f"v_mfma_f32_16x16x16_bf16 v[{vAcc+4*h}:{vAcc+4*h+3}], a[{a}:{a+1}], v[{vBp+2*t}:{vBp+2*t+1}], v[{vAcc+4*h}:{vAcc+4*h+3}]")
        I(f"s_cmp_eq_u32 s{sI}, s{sEnd}")
        I("s_cbranch_scc1 L_exit")
    I(f"s_mov_b32 s{sLate}, 0")
    if cfg.amode == "mid":
        I(f"s_cmp_eq_u32 s{sI}, {cfg.iA}")
        I("s_cbranch_scc1 L_jobA")
        I(f"s_cmp_eq_u32 s{sI}, {cfg.iA2}")
        I("s_cbranch_scc1 L_jobA2")
    I(f"s_cmp_eq_u32 s{sI}, 8")
    I("s_cbranch_scc0 L_round")

    def write_partial(pr, ml, lvl=None, barrier=True):
        I("s_nop 7")
        allsum(vLs)
        I(f"s_mul_i32 s{s0_}, s{sWave}, {4*ROW}")
        I(f"v_add_u32 v{vTmp}, s{s0_}, v{vLdsW}")
        for h in range(2):
            for r in range(4):
                I(f"ds_write_b32 v{vTmp}, v{vAcc+4*h+r} offset:{pr + (8*r+4*h)*4}")
        I(f"s_lshl_b32 s{s0_}, s{sWave}, 5")
        I(f"v_lshl_add_u32 v{vTmp}, v{vL}, 3, s{s0_}")
        I(f"v_mov_b32 v{vG}, v{vM}"); I(f"v_mov_b32 v{vG+1}, v{vLs}")
        I("s_mov_b64 exec, 0xf")
        I(f"ds_write_b64 v{vTmp}, v[{vG}:{vG+1}] offset:{ml}")
        I("s_mov_b64 exec, -1")
        I("s_waitcnt lgkmcnt(0)")
        if lvl is not None: stamp(lvl)
        if barrier: I("s_barrier")
        if lvl is not None: stamp(lvl)
    def combine_pass(br, pr, ml, vRdX, hd_src, hoff):
        vA = vG + 8; vMl = vG + 24; vHd = vG + 2; vSo = vG + 3; vSm = vG + 4; vMx = vG + 32; vLt = vG + 33
        I(f"v_lshrrev_b32 v{vHd}, 5, v{hd_src}")
        if hoff: I(f"v_add_u32 v{vHd}, {hoff}, v{vHd}")
        I(f"v_lshlrev_b32 v{vSm}, 3, v{vHd}")
        for w in range(4): I(f"ds_read_b64 v[{vMl+2*w}:{vMl+2*w+1}], v{vSm} offset:{ml + w*32}")
        for w in range(4): I(f"ds_read_b128 v[{vA+4*w}:{vA+4*w+3}], v{vRdX} offset:{pr + hoff*ROW + w*4*ROW}")
        I(f"s_lshl_b32 s{s0_}, s{sG}, 3"); I(f"s_add_u32 s{s0_}, s{s0_}, s{sB}")
        I(f"s_lshl_b32 s{s0_}, s{s0_}, 2"); I(f"s_add_u32 s{s0_}, s{s0_}, s{sJ}")
        I(f"s_lshl_b32 s{s1_}, s{s0_}, 5"); I(f"s_add_u32 s{s1_}, s{s1_}, {WS_PML + br*8192}")
        I(f"s_lshl_b32 s{s0_}, s{s0_}, 11"); I(f"s_add_u32 s{s0_}, s{s0_}, {WS_PO + br*0x80000}")
        I(f"v_lshlrev_b32 v{vSo}, 9, v{vHd}")
        I(f"v_and_b32 v{vTmp}, 31, v{hd_src}")
        I(f"v_lshl_add_u32 v{vSo}, v{vTmp}, 4, v{vSo}")
        I("s_waitcnt lgkmcnt(4)")
        I(f"v_max_f32 v{vMx}, v{vMl}, v{vMl+2}")
        I(f"v_max3_f32 v{vMx}, v{vMx}, v{vMl+4}, v{vMl+6}")
        for w in range(4): I(f"v_sub_f32 v{vMl+2*w}, v{vMl+2*w}, v{vMx}")
        for w in range(4): I(f"v_mul_f32 v{vMl+2*w}, s{sC}, v{vMl+2*w}")
        for w in range(4): I(f"v_exp_f32 v{vMl+2*w}, v{vMl+2*w}")
        I(f"v_mul_f32 v{vMx}, s{sC}, v{vMx}")
        I(f"v_mul_f32 v{vLt}, v{vMl}, v{vMl+1}")
        for w in range(1, 4): I(f"v_fmac_f32 v{vLt}, v{vMl+2*w}, v{vMl+2*w+1}")
        I("s_waitcnt lgkmcnt(0)")
        for k in range(4): I(f"v_mul_f32 v{vA+k}, v{vMl}, v{vA+k}")
        for w in range(1, 4):
            for k in range(4): I(f"v_fmac_f32 v{vA+k}, v{vMl+2*w}, v{vA+4*w+k}")
        for k in range(4): I(f"v_bfi_b32 v{vA+k}, s{sFF}, v{vTag}, v{vA+k}")
        I(f"buffer_store_dwordx4 v[{vA}:{vA+3}], v{vSo}, s[{sW}:{sW+3}], s{s0_} offen sc1")
        I(f"v_bfi_b32 v{vMx}, s{sFF}, v{vTag}, v{vMx}")
        I(f"v_bfi_b32 v{vLt}, s{sFF}, v{vTag}, v{vLt}")
        I(f"v_cmp_eq_u32 vcc, 0, v{vTmp}")
        I(f"s_and_saveexec_b64 s[{s2_}:{s3_}], vcc")
        I(f"buffer_store_dwordx2 v[{vMx}:{vMx+1}], v{vSm}, s[{sW}:{sW+3}], s{s1_} offen sc1")
        I("s_mov_b64 exec, -1")
    def combine_publish(br, pr, ml, skip):
        I(f"s_cmp_ge_u32 s{sWave}, 2")
        I(f"s_cbranch_scc1 {skip}")
        combine_pass(br, pr, ml, vRd, 0, 0)
        A(f"{skip}:")
    vRdL = vG + 40
    def lane_rd():
        I(f"v_lshrrev_b32 v{vRdL}, 5, v{vL}")
        I(f"v_mul_u32_u24 v{vRdL}, 196, v{vRdL}")
        I(f"v_bfe_u32 v{vTmp}, v{vL}, 3, 2")
        I(f"v_mad_u32_u24 v{vRdL}, v{vTmp}, 48, v{vRdL}")
        I(f"v_and_b32 v{vTmp}, 7, v{vL}")
        I(f"v_lshl_add_u32 v{vRdL}, v{vTmp}, 2, v{vRdL}")
        I(f"v_lshlrev_b32 v{vRdL}, 2, v{vRdL}")

    au = [0]
    def ahead_tiles():
        for k in range(1, cfg.ahead+1):
            u = au[0]; au[0] += 1
            I(f"s_add_u32 s{s4_}, s{sI}, {k}")
            I(f"s_cmp_eq_u32 s{sIss}, s{s4_}")
            I(f"s_cbranch_scc0 L_ah{u}")
            issue_tile(k)
            A(f"L_ah{u}:")
    def ahead_then_wait():
        u = au[0]; au[0] += 1
        I(f"s_add_u32 s{sAh}, s{sIss}, {cfg.ahead}")
        ahead_tiles()
        I(f"s_cmp_eq_u32 s{sIss}, s{sAh}")
        I(f"s_cbranch_scc1 L_aw{u}")
        I("s_waitcnt vmcnt(0)")
        A(f"L_aw{u}:")
        I(f"s_waitcnt vmcnt({8*cfg.ahead})")
    vWoA = vG + 44
    def wo_loads(br, dst, q):
        I(f"s_lshr_b32 s{s0_}, s2, 2")
        I(f"s_lshl_b32 s{s0_}, s{s0_}, 2"); I(f"s_add_u32 s{s0_}, s{s0_}, s{sWave}")
        I(f"s_lshl_b32 s{s0_}, s{s0_}, 14")
        I(f"s_lshl_b32 s{s1_}, s{sJ}, 8"); I(f"s_add_u32 s{s0_}, s{s0_}, s{s1_}")
        srd(q, sBwo if br else sAwo, 0x400000)
        I(f"v_lshrrev_b32 v{vTmp}, 4, v{vL}")
        I(f"v_lshlrev_b32 v{vTmp}, 12, v{vTmp}")
        I(f"v_and_b32 v{vTmp2}, 15, v{vL}")
        I(f"v_lshl_add_u32 v{vTmp}, v{vTmp2}, 4, v{vTmp}")
        for t in range(4):
            I(f"buffer_load_dwordx4 {dst}[{(vWoA if dst == 'v' else 0)+4*t}:{(vWoA if dst == 'v' else 0)+4*t+3}], v{vTmp}, s[{q}:{q+3}], s{s0_} offen offset:{t*1024} {pol(cfg.fWoB if br else cfg.fWoA)}")
    if cfg.amode == "mid": wo_loads(0, "v", sT)
    ahead_tiles()
    if cfg.swbar:
        write_partial(LDS_PRA, LDS_MLA)
        combine_publish(0, LDS_PRA, LDS_MLA, "L_pubA_done")
    else:
        write_partial(LDS_PRA, LDS_MLA, barrier=False)
        arrive(0, "L_pubA_done")
        lane_rd()
        combine_pass(0, LDS_PRA, LDS_MLA, vRdL, vL, 0)
        I("s_nop 0")
        combine_pass(0, LDS_PRA, LDS_MLA, vRdL, vL, 2)
        A("L_pubA_done:")
    init_state()
    for k in range(4): I(f"v_mov_b32 v{vQ+k}, v{vQB+k}")
    I("s_branch L_round")

    A("L_exit:")
    stamp(4)
    if cfg.amode == "tail": wo_loads(0, "v", sT)
    wo_loads(1, "a", sT2)
    write_partial(LDS_PRB, LDS_MLB, 3)
    combine_publish(1, LDS_PRB, LDS_MLB, "L_pubB_done")
    stamp(4)
    vPo, vPm, vOp = vG+0, vG+1, vG+2
    def consumer_addr():
        I(f"v_and_b32 v{vTmp}, 3, v{vL}")
        I(f"v_bfe_u32 v{vTmp2}, v{vL}, 2, 2")
        I(f"v_lshlrev_b32 v{vPo}, 13, v{vTmp}")
        I(f"v_lshl_add_u32 v{vPo}, v{vTmp2}, 11, v{vPo}")
        I(f"v_lshlrev_b32 v{vPm}, 7, v{vTmp}")
        I(f"v_lshl_add_u32 v{vPm}, v{vTmp2}, 5, v{vPm}")
        I(f"v_lshrrev_b32 v{vTmp}, 4, v{vL}")
        I(f"v_lshl_add_u32 v{vPo}, v{vTmp}, 4, v{vPo}")
        I(f"s_lshr_b32 s{s0_}, s2, 5")
        I(f"s_bfe_u32 s{s1_}, s2, 0x20003")
        I(f"s_bfe_u32 s{s2_}, s2, 0x10002")
        I(f"s_lshl_b32 s{s3_}, s{s0_}, 16")
        I(f"s_lshl_b32 s{s4_}, s{s1_}, 9"); I(f"s_add_u32 s{s3_}, s{s3_}, s{s4_}")
        I(f"s_lshl_b32 s{s4_}, s{s2_}, 8"); I(f"s_add_u32 s{s3_}, s{s3_}, s{s4_}")
        I(f"s_lshl_b32 s{s4_}, s{sWave}, 6"); I(f"s_add_u32 s{s3_}, s{s3_}, s{s4_}")
        I(f"s_add_u32 s{sO[0]}, s{s3_}, {WS_PO}")
        I(f"s_lshl_b32 s{s4_}, s{s0_}, 10")
        I(f"s_lshl_b32 s{s5_}, s{s1_}, 3"); I(f"s_add_u32 s{s4_}, s{s4_}, s{s5_}")
        I(f"s_add_u32 s{sO[1]}, s{s4_}, {WS_PML}")
        I(f"v_lshrrev_b32 v{vOp}, 5, v0")
        I(f"v_lshlrev_b32 v{vOp}, 9, v{vOp}")
        I(f"v_and_b32 v{vTmp}, 31, v0")
        I(f"v_lshl_add_u32 v{vOp}, v{vTmp}, 4, v{vOp}")
        I(f"s_lshr_b32 s{s0_}, s2, 2")
        I(f"s_lshl_b32 s{s1_}, s{sJ}, 6")
        I(f"s_add_u32 s{s0_}, s{s0_}, s{s1_}")
        I(f"s_lshl_b32 s{s0_}, s{s0_}, 12")
        I(f"s_add_u32 s{sO[2]}, s{s0_}, {WS_OP}")

    vO = vG + 8
    vN = vG + 16
    vOB = vG + 24
    vOA = vD
    late_fix = []
    def consume(br, orb, ahead=None, stage=None):
        I(f"s_add_u32 s{s0_}, s{sO[0]}, {br*0x80000}")
        I(f"s_add_u32 s{s1_}, s{s0_}, {4*8192}")
        I(f"s_add_u32 s{s2_}, s{sO[1]}, {br*8192}")
        def loads():
            I(f"buffer_load_dwordx2 v[{vN}:{vN+1}], v{vPm}, s[{sW}:{sW+3}], s{s2_} offen sc1")
            I(f"buffer_load_dwordx2 v[{vN+2}:{vN+3}], v{vPm}, s[{sW}:{sW+3}], s{s2_} offen offset:512 sc1")
            I(f"buffer_load_dwordx4 v[{vO}:{vO+3}], v{vPo}, s[{sW}:{sW+3}], s{s0_} offen sc1")
            I(f"buffer_load_dwordx4 v[{vO+4}:{vO+7}], v{vPo}, s[{sW}:{sW+3}], s{s1_} offen sc1")
        if br == 1: stamp(3)
        if stage != 2: loads()
        if stage == 1: return
        if ahead is not None:
            ahead()
        else:
            I("s_waitcnt vmcnt(0)")
        if br == 1: stamp(3)
        if br == 0: stamp(5)
        poll_loop(f"h1{br}", loads, list(range(vO, vO+12)), cfg.masked)
        if br == 1: stamp(4)
        if br == 1 and cfg.stamps and cfg.diag == 3: I(f"s_sub_u32 s{sLand0}, {hex(cfg.TO)}, s{sTo}")
        for r in range(vN, vN+4): I(f"v_and_b32 v{r}, s{sMaskHi}, v{r}")
        for r in range(vO, vO+8): I(f"v_and_b32 v{r}, s{sMaskHi}, v{r}")
        mx = [vTmp, vTmp2]
        for m in range(2): I(f"v_max_f32_dpp v{mx[m]}, v{vN+2*m}, v{vN+2*m} row_ror:4 row_mask:0xf bank_mask:0xf")
        I("s_nop 0")
        for m in range(2): I(f"v_max_f32_dpp v{mx[m]}, v{mx[m]}, v{mx[m]} row_ror:8 row_mask:0xf bank_mask:0xf")
        for m in range(2): I(f"v_sub_f32 v{vN+2*m}, v{vN+2*m}, v{mx[m]}")
        for m in range(2): I(f"v_exp_f32 v{vN+2*m}, v{vN+2*m}")
        I("s_nop 0")
        for m in range(2): I(f"v_mul_f32 v{vN+2*m+1}, v{vN+2*m}, v{vN+2*m+1}")
        I("s_nop 0")
        for m in range(2): I(f"v_add_f32_dpp v{vN+2*m+1}, v{vN+2*m+1}, v{vN+2*m+1} row_ror:4 row_mask:0xf bank_mask:0xf")
        I("s_nop 0")
        for m in range(2): I(f"v_add_f32_dpp v{vN+2*m+1}, v{vN+2*m+1}, v{vN+2*m+1} row_ror:8 row_mask:0xf bank_mask:0xf")
        for m in range(2): I(f"v_rcp_f32 v{vN+2*m+1}, v{vN+2*m+1}")
        I("s_nop 0")
        for m in range(2): I(f"v_mul_f32 v{vN+2*m}, v{vN+2*m}, v{vN+2*m+1}")
        for m in range(2):
            for k in range(4): I(f"v_mul_f32 v{vO+4*m+k}, v{vN+2*m}, v{vO+4*m+k}")
        for sh in (4, 8):
            for k in range(8): I(f"v_add_f32_dpp v{vO+k}, v{vO+k}, v{vO+k} row_ror:{sh} row_mask:0xf bank_mask:0xf")
        for k in range(8): I(f"v_cvt_pk_bf16_f32 v{vO+k}, v{vO+k}, v{vO+k}")
        for m in range(2):
            for t in range(4):
                I(f"v_and_b32 v{vOB+8*m+2*t}, v{vO+4*m+t}, v{vMask0}")
                I(f"v_and_b32 v{vOB+8*m+2*t+1}, v{vO+4*m+t}, v{vMask1}")
        I("s_nop 0")
        for t in range(4):
            for m in range(2):
                for h in range(2):
                    d = vOA + (m*2+h)*4
                    src = f"a[{4*t+2*h}:{4*t+2*h+1}]" if br else f"v[{vWoA+4*t+2*h}:{vWoA+4*t+2*h+1}]"
                    c = "0" if t == 0 else f"v[{d}:{d+3}]"
                    I(f"v_mfma_f32_16x16x16_bf16 v[{d}:{d+3}], {src}, v[{vOB+8*m+2*t}:{vOB+8*m+2*t+1}], {c}")
        I(f"s_mul_i32 s{s0_}, s{sWave}, {8*ROW}")
        I(f"v_add_u32 v{vTmp2}, s{s0_}, v{vLdsW}")
        I(f"s_add_u32 s{s1_}, s{sO[2]}, {br*4*64*8*512}")
        I("s_nop 5")
        for m in range(2):
            for h in range(2):
                for r in range(4):
                    I(f"ds_write_b32 v{vTmp2}, v{vOA+(m*2+h)*4+r} offset:{orb + m*4*ROW + (8*r+4*h)*4}")
        I("s_waitcnt lgkmcnt(0)")
        if br == 0: stamp(5)
        if stage == 2:
            arrive(1, "L_opA_done")
            lane_rd()
            vA = vG + 8
            I(f"v_lshrrev_b32 v{vOp}, 5, v{vL}")
            I(f"v_lshlrev_b32 v{vOp}, 9, v{vOp}")
            I(f"v_and_b32 v{vTmp}, 31, v{vL}")
            I(f"v_lshl_add_u32 v{vOp}, v{vTmp}, 4, v{vOp}")
            for r in range(4):
                va = vA + (r & 1)*16
                for w in range(4): I(f"ds_read_b128 v[{va+4*w}:{va+4*w+3}], v{vRdL} offset:{orb + r*2*ROW + w*8*ROW}")
                I("s_waitcnt lgkmcnt(0)")
                for k in range(4):
                    I(f"v_add_f32 v{va+k}, v{va+k}, v{va+4+k}")
                    I(f"v_add_f32 v{va+8+k}, v{va+8+k}, v{va+12+k}")
                for k in range(4): I(f"v_add_f32 v{va+k}, v{va+k}, v{va+8+k}")
                for k in range(4): I(f"v_bfi_b32 v{va+k}, s{sFF}, v{vTag}, v{va+k}")
                I(f"buffer_store_dwordx4 v[{va}:{va+3}], v{vOp}, s[{sW}:{sW+3}], s{s1_} offen offset:{r*1024} sc1")
            A("L_opA_done:")
            return
        I("s_barrier")
        if br == 0: stamp(5)
        vA = vG + 8
        for w in range(4): I(f"ds_read_b128 v[{vA+4*w}:{vA+4*w+3}], v{vRd} offset:{orb + w*8*ROW}")
        I("s_waitcnt lgkmcnt(0)")
        for k in range(4):
            I(f"v_add_f32 v{vA+k}, v{vA+k}, v{vA+4+k}")
            I(f"v_add_f32 v{vA+8+k}, v{vA+8+k}, v{vA+12+k}")
        for k in range(4): I(f"v_add_f32 v{vA+k}, v{vA+k}, v{vA+8+k}")
        for k in range(4): I(f"v_bfi_b32 v{vA+k}, s{sFF}, v{vTag}, v{vA+k}")
        I(f"buffer_store_dwordx4 v[{vA}:{vA+3}], v{vOp}, s[{sW}:{sW+3}], s{s1_} offen sc1")
    consumer_addr()
    if cfg.amode == "tail":
        consume(0, LDS_ORA)
        consume(1, LDS_ORB2)
    else:
        consume(1, LDS_ORB)
    stamp(4)
    def final_reduce(tag, ahead=None):
        I(f"s_lshr_b32 s{s0_}, s2, 7")
        I(f"s_bfe_u32 s{s1_}, s2, 0x30004")
        I(f"s_bfe_u32 s{s2_}, s2, 0x20002")
        I(f"s_lshl_b32 s{s3_}, s{s0_}, 2"); I(f"s_add_u32 s{s3_}, s{s3_}, s{s2_}")
        I(f"s_lshl_b32 s{s3_}, s{s3_}, 18")
        I(f"s_lshl_b32 s{s4_}, s{s1_}, 9"); I(f"s_add_u32 s{s3_}, s{s3_}, s{s4_}")
        I(f"s_lshl_b32 s{s4_}, s{sJ}, 7"); I(f"s_add_u32 s{s3_}, s{s3_}, s{s4_}")
        I(f"s_add_u32 s{s3_}, s{s3_}, {WS_OP}")
        I(f"v_lshrrev_b32 v{vG}, 3, v{vL}")
        I(f"v_lshlrev_b32 v{vG}, 12, v{vG}")
        I(f"v_and_b32 v{vG+1}, 7, v{vL}")
        I(f"v_lshl_add_u32 v{vG}, v{vG+1}, 4, v{vG}")
        vF = vG + 8
        I(f"s_lshl_b32 s{s4_}, s{s1_}, 11")
        I(f"s_lshl_b32 s{s5_}, s{s0_}, 10"); I(f"s_add_u32 s{s4_}, s{s4_}, s{s5_}")
        I(f"s_lshl_b32 s{s5_}, s{s2_}, 8"); I(f"s_add_u32 s{s4_}, s{s4_}, s{s5_}")
        I(f"s_lshl_b32 s{s5_}, s{sJ}, 6"); I(f"s_add_u32 s{s5_}, s{s4_}, s{s5_}")
        srd(sT, sOut, 16384)
        I(f"v_lshlrev_b32 v{vG+1}, 3, v{vG+1}")
        def loads():
            I(f"s_mov_b32 s{s4_}, s{s3_}")
            for i in range(8):
                I(f"buffer_load_dwordx4 v[{vF+4*i}:{vF+4*i+3}], v{vG}, s[{sW}:{sW+3}], s{s4_} offen sc1")
                if i < 7: I(f"s_add_u32 s{s4_}, s{s4_}, 32768")
        if ahead is None and cfg.probe:
            I(f"v_lshlrev_b32 v{vG+2}, 12, v{vL}")
            def probe():
                I(f"buffer_load_dword v{vG+3}, v{vG+2}, s[{sW}:{sW+3}], s{s3_} offen sc1")
            probe()
            I("s_waitcnt vmcnt(0)")
            poll_loop(f"pr{tag}", probe, [vG+3], True)
        loads()
        if ahead is not None:
            ahead()
        else:
            I("s_waitcnt vmcnt(0)")
        poll_loop(f"h2{tag}", loads, list(range(vF, vF+32)), False)
        for r in range(vF, vF+32): I(f"v_and_b32 v{r}, s{sMaskHi}, v{r}")
        for step in (16, 8, 4):
            for k in range(step): I(f"v_add_f32 v{vF+k}, v{vF+k}, v{vF+step+k}")
        I("s_nop 0")
        for k in range(4): I(f"v_add_f32_dpp v{vF+k}, v{vF+k}, v{vF+k} row_ror:8 row_mask:0xf bank_mask:0xf")
        for k in range(4): I(f"v_mov_b32 v{vF+4+k}, v{vF+k}")
        I("s_nop 1")
        for k in range(4): I(f"v_permlane16_swap_b32 v{vF+k}, v{vF+4+k}")
        I("s_nop 1")
        for k in range(4): I(f"v_add_f32 v{vF+k}, v{vF+k}, v{vF+4+k}")
        for k in range(4): I(f"v_mov_b32 v{vF+4+k}, v{vF+k}")
        I("s_nop 1")
        for k in range(4): I(f"v_permlane32_swap_b32 v{vF+k}, v{vF+4+k}")
        I("s_nop 1")
        for k in range(4): I(f"v_add_f32 v{vF+k}, v{vF+k}, v{vF+4+k}")
        I(f"v_cvt_pk_bf16_f32 v{vF+8}, v{vF}, v{vF+1}")
        I(f"v_cvt_pk_bf16_f32 v{vF+9}, v{vF+2}, v{vF+3}")
        I("s_mov_b64 exec, 0xff")
        I(f"buffer_store_dwordx2 v[{vF+8}:{vF+9}], v{vG+1}, s[{sT}:{sT+3}], s{s5_} offen")
        I("s_mov_b64 exec, -1")

    I(f"s_cmp_lg_u32 s{sWave}, 0")
    I("s_cbranch_scc1 L_fin")
    final_reduce("E")
    I("s_cmp_lg_u32 s2, 0")
    I("s_cbranch_scc1 L_fin")
    I("s_mov_b64 exec, 1")
    I(f"buffer_store_dword v{vTag}, v{vZ}, s[{sW}:{sW+3}], 0 offen offset:{WS_EPOCH} sc1")
    A("L_fin:")
    if cfg.stamps:
        I("s_mov_b64 exec, 1")
        I(f"s_memrealtime s[100:101]")
        I("s_waitcnt lgkmcnt(0)")
        I(f"s_lshl_b32 s{s0_}, s2, 2"); I(f"s_add_u32 s{s0_}, s{s0_}, s{sWave}"); I(f"s_lshl_b32 s{s0_}, s{s0_}, 7")
        I(f"s_add_u32 s{s0_}, s{s0_}, {WS_STAMP}")
        for q in range(5):
            for k in range(4): I(f"v_mov_b32 v{vG+4*q+k}, s{sStamp+4*q+k}")
            I(f"buffer_store_dwordx4 v[{vG+4*q}:{vG+4*q+3}], v{vZ}, s[{sW}:{sW+3}], s{s0_} offen offset:{16*q}")
        I(f"s_getreg_b32 s{s1_}, hwreg(HW_REG_XCC_ID)")
        I(f"s_lshl_b32 s{s2_}, s{sEnd}, 8"); I(f"s_or_b32 s{sLand0}, s{sLand0}, s{s2_}")
        I(f"v_mov_b32 v{vG+20}, s100"); I(f"v_mov_b32 v{vG+21}, s101"); I(f"v_mov_b32 v{vG+22}, s{s1_}"); I(f"v_mov_b32 v{vG+23}, s{sLand0}")
        I(f"buffer_store_dwordx4 v[{vG+20}:{vG+23}], v{vZ}, s[{sW}:{sW+3}], s{s0_} offen offset:80")
    I("s_endpgm")
    for s in range(R):
        A(f"L_rare{s}:")
        I(f"v_mov_b32 v{vTmp}, v{vS}")
        allsum(vTmp, "max")
        I(f"v_max_f32 v{vTmp}, v{vTmp}, v{vM}")
        I(f"v_sub_f32 v{vTmp2}, v{vM}, v{vTmp}")
        I(f"v_mul_f32 v{vTmp2}, s{sC}, v{vTmp2}")
        I(f"v_exp_f32 v{vTmp2}, v{vTmp2}")
        I(f"v_mov_b32 v{vM}, v{vTmp}")
        I(f"v_mul_f32 v{vMC}, s{sC}, v{vTmp}")
        I(f"v_mul_f32 v{vLs}, v{vLs}, v{vTmp2}")
        for k in range(8): I(f"v_mul_f32 v{vAcc+k}, v{vAcc+k}, v{vTmp2}")
        I(f"s_branch L_cont{s}")
    if cfg.amode == "mid":
        A("L_jobA:")
        consumer_addr()
        consume(0, LDS_ORA, stage=1)
        I("s_branch L_round")
        A("L_jobA2:")
        stamp(5)
        consume(0, LDS_ORA, ahead=ahead_tiles, stage=2)
        stamp(5)
        I("s_branch L_round")
    for s, slot in late_steps.items():
        A(f"L_late{s}:")
        issue_tile(slot, "A" if R == 4 else None)
        I(f"s_branch L_noiss{s}")
    for s in range(R):
        A(f"L_wait{s}:")
        for d in (1, 2, 3):
            if d == W: continue
            I(f"s_cmp_eq_u32 s{s0_}, {d}")
            I(f"s_cbranch_scc1 L_wait{s}_{d}")
        I("s_waitcnt vmcnt(24)")
        I(f"s_branch L_nowait{s}")
        for d in (1, 2, 3):
            if d == W: continue
            A(f"L_wait{s}_{d}:")
            I(f"s_waitcnt vmcnt({8*(d-1)})")
            I(f"s_branch L_nowait{s}")
    for s in range(R):
        A(f"L_dyn{s}:")
        I(f"s_cmp_lt_u32 s{sIss}, {NST}")
        I(f"s_cbranch_scc1 L_claim{s}")
        I(f"s_cmp_lg_u32 s{sEnd}, -1")
        I(f"s_cbranch_scc1 L_noiss{s}")
        I(f"v_readfirstlane_b32 s{s1_}, v{vClaim}")
        I("s_nop 1")
        I(f"s_add_u32 s{s1_}, s{s1_}, {16*SB}")
        I(f"s_cmp_lt_u32 s{s1_}, 512")
        I(f"s_cbranch_scc1 L_got{s}")
        I(f"s_mov_b32 s{sEnd}, s{sIss}")
        I(f"s_branch L_noiss{s}")
        A(f"L_got{s}:")
        I(f"s_lshl_b32 s{s1_}, s{s1_}, 12")
        I(f"s_add_u32 s{sOff}, s{sPair}, s{s1_}")
        A(f"L_claim{s}:")
        I(f"v_mov_b32 v{vClaim}, 1")
        I("s_mov_b64 exec, 1")
        I(f"buffer_atomic_add v{vClaim}, v{vZ}, s[{sW}:{sW+3}], s{sCnt} offen sc0 sc1")
        I("s_mov_b64 exec, -1")
        I(f"s_branch L_loads{s}")
    for (u, slot, pa) in late_blocks:
        A(f"L_ia{u}:")
        tile_loads(slot, *pa)
        I(f"s_branch L_ib{u}")
    A("L_end:")
    I("s_endpgm")
    A('.section .rodata,"a"'); A(".p2align 6"); A(f".amdhsa_kernel {KNAME}")
    I(f".amdhsa_next_free_vgpr {NV + 32*R}")
    I(f".amdhsa_next_free_sgpr {NS}")
    I(f".amdhsa_accum_offset {NV}")
    I(".amdhsa_group_segment_fixed_size 0")
    I(".amdhsa_kernarg_size 104")
    I(".amdhsa_user_sgpr_count 2")
    I(".amdhsa_user_sgpr_kernarg_segment_ptr 1")
    I(".amdhsa_system_sgpr_workgroup_id_x 1")
    I(".amdhsa_float_denorm_mode_32 3")
    A(".end_amdhsa_kernel")
    return "\n".join(L) + "\n"

if __name__ == "__main__":
    out = sys.argv[1]
    cfg = Cfg()
    for kv in sys.argv[2:]:
        k, v = kv.split("=")
        cur = getattr(cfg, k)
        setattr(cfg, k, (v not in ("0", "False")) if isinstance(cur, bool) else (int(v, 0) if isinstance(cur, int) else v))
    open(out, "w").write(gen(cfg))
```

```python
import sys, math, struct
KNAME = "concat_heads__sliding_block_cached__gqa_block_cached__decode_kernel"

class Cfg:
    stamps = False
    fAk = "nt"; fAv = "nt"; fBk = "nt"; fBv = "nt"
    fWq = "nt"; fWoA = "nt"; fWoB = "nt"
    R = 4
    W = 1
    SB = 24
    TO = 0x40000
    diag = 0
    ahead = 1
    hint = True
    hintN = 60
    apre = True
    preN = 0
    bearly = False
    xmix = False
    woearly = True
    h2mask = False
    probe = False
    swbar = False
    masked = True
    wexcl = False

WS_EPOCH = 0
WS_CNT  = 0x008000
WS_QP   = 0x010000
WS_PO   = 0x110000
WS_PML  = 0x210000
WS_OP   = 0x220000
WS_STAMP = 0x500000
WS_SIZE = 0x600000

ROW = 196*4
LDS_QR  = 0
LDS_PRA = 0
LDS_MLA = 12544
LDS_PRB = 12800
LDS_MLB = 25344
LDS_ORB = 25600
LDS_ORB2 = 0
LDS_QX  = 25600
LDS_ORA = 25600
LDS_CNT = 25600 + 25088
LDS_SIZE = LDS_CNT + 16

C_SCALE = math.log2(math.e)/math.sqrt(128.0)
def f32bits(x): return struct.unpack("<I", struct.pack("<f", x))[0]
def pol(x): return "" if x == "def" else x.replace("+", " ")

def gen(cfg):
    L = []
    def A(s): L.append(s)
    def I(s): L.append("  " + s)
    R, W, SB = cfg.R, cfg.W, cfg.SB
    assert R in (4, 8) and W == 1
    NST = 8 + SB
    assert 8 + cfg.ahead < NST - 1

    sAx, sAk, sAv, sAwq, sAwo, sBx, sBk, sBv = 4, 6, 8, 10, 12, 14, 16, 18
    sBwq, sBwo, sOut, sDbg = 20, 22, 24, 26
    sWs = 28
    sPc = 30
    sK, sV, sW, sT, sT2 = 32, 36, 40, 44, 48
    sWave = 52; sOff = 53; sOffB = 54; sIss = 55; sLand = 56; sI = 57; sLate = 58
    sC = 59; sFF = 60; sMaskHi = 61
    s0_, s1_, s2_, s3_, s4_, s5_ = 62, 63, 64, 65, 66, 67
    sTo = 68; sStep = 69; sB, sG, sJ = 70, 71, 72
    sLand0 = 73; sPair = 74; sEnd = 75
    sStamp = 76
    sRdyP = 20; sRdyC = 21; sEarly = 22
    sTl = 27; sPre = 31; sJa = 30
    sCnt = 96; sO = [97, 98, 99]; sWoOff = 26
    NS = 102

    vL = 1; vOffK = 2; vOffV = 3; vLdsW = 4; vTag = 5
    vM, vMC, vLs, vRd, vClaim = 6, 7, 8, 9, 10
    vS, vP, vPlo, vPhi, vTmp, vTmp2 = 11, 12, 13, 14, 15, 16
    vMask0, vMask1 = 17, 18
    vZ = 19
    vQ = 20; vQB = 24
    vAcc = 28
    vBp = 44
    vD = 52
    vG = 68
    NV = 128

    def srd(q, ptr, size):
        I(f"s_mov_b32 s{q}, s{ptr}")
        I(f"s_and_b32 s{q+1}, s{ptr+1}, 0xffff")
        I(f"s_mov_b32 s{q+2}, {hex(size)}")
        I(f"s_mov_b32 s{q+3}, 0x20000")
    stamp_n = [0]
    def stamp(level=0):
        if not cfg.stamps: return
        if cfg.diag == 0 and level not in (0, 2, 4): return
        if cfg.diag == 1 and level not in (1, 2): return
        if cfg.diag == 3 and level not in (3, 4): return
        if cfg.diag == 5 and level != 5: return
        n = stamp_n[0]; stamp_n[0] += 1
        assert n < 10
        I(f"s_memrealtime s[{sStamp+2*n}:{sStamp+2*n+1}]")
    def tagcheck(regs, okl):
        I(f"v_xor_b32 v{vTmp}, v{regs[0]}, v{vTag}")
        for r in regs[1:]:
            I(f"v_bitop3_b32 v{vTmp}, v{vTmp}, v{r}, v{vTag} bitop3:0xf6")
        I(f"v_and_b32 v{vTmp}, 0xff, v{vTmp}")
        I(f"v_cmp_ne_u32 vcc, 0, v{vTmp}")
        I(f"s_cbranch_vccz {okl}")
    def tagbad(regs):
        I(f"v_xor_b32 v{vTmp}, v{regs[0]}, v{vTag}")
        for r in regs[1:]:
            I(f"v_bitop3_b32 v{vTmp}, v{vTmp}, v{r}, v{vTag} bitop3:0xf6")
        I(f"v_and_b32 v{vTmp}, 0xff, v{vTmp}")
        I(f"v_cmp_ne_u32 vcc, 0, v{vTmp}")
    def poll_loop(name, loads, regs, masked):
        I(f"s_mov_b32 s{sTo}, {hex(cfg.TO)}")
        A(f"L_{name}_chk:")
        tagbad(regs)
        I(f"s_cbranch_vccz L_{name}_ok")
        I(f"s_sub_u32 s{sTo}, s{sTo}, 1")
        I(f"s_cmp_eq_u32 s{sTo}, 0")
        I(f"s_cbranch_scc1 L_{name}_ok")
        if masked: I("s_mov_b64 exec, vcc")
        loads()
        I("s_waitcnt vmcnt(0)")
        I(f"s_branch L_{name}_chk")
        A(f"L_{name}_ok:")
        if masked: I("s_mov_b64 exec, -1")
    def arrive(idx, notlast):
        I(f"v_mov_b32 v{vTmp}, 1")
        I("s_mov_b64 exec, 1")
        I(f"ds_add_rtn_u32 v{vTmp}, v{vZ}, v{vTmp} offset:{LDS_CNT + 4*idx}")
        I("s_mov_b64 exec, -1")
        I("s_waitcnt lgkmcnt(0)")
        I(f"v_readfirstlane_b32 s{s0_}, v{vTmp}")
        I("s_nop 1")
        I(f"s_cmp_lg_u32 s{s0_}, 3")
        I(f"s_cbranch_scc1 {notlast}")
    def allsum(v, op="add"):
        o = f"v_{op}_f32"
        I("s_nop 1")
        I(f"{o}_dpp v{v}, v{v}, v{v} row_ror:4 row_mask:0xf bank_mask:0xf")
        I("s_nop 1")
        I(f"{o}_dpp v{v}, v{v}, v{v} row_ror:8 row_mask:0xf bank_mask:0xf")
        I(f"v_mov_b32 v{vTmp2}, v{v}")
        I("s_nop 1")
        I(f"v_permlane16_swap_b32 v{v}, v{vTmp2}")
        I("s_nop 1")
        I(f"{o} v{v}, v{v}, v{vTmp2}")
        I(f"v_mov_b32 v{vTmp2}, v{v}")
        I("s_nop 1")
        I(f"v_permlane32_swap_b32 v{v}, v{vTmp2}")
        I("s_nop 1")
        I(f"{o} v{v}, v{v}, v{vTmp2}")

    A(f"; @launch grid=(256,1,1) block=(256,1,1) lds={LDS_SIZE}")
    A('.amdgcn_target "amdgcn-amd-amdhsa--gfx950"')
    A(".text"); A(f".globl {KNAME}"); A(".p2align 8"); A(f".type {KNAME},@function"); A(f"{KNAME}:")
    I("s_cmp_ge_u32 s2, 256")
    I("s_cbranch_scc1 L_end")
    stamp(2)
    if cfg.diag in (3, 5): I(f"s_memrealtime s[{sStamp}:{sStamp+1}]"); stamp_n[0] = 1
    I(f"s_load_dwordx16 s[4:19], s[0:1], 0")
    I(f"s_load_dwordx8 s[20:27], s[0:1], 64")
    I(f"s_load_dwordx2 s[28:29], s[0:1], 96")
    I(f"s_getpc_b64 s[{sPc}:{sPc+1}]")
    A("L_pc:")
    I(f"v_lshlrev_b32 v{vTmp}, 7, v0")
    I(f"v_min_u32 v{vTmp}, L_end-L_pc, v{vTmp}")
    I(f"global_load_dword v{vTmp2}, v{vTmp}, s[{sPc}:{sPc+1}]")
    I(f"v_and_b32 v{vL}, 63, v0")
    I(f"v_lshrrev_b32 v{vS}, 6, v0")
    I(f"v_mov_b32 v{vZ}, 0")
    I(f"v_readfirstlane_b32 s{sWave}, v{vS}")
    I(f"v_bfe_u32 v{vP}, v{vL}, 2, 2")
    I(f"v_lshrrev_b32 v{vPlo}, 4, v{vL}")
    I(f"v_and_b32 v{vPhi}, 3, v{vL}")
    I(f"v_and_b32 v{vM}, 15, v{vL}")
    I(f"v_lshlrev_b32 v{vOffV}, 4, v{vL}")
    I(f"v_lshlrev_b32 v{vOffK}, 8, v{vP}")
    I(f"v_lshl_add_u32 v{vOffK}, v{vPlo}, 6, v{vOffK}")
    I(f"v_lshl_add_u32 v{vOffK}, v{vPhi}, 4, v{vOffK}")
    vWoff, vXoff = vG, vG+1
    I(f"v_lshlrev_b32 v{vWoff}, 16, v{vPlo}")
    I(f"v_lshl_add_u32 v{vWoff}, v{vM}, 4, v{vWoff}")
    I(f"v_lshlrev_b32 v{vXoff}, 10, v{vPhi}")
    I(f"v_lshl_add_u32 v{vXoff}, v{vPlo}, 4, v{vXoff}")
    if cfg.xmix:
        I(f"s_and_b32 s{s0_}, s2, 7")
        I(f"s_bcnt1_i32_b32 s{s1_}, s{s0_}")
        I(f"s_and_b32 s{s1_}, s{s1_}, 1")
        I(f"s_lshr_b32 s{sJa}, s{s0_}, 1")
        I(f"s_lshr_b32 s{sPair}, s2, 3")
        I(f"s_lshl_b32 s{sPair}, s{sPair}, 1")
        I(f"s_or_b32 s{sPair}, s{sPair}, s{s1_}")
    else:
        I(f"s_and_b32 s{sJa}, s2, 3")
        I(f"s_lshr_b32 s{sPair}, s2, 2")
    I(f"s_lshr_b32 s{sB}, s{sPair}, 3")
    I(f"s_and_b32 s{sG}, s{sPair}, 7")
    I(f"s_and_b32 s{sJ}, s2, 3")
    I(f"s_lshl_b32 s{sCnt}, s{sPair}, 8")
    I(f"s_add_u32 s{sCnt}, s{sCnt}, {WS_CNT}")
    I(f"s_lshl_b32 s{sPair}, s{sPair}, 21")
    I(f"s_lshl_b32 s{s1_}, s{sJa}, 2")
    I(f"s_add_u32 s{s1_}, s{s1_}, s{sWave}")
    I(f"s_lshl_b32 s{s0_}, s{s1_}, 12")
    I(f"s_add_u32 s{sOffB}, s{sPair}, s{s0_}")
    I(f"s_lshl_b32 s{s1_}, s{sJ}, 2")
    I(f"s_add_u32 s{s1_}, s{s1_}, s{sWave}")
    I(f"s_lshl_b32 s{s0_}, s{sWave}, 12")
    I(f"s_add_u32 s{sOff}, s{sPair}, s{s0_}")
    I(f"s_lshl_b32 s{s0_}, s{sJa}, 17")
    I(f"s_add_u32 s{sOff}, s{sOff}, s{s0_}")
    I(f"s_add_u32 s{sOff}, s{sOff}, {6144*256}")
    I(f"s_lshl_b32 s{s2_}, s{s1_}, 18")
    I(f"s_bfe_u32 s{s3_}, s2, 0x50002")
    I(f"s_lshl_b32 s{s3_}, s{s3_}, 8")
    I(f"s_add_u32 s{s2_}, s{s2_}, s{s3_}")
    I(f"s_lshl_b32 s{s1_}, s{s1_}, 6")
    I("s_waitcnt lgkmcnt(0)")
    stamp(2)
    srd(sW, sWs, WS_SIZE)
    I(f"buffer_load_dword v{vTag}, v{vZ}, s[{sW}:{sW+3}], 0 offen offset:{WS_EPOCH} sc1")
    I(f"s_and_b32 s{s0_}, s2, 0x8f")
    I(f"s_or_b32 s{s0_}, s{s0_}, s{sWave}")
    I(f"s_cmp_lg_u32 s{s0_}, 0")
    I("s_cbranch_scc1 L_nocnt")
    I(f"s_lshr_b32 s{s0_}, s2, 4")
    I(f"s_lshl_b32 s{s0_}, s{s0_}, 8")
    I(f"s_add_u32 s{s0_}, s{s0_}, {WS_CNT}")
    I(f"v_lshlrev_b32 v{vTmp}, 11, v{vL}")
    I("s_mov_b64 exec, 0x1ff")
    I(f"buffer_store_dword v{vZ}, v{vTmp}, s[{sW}:{sW+3}], s{s0_} offen sc1")
    I("s_mov_b64 exec, -1")
    A("L_nocnt:")
    I(f"s_cmp_lt_u32 s2, 128")
    I(f"s_cselect_b32 s{sT}, s{sAx}, s{sBx}")
    I(f"s_cselect_b32 s{sT+1}, s{sAx+1}, s{sBx+1}")
    I(f"s_cselect_b32 s{sT2}, s{sAwq}, s{sBwq}")
    I(f"s_cselect_b32 s{sT2+1}, s{sAwq+1}, s{sBwq+1}")
    I(f"s_and_b32 s{sT+1}, s{sT+1}, 0xffff")
    I(f"s_and_b32 s{sT2+1}, s{sT2+1}, 0xffff")
    I(f"s_mov_b32 s{sT+2}, 8192"); I(f"s_mov_b32 s{sT+3}, 0x20000")
    I(f"s_mov_b32 s{sT2+2}, 0x400000"); I(f"s_mov_b32 s{sT2+3}, 0x20000")
    vX = vG + 2
    I(f"buffer_load_dwordx4 v[{vX}:{vX+3}], v{vXoff}, s[{sT}:{sT+3}], s{s1_} offen")
    I(f"s_add_u32 s{s1_}, s{s1_}, 4096")
    I(f"buffer_load_dwordx4 v[{vX+4}:{vX+7}], v{vXoff}, s[{sT}:{sT+3}], s{s1_} offen")
    WSLOT = R - 1
    for t in range(8):
        a = WSLOT*32 + 4*t
        I(f"buffer_load_dwordx4 a[{a}:{a+3}], v{vWoff}, s[{sT2}:{sT2+3}], s{s2_} offen {pol(cfg.fWq)}")
        if t < 7: I(f"s_add_u32 s{s2_}, s{s2_}, 8192")
    srd(sK, sAk, 0x8000000)
    srd(sV, sAv, 0x8000000)
    I(f"s_mov_b32 s{sIss}, 0")
    I(f"s_mov_b32 s{sStep}, 16384")
    I(f"s_and_b32 s{sBk+1}, s{sBk+1}, 0xffff")
    I(f"s_and_b32 s{sBv+1}, s{sBv+1}, 0xffff")

    late_blocks = []; uniq = [0]
    def tile_loads(slot, fk, fv):
        for t in range(4):
            a = slot*32 + 4*t
            I(f"buffer_load_dwordx4 a[{a}:{a+3}], v{vOffK}, s[{sK}:{sK+3}], s{sOff} offen offset:{t*1024} {fk}")
        for t in range(4):
            a = slot*32 + 16 + 4*t
            I(f"buffer_load_dwordx4 a[{a}:{a+3}], v{vOffV}, s[{sV}:{sV+3}], s{sOff} offen offset:{t*1024} {fv}")
    def issue_tile(slot, phase=None):
        pa = (pol(cfg.fAk), pol(cfg.fAv)); pb = (pol(cfg.fBk), pol(cfg.fBv))
        if phase == "A" or pa == pb:
            tile_loads(slot, *pa)
        else:
            u = uniq[0]; uniq[0] += 1
            I(f"s_cmp_lt_u32 s{sIss}, 8")
            I(f"s_cbranch_scc1 L_ia{u}")
            tile_loads(slot, *pb)
            A(f"L_ib{u}:")
            late_blocks.append((u, slot, pa))
        I(f"s_add_u32 s{sOff}, s{sOff}, s{sStep}")
        I(f"s_add_u32 s{sIss}, s{sIss}, 1")
        I(f"s_cmp_eq_u32 s{sIss}, 8")
        I(f"s_cselect_b32 s{sOff}, s{sOffB}, s{sOff}")
        I(f"s_cselect_b32 s{sStep}, 0x10000, s{sStep}")
        I(f"s_cselect_b32 s{sK}, s{sBk}, s{sK}")
        I(f"s_cselect_b32 s{sK+1}, s{sBk+1}, s{sK+1}")
        I(f"s_cselect_b32 s{sV}, s{sBv}, s{sV}")
        I(f"s_cselect_b32 s{sV+1}, s{sBv+1}, s{sV+1}")

    if not cfg.wexcl: issue_tile(0, "A")
    I(f"s_mov_b32 s{sC}, {hex(f32bits(C_SCALE))}")
    I(f"s_mov_b32 s{sFF}, 0xff")
    I(f"s_mov_b32 s{sMaskHi}, 0xffffff00")
    I(f"v_mul_u32_u24 v{vLdsW}, 196, v{vPhi}")
    I(f"v_mad_u32_u24 v{vLdsW}, v{vPlo}, 48, v{vLdsW}")
    I(f"v_add_lshl_u32 v{vLdsW}, v{vLdsW}, v{vP}, 2")
    I(f"v_lshrrev_b32 v{vRd}, 5, v0")
    I(f"v_mul_u32_u24 v{vRd}, 196, v{vRd}")
    I(f"v_bfe_u32 v{vTmp}, v0, 3, 2")
    I(f"v_mad_u32_u24 v{vRd}, v{vTmp}, 48, v{vRd}")
    I(f"v_and_b32 v{vTmp}, 7, v0")
    I(f"v_lshl_add_u32 v{vRd}, v{vTmp}, 2, v{vRd}")
    I(f"v_lshlrev_b32 v{vRd}, 2, v{vRd}")
    vSel = vG + 10
    def pick(dst, r, lo, hi, other):
        I(f"v_mov_b32 v{dst}, {hex(other)}")
        I(f"v_mov_b32 v{vTmp}, {hex(lo)}")
        I(f"v_cmp_eq_u32 vcc, {2*r}, v{vP}")
        I(f"s_nop 1")
        I(f"v_cndmask_b32 v{dst}, v{dst}, v{vTmp}, vcc")
        I(f"v_mov_b32 v{vTmp}, {hex(hi)}")
        I(f"v_cmp_eq_u32 vcc, {2*r+1}, v{vP}")
        I(f"s_nop 1")
        I(f"v_cndmask_b32 v{dst}, v{dst}, v{vTmp}, vcc")
    for r in range(2):
        pick(vSel + 2*r + 0, r, 0x0c0c0100, 0x01000c0c, 0x0c0c0c0c)
        pick(vSel + 2*r + 1, r, 0x0c0c0302, 0x03020c0c, 0x0c0c0c0c)
    pick(vMask0, 0, 0xffff, 0xffff0000, 0)
    pick(vMask1, 1, 0xffff, 0xffff0000, 0)
    for k in range(8): I(f"v_mov_b32 v{vBp+k}, 0")
    I(f"v_lshlrev_b32 v{vTmp}, 2, v{vL}")
    I("s_mov_b64 exec, 3")
    I(f"ds_write_b32 v{vTmp}, v{vZ} offset:{LDS_CNT}")
    I("s_mov_b64 exec, -1")
    WB = 0 if cfg.wexcl else 8
    I(f"s_waitcnt vmcnt({7+WB})")
    I(f"v_add_u32 v{vTag}, 1, v{vTag}")
    vQacc = vG + 16
    vXB = vG + 32
    for t in range(8):
        bs = vXB + (t & 1)*4
        if t > 0:
            I(f"s_waitcnt vmcnt({7+WB-t})")
            if t == 7:
                stamp(2)
                if cfg.wexcl: issue_tile(0, "A")
                issue_tile(1, "A")
                stamp(1)
        for m in range(2):
            for r in range(2):
                I(f"v_perm_b32 v{bs+2*m+r}, v{vX+4*m+(t>>1)}, v{vX+4*m+(t>>1)}, v{vSel+2*r+(t&1)}")
        for m in range(2):
            for h in range(2):
                d = vQacc + (m*2+h)*4
                a = WSLOT*32 + 4*t + 2*h
                c = "0" if t == 0 else f"v[{d}:{d+3}]"
                I(f"v_mfma_f32_16x16x16_bf16 v[{d}:{d+3}], a[{a}:{a+1}], v[{bs+2*m}:{bs+2*m+1}], {c}")
    I(f"s_mul_i32 s{s0_}, s{sWave}, {8*ROW}")
    I(f"v_add_u32 v{vTmp}, s{s0_}, v{vLdsW}")
    I(f"s_lshr_b32 s{s0_}, s2, 4")
    I(f"s_lshl_b32 s{s0_}, s{s0_}, 2")
    I(f"s_add_u32 s{s0_}, s{s0_}, s{sJ}")
    I(f"s_lshl_b32 s{s0_}, s{s0_}, 14")
    I(f"s_bfe_u32 s{s1_}, s2, 0x20002")
    I(f"s_lshl_b32 s{s1_}, s{s1_}, 9")
    I(f"s_add_u32 s{s0_}, s{s0_}, s{s1_}")
    I(f"s_add_u32 s{s0_}, s{s0_}, {WS_QP}")
    for m in range(2):
        for h in range(2):
            for r in range(4):
                I(f"ds_write_b32 v{vTmp}, v{vQacc+(m*2+h)*4+r} offset:{LDS_QR + m*4*ROW + (8*r+4*h)*4}")
    I(f"v_lshrrev_b32 v{vTmp}, 5, v0")
    I(f"v_lshlrev_b32 v{vTmp}, 11, v{vTmp}")
    I(f"v_and_b32 v{vTmp2}, 31, v0")
    I(f"v_lshl_add_u32 v{vTmp}, v{vTmp2}, 4, v{vTmp}")
    I("s_waitcnt lgkmcnt(0)")
    stamp(1)
    I("s_barrier")
    stamp(1)
    vR = vG + 44
    for w in range(4):
        I(f"ds_read_b128 v[{vR+4*w}:{vR+4*w+3}], v{vRd} offset:{LDS_QR + w*8*ROW}")
    vQoff = vG + 41
    I(f"v_lshlrev_b32 v{vQoff}, 9, v{vPhi}")
    I(f"v_lshl_add_u32 v{vQoff}, v{vPlo}, 7, v{vQoff}")
    I(f"v_lshl_add_u32 v{vQoff}, v{vP}, 5, v{vQoff}")
    I(f"s_lshl_b32 s{s2_}, s{sG}, 2")
    I(f"s_add_u32 s{s2_}, s{s2_}, s{sWave}")
    I(f"s_lshl_b32 s{s2_}, s{s2_}, 3")
    I(f"s_add_u32 s{s2_}, s{s2_}, s{sB}")
    I(f"s_lshl_b32 s{s2_}, s{s2_}, 11")
    I(f"s_add_u32 s{s2_}, s{s2_}, {WS_QP}")
    I(f"s_add_u32 s{s3_}, s{s2_}, 0x80000")
    I("s_waitcnt lgkmcnt(0)")
    for k in range(4):
        I(f"v_add_f32 v{vR+k}, v{vR+k}, v{vR+4+k}")
        I(f"v_add_f32 v{vR+8+k}, v{vR+8+k}, v{vR+12+k}")
    for k in range(4): I(f"v_add_f32 v{vR+k}, v{vR+k}, v{vR+8+k}")
    for k in range(4): I(f"v_bfi_b32 v{vR+k}, s{sFF}, v{vTag}, v{vR+k}")
    I(f"buffer_store_dwordx4 v[{vR}:{vR+3}], v{vTmp}, s[{sW}:{sW+3}], s{s0_} offen sc1")
    stamp(2)
    vQL = vG + 16
    def qpoll_loads():
        I(f"buffer_load_dwordx4 v[{vQL}:{vQL+3}], v{vQoff}, s[{sW}:{sW+3}], s{s2_} offen sc1")
        I(f"buffer_load_dwordx4 v[{vQL+4}:{vQL+7}], v{vQoff}, s[{sW}:{sW+3}], s{s2_} offen offset:16 sc1")
        I(f"buffer_load_dwordx4 v[{vQL+8}:{vQL+11}], v{vQoff}, s[{sW}:{sW+3}], s{s3_} offen sc1")
        I(f"buffer_load_dwordx4 v[{vQL+12}:{vQL+15}], v{vQoff}, s[{sW}:{sW+3}], s{s3_} offen offset:16 sc1")
    qregs = list(range(vQL, vQL+16))
    I(f"s_mov_b32 s{sLate}, 0")
    for k in range(2, R):
        qpoll_loads(); issue_tile(k, "A")
        I(f"s_mov_b32 s{sLand}, {k}")
        I("s_waitcnt vmcnt(8)")
        if k == 2: stamp(1)
        tagcheck(qregs, f"L_qok{k}")
    I(f"s_mov_b32 s{sLand}, {R}")
    I(f"s_mov_b32 s{sLate}, 1")
    qpoll_loads()
    I("s_waitcnt vmcnt(0)")
    poll_loop("qp", qpoll_loads, qregs, cfg.masked)
    I("s_branch L_qok")
    for k in range(R-1, 1, -1):
        A(f"L_qok{k}:")
        if R == 4:
            if k == 2: issue_tile(3, "A")
            I(f"s_mov_b32 s{sLate}, 1")
        else:
            for n_ in (k+1, k+2):
                if n_ < R: issue_tile(n_, "A")
            if k + 2 >= R - 1: I(f"s_mov_b32 s{sLate}, 1")
            else: I(f"s_mov_b32 s{sLate}, {k+3+8}")
        if k > 2: I("s_branch L_qok")
    A("L_qok:")
    stamp(2)
    if cfg.stamps: I(f"s_mov_b32 s{sLand0}, s{sLand}")
    for r in qregs: I(f"v_and_b32 v{r}, s{sMaskHi}, v{r}")
    I(f"s_lshl_b32 s{s0_}, s{sWave}, 12")
    I(f"v_add_u32 v{vTmp}, s{s0_}, v{vOffV}")
    for k in range(4):
        I(f"ds_write_b128 v{vTmp}, v[{vQL+4*k}:{vQL+4*k+3}] offset:{LDS_QX + k*1024}")
    I("s_waitcnt lgkmcnt(0)")
    I("s_barrier")
    vQR = vG + 0
    for br in range(2):
        for w in range(4):
            for k in range(2):
                d = vQR + (w*2+k)*4
                I(f"ds_read_b128 v[{d}:{d+3}], v{vOffV} offset:{LDS_QX + w*4096 + (br*2+k)*1024}")
        I("s_waitcnt lgkmcnt(0)")
        for e in range(8):
            I(f"v_add_f32 v{vQR+e}, v{vQR+e}, v{vQR+8+e}")
            I(f"v_add_f32 v{vQR+16+e}, v{vQR+16+e}, v{vQR+24+e}")
        for e in range(8): I(f"v_add_f32 v{vQR+e}, v{vQR+e}, v{vQR+16+e}")
        dq = vQ if br == 0 else vQB
        for r in range(4): I(f"v_cvt_pk_bf16_f32 v{dq+r}, v{vQR+2*r}, v{vQR+2*r+1}")
    def init_state():
        for k in range(8): I(f"v_mov_b32 v{vAcc+k}, 0")
        I(f"v_mov_b32 v{vM}, 0xff800000")
        I(f"v_mov_b32 v{vMC}, 0xff800000")
        I(f"v_mov_b32 v{vLs}, 0")
    init_state()
    vPo, vPm, vOp, vWo = 36, 37, 38, 39
    I(f"v_and_b32 v{vTmp}, 3, v{vL}")
    I(f"v_bfe_u32 v{vTmp2}, v{vL}, 2, 2")
    I(f"v_lshlrev_b32 v{vPo}, 13, v{vTmp}")
    I(f"v_lshl_add_u32 v{vPo}, v{vTmp2}, 11, v{vPo}")
    I(f"v_lshlrev_b32 v{vPm}, 7, v{vTmp}")
    I(f"v_lshl_add_u32 v{vPm}, v{vTmp2}, 5, v{vPm}")
    I(f"v_lshrrev_b32 v{vTmp}, 4, v{vL}")
    I(f"v_lshl_add_u32 v{vPo}, v{vTmp}, 4, v{vPo}")
    I(f"v_lshlrev_b32 v{vWo}, 12, v{vTmp}")
    I(f"v_and_b32 v{vTmp2}, 15, v{vL}")
    I(f"v_lshl_add_u32 v{vWo}, v{vTmp2}, 4, v{vWo}")
    I(f"s_lshr_b32 s{s0_}, s2, 5")
    I(f"s_bfe_u32 s{s1_}, s2, 0x20003")
    I(f"s_bfe_u32 s{s2_}, s2, 0x10002")
    I(f"s_lshl_b32 s{s3_}, s{s0_}, 16")
    I(f"s_lshl_b32 s{s4_}, s{s1_}, 9"); I(f"s_add_u32 s{s3_}, s{s3_}, s{s4_}")
    I(f"s_lshl_b32 s{s4_}, s{s2_}, 8"); I(f"s_add_u32 s{s3_}, s{s3_}, s{s4_}")
    I(f"s_lshl_b32 s{s4_}, s{sWave}, 6"); I(f"s_add_u32 s{s3_}, s{s3_}, s{s4_}")
    I(f"s_add_u32 s{sO[0]}, s{s3_}, {WS_PO}")
    I(f"s_lshl_b32 s{s4_}, s{s0_}, 10")
    I(f"s_lshl_b32 s{s5_}, s{s1_}, 3"); I(f"s_add_u32 s{s4_}, s{s4_}, s{s5_}")
    I(f"s_add_u32 s{sO[1]}, s{s4_}, {WS_PML}")
    I(f"v_lshrrev_b32 v{vOp}, 5, v0")
    I(f"v_lshlrev_b32 v{vOp}, 9, v{vOp}")
    I(f"v_and_b32 v{vTmp}, 31, v0")
    I(f"v_lshl_add_u32 v{vOp}, v{vTmp}, 4, v{vOp}")
    I(f"s_lshr_b32 s{s0_}, s2, 2")
    I(f"s_lshl_b32 s{s1_}, s{sJ}, 6")
    I(f"s_add_u32 s{s1_}, s{s0_}, s{s1_}")
    I(f"s_lshl_b32 s{s1_}, s{s1_}, 12")
    I(f"s_add_u32 s{sO[2]}, s{s1_}, {WS_OP}")
    I(f"s_lshl_b32 s{s0_}, s{s0_}, 2"); I(f"s_add_u32 s{s0_}, s{s0_}, s{sWave}")
    I(f"s_lshl_b32 s{s0_}, s{s0_}, 14")
    I(f"s_lshl_b32 s{s1_}, s{sJ}, 8"); I(f"s_add_u32 s{sWoOff}, s{s0_}, s{s1_}")
    srd(sT, sAwo, 0x400000)
    srd(sT2, sBwo, 0x400000)
    I(f"s_lshl_b32 s{sRdyP}, s{sG}, 8"); I(f"s_add_u32 s{sRdyP}, s{sRdyP}, {WS_CNT + 0x4000}")
    I(f"s_lshr_b32 s{sRdyC}, s2, 5"); I(f"s_lshl_b32 s{sRdyC}, s{sRdyC}, 8"); I(f"s_add_u32 s{sRdyC}, s{sRdyC}, {WS_CNT + 0x4000}")
    I(f"s_mov_b32 s{sI}, 0")
    I(f"s_mov_b32 s{sPre}, 0")
    I(f"s_mov_b32 s{sEnd}, -1")
    stamp(2)
    late_steps = {1: 0} if R == 4 else {1: 0, 4: 1}
    A(".p2align 3")
    A("L_round:")
    for s in range(R):
        I(f"s_cmp_lt_u32 s{sI}, s{sLand}")
        I(f"s_cbranch_scc1 L_nowait{s}")
        I(f"s_sub_u32 s{s0_}, s{sIss}, s{sI}")
        I(f"s_cmp_eq_u32 s{s0_}, {W}")
        I(f"s_cbranch_scc0 L_wait{s}")
        I(f"s_waitcnt vmcnt({8*(W-1)})")
        A(f"L_nowait{s}:")
        if cfg.stamps and cfg.diag == 5 and s < 4:
            I(f"s_cmp_eq_u32 s{sI}, {cfg.iA + s}")
            I(f"s_cbranch_scc0 L_nost{s}")
            I(f"s_memrealtime s[{sStamp+2*(6+s)}:{sStamp+2*(6+s)+1}]")
            A(f"L_nost{s}:")
        I(f"s_add_u32 s{s0_}, s{sI}, {W}")
        I(f"s_add_u32 s{sI}, s{sI}, 1")
        if s in late_steps:
            I(f"s_cmp_eq_u32 s{sLate}, 1")
            I(f"s_cbranch_scc1 L_late{s}")
        if s == 0 and R == 8:
            I(f"s_cmp_gt_u32 s{sLate}, 1")
            I(f"s_cbranch_scc1 L_br0")
        I(f"s_cmp_eq_u32 s{sIss}, s{s0_}")
        I(f"s_cbranch_scc0 L_noiss{s}")
        I(f"s_cmp_ge_u32 s{sIss}, {NST-1}")
        I(f"s_cbranch_scc1 L_dyn{s}")
        A(f"L_loads{s}:")
        issue_tile((s+W) % R)
        A(f"L_noiss{s}:")
        for t in range(4):
            a = s*32 + 4*t
            I(f"v_mfma_f32_16x16x32_bf16 v[{vD+4*t}:{vD+4*t+3}], a[{a}:{a+3}], v[{vQ}:{vQ+3}], 0")
        I("s_nop 4")
        for t in range(4):
            hbs = [(t+1) & 3, (t+2) & 3, (t+3) & 3]
            n = [(4*(t-hb)) % 16 for hb in hbs]
            I(f"v_add_f32_dpp v{vTmp}, v{vD+4*t+hbs[0]}, v{vD+4*t+t} row_ror:{n[0]} row_mask:0xf bank_mask:0xf")
            I(f"v_add_f32_dpp v{vTmp}, v{vD+4*t+hbs[1]}, v{vTmp} row_ror:{n[1]} row_mask:0xf bank_mask:0xf")
            I(f"v_add_f32_dpp v{vS}, v{vD+4*t+hbs[2]}, v{vTmp} row_ror:{n[2]} row_mask:0xf bank_mask:{hex(1<<t)}")
        I(f"v_cmp_gt_f32 vcc, v{vS}, v{vM}")
        I(f"s_cbranch_vccnz L_rare{s}")
        A(f"L_cont{s}:")
        I(f"v_fma_f32 v{vP}, v{vS}, s{sC}, -v{vMC}")
        I(f"v_exp_f32 v{vP}, v{vP}")
        I("s_nop 0")
        I(f"v_cvt_pk_bf16_f32 v{vPlo}, v{vP}, 0")
        I(f"v_cvt_pk_bf16_f32 v{vPhi}, 0, v{vP}")
        I(f"v_add_f32 v{vLs}, v{vLs}, v{vP}")
        I("s_nop 0")
        for t in range(4):
            for beta in range(4):
                src = vPlo if beta % 2 == 0 else vPhi
                n = (4*(beta - t)) % 16
                ctl = f"row_ror:{n}" if n else "quad_perm:[0,1,2,3]"
                I(f"v_mov_b32_dpp v{vBp+2*t+(beta>>1)}, v{src} {ctl} row_mask:0xf bank_mask:{hex(1<<beta)}")
        for t in range(4):
            for h in range(2):
                a = s*32 + 16 + 4*t + 2*h
                I(f"v_mfma_f32_16x16x16_bf16 v[{vAcc+4*h}:{vAcc+4*h+3}], a[{a}:{a+1}], v[{vBp+2*t}:{vBp+2*t+1}], v[{vAcc+4*h}:{vAcc+4*h+3}]")
        I(f"s_cmp_eq_u32 s{sI}, s{sEnd}")
        I("s_cbranch_scc1 L_exit")
    I(f"s_mov_b32 s{sLate}, 0")
    I(f"s_cmp_eq_u32 s{sI}, 8")
    I("s_cbranch_scc0 L_round")

    def write_partial(pr, ml, lvl=None, barrier=True):
        I("s_nop 7")
        allsum(vLs)
        I(f"s_mul_i32 s{s0_}, s{sWave}, {4*ROW}")
        I(f"v_add_u32 v{vTmp}, s{s0_}, v{vLdsW}")
        for h in range(2):
            for r in range(4):
                I(f"ds_write_b32 v{vTmp}, v{vAcc+4*h+r} offset:{pr + (8*r+4*h)*4}")
        I(f"s_lshl_b32 s{s0_}, s{sWave}, 5")
        I(f"v_lshl_add_u32 v{vTmp}, v{vL}, 3, s{s0_}")
        I(f"v_mov_b32 v{vG}, v{vM}"); I(f"v_mov_b32 v{vG+1}, v{vLs}")
        I("s_mov_b64 exec, 0xf")
        I(f"ds_write_b64 v{vTmp}, v[{vG}:{vG+1}] offset:{ml}")
        I("s_mov_b64 exec, -1")
        I("s_waitcnt lgkmcnt(0)")
        if lvl is not None: stamp(lvl)
        if barrier: I("s_barrier")
        if lvl is not None: stamp(lvl)
    def combine_pass(br, pr, ml, vRdX, hd_src, hoff):
        vA = vG + 8; vMl = vG + 24; vHd = vG + 2; vSo = vG + 3; vSm = vG + 4; vMx = vG + 32; vLt = vG + 33
        I(f"v_lshrrev_b32 v{vHd}, 5, v{hd_src}")
        if hoff: I(f"v_add_u32 v{vHd}, {hoff}, v{vHd}")
        I(f"v_lshlrev_b32 v{vSm}, 3, v{vHd}")
        for w in range(4): I(f"ds_read_b64 v[{vMl+2*w}:{vMl+2*w+1}], v{vSm} offset:{ml + w*32}")
        for w in range(4): I(f"ds_read_b128 v[{vA+4*w}:{vA+4*w+3}], v{vRdX} offset:{pr + hoff*ROW + w*4*ROW}")
        I(f"s_lshl_b32 s{s0_}, s{sG}, 3"); I(f"s_add_u32 s{s0_}, s{s0_}, s{sB}")
        I(f"s_lshl_b32 s{s0_}, s{s0_}, 2"); I(f"s_add_u32 s{s0_}, s{s0_}, s{sJa}")
        I(f"s_lshl_b32 s{s1_}, s{s0_}, 5"); I(f"s_add_u32 s{s1_}, s{s1_}, {WS_PML + br*8192}")
        I(f"s_lshl_b32 s{s0_}, s{s0_}, 11"); I(f"s_add_u32 s{s0_}, s{s0_}, {WS_PO + br*0x80000}")
        I(f"v_lshlrev_b32 v{vSo}, 9, v{vHd}")
        I(f"v_and_b32 v{vTmp}, 31, v{hd_src}")
        I(f"v_lshl_add_u32 v{vSo}, v{vTmp}, 4, v{vSo}")
        I("s_waitcnt lgkmcnt(4)")
        I(f"v_max_f32 v{vMx}, v{vMl}, v{vMl+2}")
        I(f"v_max3_f32 v{vMx}, v{vMx}, v{vMl+4}, v{vMl+6}")
        for w in range(4): I(f"v_sub_f32 v{vMl+2*w}, v{vMl+2*w}, v{vMx}")
        for w in range(4): I(f"v_mul_f32 v{vMl+2*w}, s{sC}, v{vMl+2*w}")
        for w in range(4): I(f"v_exp_f32 v{vMl+2*w}, v{vMl+2*w}")
        I(f"v_mul_f32 v{vMx}, s{sC}, v{vMx}")
        I(f"v_mul_f32 v{vLt}, v{vMl}, v{vMl+1}")
        for w in range(1, 4): I(f"v_fmac_f32 v{vLt}, v{vMl+2*w}, v{vMl+2*w+1}")
        I("s_waitcnt lgkmcnt(0)")
        for k in range(4): I(f"v_mul_f32 v{vA+k}, v{vMl}, v{vA+k}")
        for w in range(1, 4):
            for k in range(4): I(f"v_fmac_f32 v{vA+k}, v{vMl+2*w}, v{vA+4*w+k}")
        for k in range(4): I(f"v_bfi_b32 v{vA+k}, s{sFF}, v{vTag}, v{vA+k}")
        I(f"buffer_store_dwordx4 v[{vA}:{vA+3}], v{vSo}, s[{sW}:{sW+3}], s{s0_} offen sc1")
        I(f"v_bfi_b32 v{vMx}, s{sFF}, v{vTag}, v{vMx}")
        I(f"v_bfi_b32 v{vLt}, s{sFF}, v{vTag}, v{vLt}")
        I(f"v_cmp_eq_u32 vcc, 0, v{vTmp}")
        I(f"s_and_saveexec_b64 s[{s2_}:{s3_}], vcc")
        I(f"buffer_store_dwordx2 v[{vMx}:{vMx+1}], v{vSm}, s[{sW}:{sW+3}], s{s1_} offen sc1")
        I("s_mov_b64 exec, -1")
    def combine_publish(br, pr, ml, skip, rdy=False):
        I(f"s_cmp_ge_u32 s{sWave}, 2")
        I(f"s_cbranch_scc1 {skip}")
        combine_pass(br, pr, ml, vRd, 0, 0)
        if rdy:
            I(f"v_mov_b32 v{vTmp2}, 1")
            I("s_mov_b64 exec, 1")
            I(f"buffer_atomic_add v{vTmp2}, v{vZ}, s[{sW}:{sW+3}], s{sRdyP} offen sc1")
            I("s_mov_b64 exec, -1")
        A(f"{skip}:")
    vRdL = vG + 40
    def lane_rd():
        I(f"v_lshrrev_b32 v{vRdL}, 5, v{vL}")
        I(f"v_mul_u32_u24 v{vRdL}, 196, v{vRdL}")
        I(f"v_bfe_u32 v{vTmp}, v{vL}, 3, 2")
        I(f"v_mad_u32_u24 v{vRdL}, v{vTmp}, 48, v{vRdL}")
        I(f"v_and_b32 v{vTmp}, 7, v{vL}")
        I(f"v_lshl_add_u32 v{vRdL}, v{vTmp}, 2, v{vRdL}")
        I(f"v_lshlrev_b32 v{vRdL}, 2, v{vRdL}")

    au = [0]
    def ahead_tiles():
        for k in range(1, cfg.ahead+1):
            u = au[0]; au[0] += 1
            I(f"s_add_u32 s{s4_}, s{sI}, {k}")
            I(f"s_cmp_eq_u32 s{sIss}, s{s4_}")
            I(f"s_cbranch_scc0 L_ah{u}")
            issue_tile(k)
            A(f"L_ah{u}:")
    ahead_tiles()
    if cfg.swbar:
        write_partial(LDS_PRA, LDS_MLA)
        combine_publish(0, LDS_PRA, LDS_MLA, "L_pubA_done")
    else:
        write_partial(LDS_PRA, LDS_MLA, barrier=False)
        arrive(0, "L_pubA_done")
        lane_rd()
        combine_pass(0, LDS_PRA, LDS_MLA, vRdL, vL, 0)
        I("s_nop 0")
        combine_pass(0, LDS_PRA, LDS_MLA, vRdL, vL, 2)
        A("L_pubA_done:")
    init_state()
    for k in range(4): I(f"v_mov_b32 v{vQ+k}, v{vQB+k}")
    I("s_branch L_round")

    vWoA = vG + 44
    rO = {0: list(range(vG+40, vG+44)) + list(range(40, 44)), 1: list(range(vG+8, vG+16))}
    rN = {0: list(range(vQB, vQB+4)), 1: list(range(vG+16, vG+20))}
    def part_loads(br):
        O, N = rO[br], rN[br]
        def f():
            I(f"s_add_u32 s{s4_}, s{sO[0]}, {br*0x80000}")
            I(f"s_add_u32 s{s5_}, s{sO[0]}, {br*0x80000 + 4*8192}")
            I(f"s_add_u32 s{sTl}, s{sO[1]}, {br*8192}")
            I(f"buffer_load_dwordx2 v[{N[0]}:{N[1]}], v{vPm}, s[{sW}:{sW+3}], s{sTl} offen sc1")
            I(f"buffer_load_dwordx2 v[{N[2]}:{N[3]}], v{vPm}, s[{sW}:{sW+3}], s{sTl} offen offset:512 sc1")
            I(f"buffer_load_dwordx4 v[{O[0]}:{O[3]}], v{vPo}, s[{sW}:{sW+3}], s{s4_} offen sc1")
            I(f"buffer_load_dwordx4 v[{O[4]}:{O[7]}], v{vPo}, s[{sW}:{sW+3}], s{s5_} offen sc1")
        return f
    def wo_loads(br):
        for t in range(4):
            dst = f"a[{4*t}:{4*t+3}]" if br else f"v[{vWoA+4*t}:{vWoA+4*t+3}]"
            I(f"buffer_load_dwordx4 {dst}, v{vWo}, s[{(sT2 if br else sT)}:{(sT2 if br else sT)+3}], s{sWoOff} offen offset:{t*1024} {pol(cfg.fWoB if br else cfg.fWoA)}")
    A("L_exit:")
    stamp(4)
    vOB = vG + 24
    vOA = vD
    if cfg.hint:
        I(f"v_mov_b32 v{vClaim}, 0")
        I("s_mov_b64 exec, 1")
        I(f"buffer_atomic_add v{vClaim}, v{vZ}, s[{sW}:{sW+3}], s{sRdyC} offen sc0 sc1")
        I("s_mov_b64 exec, -1")
    if not cfg.apre:
        wo_loads(0)
    if cfg.woearly: wo_loads(1)
    write_partial(LDS_PRB, LDS_MLB, 3)
    combine_publish(1, LDS_PRB, LDS_MLB, "L_pubB_done", rdy=cfg.hint)
    stamp(4)
    if cfg.apre:
        assert cfg.woearly and not cfg.bearly
        I(f"s_cmp_ge_u32 s{sWave}, 2")
        I("s_cbranch_scc1 L_wA4")
        I(f"s_waitcnt vmcnt({7 if cfg.hint else 6})")
        I("s_branch L_wAd")
        A("L_wA4:")
        I("s_waitcnt vmcnt(4)")
        A("L_wAd:")
        if cfg.hint:
            I(f"v_readfirstlane_b32 s{sEarly}, v{vClaim}")
            I("s_nop 1")
            I(f"s_cmp_ge_u32 s{sEarly}, {cfg.hintN}")
            I(f"s_cselect_b32 s{sEarly}, 1, 0")
            I("s_cbranch_scc0 L_noearly")
            part_loads(1)()
            A("L_noearly:")
    else:
        part_loads(0)()
        I("s_waitcnt vmcnt(0)")
    def project(br, orb):
        O, N = rO[br], rN[br]
        poll_loop(f"h1{br}", part_loads(br), O + N, cfg.masked)
        if br == 1: stamp(4)
        if br == 1 and cfg.stamps and cfg.diag == 3: I(f"s_sub_u32 s{sLand0}, {hex(cfg.TO)}, s{sTo}")
        for r in N + O: I(f"v_and_b32 v{r}, s{sMaskHi}, v{r}")
        mx = [vTmp, vTmp2]
        Nm = [N[0], N[2]]; Nl = [N[1], N[3]]
        for m in range(2): I(f"v_max_f32_dpp v{mx[m]}, v{Nm[m]}, v{Nm[m]} row_ror:4 row_mask:0xf bank_mask:0xf")
        I("s_nop 0")
        for m in range(2): I(f"v_max_f32_dpp v{mx[m]}, v{mx[m]}, v{mx[m]} row_ror:8 row_mask:0xf bank_mask:0xf")
        for m in range(2): I(f"v_sub_f32 v{Nm[m]}, v{Nm[m]}, v{mx[m]}")
        for m in range(2): I(f"v_exp_f32 v{Nm[m]}, v{Nm[m]}")
        I("s_nop 0")
        for m in range(2): I(f"v_mul_f32 v{Nl[m]}, v{Nm[m]}, v{Nl[m]}")
        I("s_nop 0")
        for m in range(2): I(f"v_add_f32_dpp v{Nl[m]}, v{Nl[m]}, v{Nl[m]} row_ror:4 row_mask:0xf bank_mask:0xf")
        I("s_nop 0")
        for m in range(2): I(f"v_add_f32_dpp v{Nl[m]}, v{Nl[m]}, v{Nl[m]} row_ror:8 row_mask:0xf bank_mask:0xf")
        for m in range(2): I(f"v_rcp_f32 v{Nl[m]}, v{Nl[m]}")
        I("s_nop 0")
        for m in range(2): I(f"v_mul_f32 v{Nm[m]}, v{Nm[m]}, v{Nl[m]}")
        for m in range(2):
            for k in range(4): I(f"v_mul_f32 v{O[4*m+k]}, v{Nm[m]}, v{O[4*m+k]}")
        for sh in (4, 8):
            for k in range(8): I(f"v_add_f32_dpp v{O[k]}, v{O[k]}, v{O[k]} row_ror:{sh} row_mask:0xf bank_mask:0xf")
        for k in range(8): I(f"v_cvt_pk_bf16_f32 v{O[k]}, v{O[k]}, v{O[k]}")
        for m in range(2):
            for t in range(4):
                I(f"v_and_b32 v{vOB+8*m+2*t}, v{O[4*m+t]}, v{vMask0}")
                I(f"v_and_b32 v{vOB+8*m+2*t+1}, v{O[4*m+t]}, v{vMask1}")
        I("s_nop 0")
        for t in range(4):
            for m in range(2):
                for h in range(2):
                    d = vOA + (m*2+h)*4
                    src = f"a[{4*t+2*h}:{4*t+2*h+1}]" if br else f"v[{vWoA+4*t+2*h}:{vWoA+4*t+2*h+1}]"
                    c = "0" if t == 0 else f"v[{d}:{d+3}]"
                    I(f"v_mfma_f32_16x16x16_bf16 v[{d}:{d+3}], {src}, v[{vOB+8*m+2*t}:{vOB+8*m+2*t+1}], {c}")
        I(f"s_mul_i32 s{s0_}, s{sWave}, {8*ROW}")
        I(f"v_add_u32 v{vTmp2}, s{s0_}, v{vLdsW}")
        I(f"s_add_u32 s{s1_}, s{sO[2]}, {br*4*64*8*512}")
        I("s_nop 5")
        for m in range(2):
            for h in range(2):
                for r in range(4):
                    I(f"ds_write_b32 v{vTmp2}, v{vOA+(m*2+h)*4+r} offset:{orb + m*4*ROW + (8*r+4*h)*4}")
        I("s_waitcnt lgkmcnt(0)")
        I("s_barrier")
        vA = vD
        for w in range(4): I(f"ds_read_b128 v[{vA+4*w}:{vA+4*w+3}], v{vRd} offset:{orb + w*8*ROW}")
        I("s_waitcnt lgkmcnt(0)")
        for k in range(4):
            I(f"v_add_f32 v{vA+k}, v{vA+k}, v{vA+4+k}")
            I(f"v_add_f32 v{vA+8+k}, v{vA+8+k}, v{vA+12+k}")
        for k in range(4): I(f"v_add_f32 v{vA+k}, v{vA+k}, v{vA+8+k}")
        for k in range(4): I(f"v_bfi_b32 v{vA+k}, s{sFF}, v{vTag}, v{vA+k}")
        I(f"buffer_store_dwordx4 v[{vA}:{vA+3}], v{vOp}, s[{sW}:{sW+3}], s{s1_} offen sc1")
    project(0, LDS_ORA)
    if cfg.bearly:
        I("s_waitcnt vmcnt(1)")
    elif cfg.hint:
        I(f"s_cmp_eq_u32 s{sEarly}, 1")
        I("s_cbranch_scc1 L_early")
        part_loads(1)()
        I("s_waitcnt vmcnt(0)")
        A("L_early:")
        I("s_waitcnt vmcnt(1)")
    else:
        part_loads(1)()
        I("s_waitcnt vmcnt(0)")
    if cfg.diag == 3: stamp(3); stamp(3)
    project(1, LDS_ORB2)
    stamp(4)
    def final_reduce(tag, ahead=None):
        I(f"s_lshr_b32 s{s0_}, s2, 7")
        I(f"s_bfe_u32 s{s1_}, s2, 0x30004")
        I(f"s_bfe_u32 s{s2_}, s2, 0x20002")
        I(f"s_lshl_b32 s{s3_}, s{s0_}, 2"); I(f"s_add_u32 s{s3_}, s{s3_}, s{s2_}")
        I(f"s_lshl_b32 s{s3_}, s{s3_}, 18")
        I(f"s_lshl_b32 s{s4_}, s{s1_}, 9"); I(f"s_add_u32 s{s3_}, s{s3_}, s{s4_}")
        I(f"s_lshl_b32 s{s4_}, s{sJ}, 7"); I(f"s_add_u32 s{s3_}, s{s3_}, s{s4_}")
        I(f"s_add_u32 s{s3_}, s{s3_}, {WS_OP}")
        I(f"v_lshrrev_b32 v{vG}, 3, v{vL}")
        I(f"v_lshlrev_b32 v{vG}, 12, v{vG}")
        I(f"v_and_b32 v{vG+1}, 7, v{vL}")
        I(f"v_lshl_add_u32 v{vG}, v{vG+1}, 4, v{vG}")
        vF = vG + 8
        I(f"s_lshl_b32 s{s4_}, s{s1_}, 11")
        I(f"s_lshl_b32 s{s5_}, s{s0_}, 10"); I(f"s_add_u32 s{s4_}, s{s4_}, s{s5_}")
        I(f"s_lshl_b32 s{s5_}, s{s2_}, 8"); I(f"s_add_u32 s{s4_}, s{s4_}, s{s5_}")
        I(f"s_lshl_b32 s{s5_}, s{sJ}, 6"); I(f"s_add_u32 s{s5_}, s{s4_}, s{s5_}")
        srd(sT, sOut, 16384)
        I(f"v_lshlrev_b32 v{vG+1}, 3, v{vG+1}")
        def loads():
            I(f"s_mov_b32 s{s4_}, s{s3_}")
            for i in range(8):
                I(f"buffer_load_dwordx4 v[{vF+4*i}:{vF+4*i+3}], v{vG}, s[{sW}:{sW+3}], s{s4_} offen sc1")
                if i < 7: I(f"s_add_u32 s{s4_}, s{s4_}, 32768")
        if ahead is None and cfg.probe:
            I(f"v_lshlrev_b32 v{vG+2}, 12, v{vL}")
            def probe():
                I(f"buffer_load_dword v{vG+3}, v{vG+2}, s[{sW}:{sW+3}], s{s3_} offen sc1")
            probe()
            I("s_waitcnt vmcnt(0)")
            poll_loop(f"pr{tag}", probe, [vG+3], True)
        loads()
        if ahead is not None:
            ahead()
        else:
            I("s_waitcnt vmcnt(0)")
        if not cfg.h2mask:
            poll_loop(f"h2{tag}", loads, list(range(vF, vF+32)), False)
        else:
            mk = [4 + 2*i for i in range(8)]
            for i in range(8): I(f"s_mov_b64 s[{mk[i]}:{mk[i]+1}], -1")
            I(f"s_mov_b32 s{sTo}, {hex(cfg.TO)}")
            A(f"L_h2{tag}_chk:")
            for i in range(8):
                I(f"s_mov_b64 exec, s[{mk[i]}:{mk[i]+1}]")
                I(f"s_cbranch_execz L_h2{tag}_c{i}")
                tagbad(list(range(vF+4*i, vF+4*i+4)))
                I("s_nop 0")
                I(f"s_mov_b64 s[{mk[i]}:{mk[i]+1}], vcc")
                A(f"L_h2{tag}_c{i}:")
            I("s_mov_b64 exec, -1")
            I(f"s_or_b64 vcc, s[{mk[0]}:{mk[0]+1}], s[{mk[1]}:{mk[1]+1}]")
            for i in range(2, 8): I(f"s_or_b64 vcc, vcc, s[{mk[i]}:{mk[i]+1}]")
            I(f"s_cbranch_scc0 L_h2{tag}_ok")
            I(f"s_sub_u32 s{sTo}, s{sTo}, 1")
            I(f"s_cmp_eq_u32 s{sTo}, 0")
            I(f"s_cbranch_scc1 L_h2{tag}_ok")
            I(f"s_mov_b32 s{s4_}, s{s3_}")
            for i in range(8):
                I(f"s_mov_b64 exec, s[{mk[i]}:{mk[i]+1}]")
                I(f"s_cbranch_execz L_h2{tag}_l{i}")
                I(f"buffer_load_dwordx4 v[{vF+4*i}:{vF+4*i+3}], v{vG}, s[{sW}:{sW+3}], s{s4_} offen sc1")
                A(f"L_h2{tag}_l{i}:")
                if i < 7: I(f"s_add_u32 s{s4_}, s{s4_}, 32768")
            I("s_mov_b64 exec, -1")
            I("s_waitcnt vmcnt(0)")
            I(f"s_branch L_h2{tag}_chk")
            A(f"L_h2{tag}_ok:")
        for r in range(vF, vF+32): I(f"v_and_b32 v{r}, s{sMaskHi}, v{r}")
        for step in (16, 8, 4):
            for k in range(step): I(f"v_add_f32 v{vF+k}, v{vF+k}, v{vF+step+k}")
        I("s_nop 0")
        for k in range(4): I(f"v_add_f32_dpp v{vF+k}, v{vF+k}, v{vF+k} row_ror:8 row_mask:0xf bank_mask:0xf")
        for k in range(4): I(f"v_mov_b32 v{vF+4+k}, v{vF+k}")
        I("s_nop 1")
        for k in range(4): I(f"v_permlane16_swap_b32 v{vF+k}, v{vF+4+k}")
        I("s_nop 1")
        for k in range(4): I(f"v_add_f32 v{vF+k}, v{vF+k}, v{vF+4+k}")
        for k in range(4): I(f"v_mov_b32 v{vF+4+k}, v{vF+k}")
        I("s_nop 1")
        for k in range(4): I(f"v_permlane32_swap_b32 v{vF+k}, v{vF+4+k}")
        I("s_nop 1")
        for k in range(4): I(f"v_add_f32 v{vF+k}, v{vF+k}, v{vF+4+k}")
        I(f"v_cvt_pk_bf16_f32 v{vF+8}, v{vF}, v{vF+1}")
        I(f"v_cvt_pk_bf16_f32 v{vF+9}, v{vF+2}, v{vF+3}")
        I("s_mov_b64 exec, 0xff")
        I(f"buffer_store_dwordx2 v[{vF+8}:{vF+9}], v{vG+1}, s[{sT}:{sT+3}], s{s5_} offen")
        I("s_mov_b64 exec, -1")

    I(f"s_cmp_lg_u32 s{sWave}, 0")
    I("s_cbranch_scc1 L_fin")
    final_reduce("E")
    I("s_cmp_lg_u32 s2, 0")
    I("s_cbranch_scc1 L_fin")
    I("s_mov_b64 exec, 1")
    I(f"buffer_store_dword v{vTag}, v{vZ}, s[{sW}:{sW+3}], 0 offen offset:{WS_EPOCH} sc1")
    A("L_fin:")
    if cfg.stamps:
        I("s_mov_b64 exec, 1")
        I(f"s_memrealtime s[100:101]")
        I("s_waitcnt lgkmcnt(0)")
        I(f"s_lshl_b32 s{s0_}, s2, 2"); I(f"s_add_u32 s{s0_}, s{s0_}, s{sWave}"); I(f"s_lshl_b32 s{s0_}, s{s0_}, 7")
        I(f"s_add_u32 s{s0_}, s{s0_}, {WS_STAMP}")
        for q in range(5):
            for k in range(4): I(f"v_mov_b32 v{vG+4*q+k}, s{sStamp+4*q+k}")
            I(f"buffer_store_dwordx4 v[{vG+4*q}:{vG+4*q+3}], v{vZ}, s[{sW}:{sW+3}], s{s0_} offen offset:{16*q}")
        I(f"s_getreg_b32 s{s1_}, hwreg(HW_REG_XCC_ID)")
        I(f"s_lshl_b32 s{s2_}, s{sEnd}, 8"); I(f"s_or_b32 s{sLand0}, s{sLand0}, s{s2_}")
        I(f"v_mov_b32 v{vG+20}, s100"); I(f"v_mov_b32 v{vG+21}, s101"); I(f"v_mov_b32 v{vG+22}, s{s1_}"); I(f"v_mov_b32 v{vG+23}, s{sLand0}")
        I(f"buffer_store_dwordx4 v[{vG+20}:{vG+23}], v{vZ}, s[{sW}:{sW+3}], s{s0_} offen offset:80")
    I("s_endpgm")
    for s in range(R):
        A(f"L_rare{s}:")
        I(f"v_mov_b32 v{vTmp}, v{vS}")
        allsum(vTmp, "max")
        I(f"v_max_f32 v{vTmp}, v{vTmp}, v{vM}")
        I(f"v_sub_f32 v{vTmp2}, v{vM}, v{vTmp}")
        I(f"v_mul_f32 v{vTmp2}, s{sC}, v{vTmp2}")
        I(f"v_exp_f32 v{vTmp2}, v{vTmp2}")
        I(f"v_mov_b32 v{vM}, v{vTmp}")
        I(f"v_mul_f32 v{vMC}, s{sC}, v{vTmp}")
        I(f"v_mul_f32 v{vLs}, v{vLs}, v{vTmp2}")
        for k in range(8): I(f"v_mul_f32 v{vAcc+k}, v{vAcc+k}, v{vTmp2}")
        I(f"s_branch L_cont{s}")
    if R == 8:
        A("L_br0:")
        for slot in (5, 6, 7):
            I(f"s_cmp_eq_u32 s{sLate}, {slot+8}")
            I(f"s_cbranch_scc1 L_br0_{slot}")
        I("s_branch L_noiss0")
        for slot in (5, 6, 7):
            A(f"L_br0_{slot}:")
            I(f"s_mov_b32 s{sLate}, 0")
            issue_tile(slot, "A")
            I("s_branch L_noiss0")
    for s, slot in late_steps.items():
        A(f"L_late{s}:")
        issue_tile(slot, "A" if R == 4 else None)
        I(f"s_branch L_noiss{s}")
    for s in range(R):
        A(f"L_wait{s}:")
        for d in (1, 2, 3):
            if d == W: continue
            I(f"s_cmp_eq_u32 s{s0_}, {d}")
            I(f"s_cbranch_scc1 L_wait{s}_{d}")
        I("s_waitcnt vmcnt(24)")
        I(f"s_branch L_nowait{s}")
        for d in (1, 2, 3):
            if d == W: continue
            A(f"L_wait{s}_{d}:")
            I(f"s_waitcnt vmcnt({8*(d-1)})")
            I(f"s_branch L_nowait{s}")
    for s in range(R):
        A(f"L_dyn{s}:")
        I(f"s_cmp_lt_u32 s{sIss}, {NST}")
        I(f"s_cbranch_scc1 L_claim{s}")
        I(f"s_cmp_lg_u32 s{sEnd}, -1")
        I(f"s_cbranch_scc1 L_noiss{s}")
        I(f"v_readfirstlane_b32 s{s1_}, v{vClaim}")
        I("s_nop 1")
        I(f"s_add_u32 s{s1_}, s{s1_}, {16*SB}")
        if cfg.apre:
            I(f"s_cmp_lt_u32 s{s1_}, {512 - cfg.preN}")
            I(f"s_cbranch_scc1 L_got{s}")
            I(f"s_cmp_lg_u32 s{sPre}, 0")
            I(f"s_cbranch_scc1 L_nopre{s}")
            I(f"s_mov_b32 s{sPre}, 1")
            wo_loads(0)
            part_loads(0)()
            A(f"L_nopre{s}:")
        I(f"s_cmp_lt_u32 s{s1_}, 512")
        I(f"s_cbranch_scc1 L_got{s}")
        I(f"s_mov_b32 s{sEnd}, s{sIss}")
        I(f"s_branch L_noiss{s}")
        A(f"L_got{s}:")
        I(f"s_lshl_b32 s{s1_}, s{s1_}, 12")
        I(f"s_add_u32 s{sOff}, s{sPair}, s{s1_}")
        A(f"L_claim{s}:")
        I(f"v_mov_b32 v{vClaim}, 1")
        I("s_mov_b64 exec, 1")
        I(f"buffer_atomic_add v{vClaim}, v{vZ}, s[{sW}:{sW+3}], s{sCnt} offen sc0 sc1")
        I("s_mov_b64 exec, -1")
        I(f"s_branch L_loads{s}")
    for (u, slot, pa) in late_blocks:
        A(f"L_ia{u}:")
        tile_loads(slot, *pa)
        I(f"s_branch L_ib{u}")
    A("L_end:")
    I("s_endpgm")
    A('.section .rodata,"a"'); A(".p2align 6"); A(f".amdhsa_kernel {KNAME}")
    I(f".amdhsa_next_free_vgpr {NV + 32*R}")
    I(f".amdhsa_next_free_sgpr {NS}")
    I(f".amdhsa_accum_offset {NV}")
    I(".amdhsa_group_segment_fixed_size 0")
    I(".amdhsa_kernarg_size 104")
    I(".amdhsa_user_sgpr_count 2")
    I(".amdhsa_user_sgpr_kernarg_segment_ptr 1")
    I(".amdhsa_system_sgpr_workgroup_id_x 1")
    I(".amdhsa_float_denorm_mode_32 3")
    A(".end_amdhsa_kernel")
    return "\n".join(L) + "\n"

if __name__ == "__main__":
    out = sys.argv[1]
    cfg = Cfg()
    for kv in sys.argv[2:]:
        k, v = kv.split("=")
        cur = getattr(cfg, k)
        setattr(cfg, k, (v not in ("0", "False")) if isinstance(cur, bool) else (int(v, 0) if isinstance(cur, int) else v))
    open(out, "w").write(gen(cfg))
```

```python
import sys, math, struct
KNAME = "concat_heads__sliding_block_cached__gqa_block_cached__decode_kernel"

class Cfg:
    stamps = False
    fAk = "nt"; fAv = "nt"; fBk = "nt"; fBv = "nt"
    fWq = "nt"; fWoA = "nt"; fWoB = "nt"
    R = 4
    W = 1
    SB = 24
    TO = 0x40000
    diag = 0
    ahead = 1
    t0at = 'w2'
    t1at = 'post'
    qbdefer = True
    hint = False
    hintN = 60
    apre = True
    preN = 0
    bearly = False
    xmix = False
    woearly = True
    h2mask = False
    probe = False
    swbar = False
    masked = True
    wexcl = False

WS_EPOCH = 0
WS_CNT  = 0x008000
WS_QP   = 0x010000
WS_PO   = 0x110000
WS_PML  = 0x210000
WS_OP   = 0x220000
WS_STAMP = 0x500000
WS_SIZE = 0x600000

ROW = 196*4
LDS_QR  = 0
LDS_PRA = 0
LDS_MLA = 12544
LDS_PRB = 12800
LDS_MLB = 25344
LDS_ORB = 25600
LDS_ORB2 = 0
LDS_QX  = 25600
LDS_ORA = 25600
LDS_CNT = 25600 + 25088
LDS_SIZE = LDS_CNT + 16

C_SCALE = math.log2(math.e)/math.sqrt(128.0)
def f32bits(x): return struct.unpack("<I", struct.pack("<f", x))[0]
def pol(x): return "" if x == "def" else x.replace("+", " ")

def gen(cfg):
    L = []
    def A(s): L.append(s)
    def I(s): L.append("  " + s)
    R, W, SB = cfg.R, cfg.W, cfg.SB
    assert R in (4, 8) and W == 1
    NST = 8 + SB
    assert 8 + cfg.ahead < NST - 1

    sAx, sAk, sAv, sAwq, sAwo, sBx, sBk, sBv = 4, 6, 8, 10, 12, 14, 16, 18
    sBwq, sBwo, sOut, sDbg = 20, 22, 24, 26
    sWs = 28
    sPc = 30
    sK, sV, sW, sT, sT2 = 32, 36, 40, 44, 48
    sWave = 52; sOff = 53; sOffB = 54; sIss = 55; sLand = 56; sI = 57; sLate = 58
    sC = 59; sFF = 60; sMaskHi = 61
    s0_, s1_, s2_, s3_, s4_, s5_ = 62, 63, 64, 65, 66, 67
    sTo = 68; sStep = 69; sB, sG, sJ = 70, 71, 72
    sLand0 = 73; sPair = 74; sEnd = 75
    sStamp = 76
    sQ0, sQ1 = 100, 101
    sRdyP = 20; sRdyC = 21; sEarly = 22
    sTl = 27; sPre = 31; sJa = 30
    sCnt = 96; sO = [97, 98, 99]; sWoOff = 26
    NS = 102

    vL = 1; vOffK = 2; vOffV = 3; vLdsW = 4; vTag = 5
    vM, vMC, vLs, vRd, vClaim = 6, 7, 8, 9, 10
    vS, vP, vPlo, vPhi, vTmp, vTmp2 = 11, 12, 13, 14, 15, 16
    vMask0, vMask1 = 17, 18
    vZ = 19
    vQ = 20; vQB = 24
    vAcc = 28
    vPo, vPm, vOp, vWo = 36, 37, 38, 39
    vBp = 44
    vD = 52
    vG = 68
    NV = 128

    def srd(q, ptr, size):
        I(f"s_mov_b32 s{q}, s{ptr}")
        I(f"s_and_b32 s{q+1}, s{ptr+1}, 0xffff")
        I(f"s_mov_b32 s{q+2}, {hex(size)}")
        I(f"s_mov_b32 s{q+3}, 0x20000")
    stamp_n = [0]
    def stamp(level=0):
        if not cfg.stamps: return
        if cfg.diag == 0 and level not in (0, 2, 4): return
        if cfg.diag == 1 and level not in (1, 2): return
        if cfg.diag == 3 and level not in (3, 4): return
        if cfg.diag == 5 and level != 5: return
        if cfg.diag == 6: return
        n = stamp_n[0]; stamp_n[0] += 1
        assert n < 10
        I(f"s_memrealtime s[{sStamp+2*n}:{sStamp+2*n+1}]")
    def tagcheck(regs, okl):
        I(f"v_xor_b32 v{vTmp}, v{regs[0]}, v{vTag}")
        for r in regs[1:]:
            I(f"v_bitop3_b32 v{vTmp}, v{vTmp}, v{r}, v{vTag} bitop3:0xf6")
        I(f"v_and_b32 v{vTmp}, 0xff, v{vTmp}")
        I(f"v_cmp_ne_u32 vcc, 0, v{vTmp}")
        I(f"s_cbranch_vccz {okl}")
    def tagbad(regs, full=()):
        I(f"v_xor_b32 v{vTmp}, v{regs[0]}, v{vTag}")
        for r in regs[1:]:
            I(f"v_bitop3_b32 v{vTmp}, v{vTmp}, v{r}, v{vTag} bitop3:0xf6")
        I(f"v_and_b32 v{vTmp}, 0xff, v{vTmp}")
        for r in full:
            I(f"v_bitop3_b32 v{vTmp}, v{vTmp}, v{r}, v{vTag} bitop3:0xf6")
        I(f"v_cmp_ne_u32 vcc, 0, v{vTmp}")
    def poll_loop(name, loads, regs, masked, full=()):
        I(f"s_mov_b32 s{sTo}, {hex(cfg.TO)}")
        A(f"L_{name}_chk:")
        tagbad(regs, full)
        I(f"s_cbranch_vccz L_{name}_ok")
        I(f"s_sub_u32 s{sTo}, s{sTo}, 1")
        I(f"s_cmp_eq_u32 s{sTo}, 0")
        I(f"s_cbranch_scc1 L_{name}_ok")
        if masked: I("s_mov_b64 exec, vcc")
        loads()
        I("s_waitcnt vmcnt(0)")
        I(f"s_branch L_{name}_chk")
        A(f"L_{name}_ok:")
        if masked: I("s_mov_b64 exec, -1")
    def arrive(idx, notlast):
        I(f"v_mov_b32 v{vTmp}, 1")
        I("s_mov_b64 exec, 1")
        I(f"ds_add_rtn_u32 v{vTmp}, v{vZ}, v{vTmp} offset:{LDS_CNT + 4*idx}")
        I("s_mov_b64 exec, -1")
        I("s_waitcnt lgkmcnt(0)")
        I(f"v_readfirstlane_b32 s{s0_}, v{vTmp}")
        I("s_nop 1")
        I(f"s_cmp_lg_u32 s{s0_}, 3")
        I(f"s_cbranch_scc1 {notlast}")
    def allsum(v, op="add"):
        o = f"v_{op}_f32"
        I("s_nop 1")
        I(f"{o}_dpp v{v}, v{v}, v{v} row_ror:4 row_mask:0xf bank_mask:0xf")
        I("s_nop 1")
        I(f"{o}_dpp v{v}, v{v}, v{v} row_ror:8 row_mask:0xf bank_mask:0xf")
        I(f"v_mov_b32 v{vTmp2}, v{v}")
        I("s_nop 1")
        I(f"v_permlane16_swap_b32 v{v}, v{vTmp2}")
        I("s_nop 1")
        I(f"{o} v{v}, v{v}, v{vTmp2}")
        I(f"v_mov_b32 v{vTmp2}, v{v}")
        I("s_nop 1")
        I(f"v_permlane32_swap_b32 v{v}, v{vTmp2}")
        I("s_nop 1")
        I(f"{o} v{v}, v{v}, v{vTmp2}")

    A(f"; @launch grid=(256,1,1) block=(256,1,1) lds={LDS_SIZE}")
    A('.amdgcn_target "amdgcn-amd-amdhsa--gfx950"')
    A(".text"); A(f".globl {KNAME}"); A(".p2align 8"); A(f".type {KNAME},@function"); A(f"{KNAME}:")
    I("s_cmp_ge_u32 s2, 256")
    I("s_cbranch_scc1 L_end")
    stamp(2)
    if cfg.diag in (3, 5, 6) and cfg.stamps: I(f"s_memrealtime s[{sStamp}:{sStamp+1}]"); stamp_n[0] = 1
    I(f"s_load_dwordx16 s[4:19], s[0:1], 0")
    I(f"s_load_dwordx8 s[20:27], s[0:1], 64")
    I(f"s_load_dwordx2 s[28:29], s[0:1], 96")
    I(f"s_getpc_b64 s[{sPc}:{sPc+1}]")
    A("L_pc:")
    I(f"v_lshlrev_b32 v{vTmp}, 7, v0")
    I(f"v_min_u32 v{vTmp}, L_end-L_pc, v{vTmp}")
    I(f"global_load_dword v{vTmp2}, v{vTmp}, s[{sPc}:{sPc+1}]")
    I(f"v_and_b32 v{vL}, 63, v0")
    I(f"v_lshrrev_b32 v{vS}, 6, v0")
    I(f"v_mov_b32 v{vZ}, 0")
    I(f"v_readfirstlane_b32 s{sWave}, v{vS}")
    I(f"v_bfe_u32 v{vP}, v{vL}, 2, 2")
    I(f"v_lshrrev_b32 v{vPlo}, 4, v{vL}")
    I(f"v_and_b32 v{vPhi}, 3, v{vL}")
    I(f"v_and_b32 v{vM}, 15, v{vL}")
    I(f"v_lshlrev_b32 v{vOffV}, 4, v{vL}")
    I(f"v_lshlrev_b32 v{vOffK}, 8, v{vP}")
    I(f"v_lshl_add_u32 v{vOffK}, v{vPlo}, 6, v{vOffK}")
    I(f"v_lshl_add_u32 v{vOffK}, v{vPhi}, 4, v{vOffK}")
    vWoff, vXoff = vG, vG+1
    I(f"v_lshlrev_b32 v{vWoff}, 16, v{vPlo}")
    I(f"v_lshl_add_u32 v{vWoff}, v{vM}, 4, v{vWoff}")
    I(f"v_lshlrev_b32 v{vXoff}, 10, v{vPhi}")
    I(f"v_lshl_add_u32 v{vXoff}, v{vPlo}, 4, v{vXoff}")
    if cfg.xmix:
        I(f"s_and_b32 s{s0_}, s2, 7")
        I(f"s_bcnt1_i32_b32 s{s1_}, s{s0_}")
        I(f"s_and_b32 s{s1_}, s{s1_}, 1")
        I(f"s_lshr_b32 s{sJa}, s{s0_}, 1")
        I(f"s_lshr_b32 s{sPair}, s2, 3")
        I(f"s_lshl_b32 s{sPair}, s{sPair}, 1")
        I(f"s_or_b32 s{sPair}, s{sPair}, s{s1_}")
    else:
        I(f"s_and_b32 s{sJa}, s2, 3")
        I(f"s_lshr_b32 s{sPair}, s2, 2")
    I(f"s_lshr_b32 s{sB}, s{sPair}, 3")
    I(f"s_and_b32 s{sG}, s{sPair}, 7")
    I(f"s_and_b32 s{sJ}, s2, 3")
    I(f"s_lshl_b32 s{sCnt}, s{sPair}, 8")
    I(f"s_add_u32 s{sCnt}, s{sCnt}, {WS_CNT}")
    I(f"s_lshl_b32 s{sPair}, s{sPair}, 21")
    I(f"s_lshl_b32 s{s1_}, s{sJa}, 2")
    I(f"s_add_u32 s{s1_}, s{s1_}, s{sWave}")
    I(f"s_lshl_b32 s{s0_}, s{s1_}, 12")
    I(f"s_add_u32 s{sOffB}, s{sPair}, s{s0_}")
    I(f"s_lshl_b32 s{s1_}, s{sJ}, 2")
    I(f"s_add_u32 s{s1_}, s{s1_}, s{sWave}")
    I(f"s_lshl_b32 s{s0_}, s{sWave}, 12")
    I(f"s_add_u32 s{sOff}, s{sPair}, s{s0_}")
    I(f"s_lshl_b32 s{s0_}, s{sJa}, 17")
    I(f"s_add_u32 s{sOff}, s{sOff}, s{s0_}")
    I(f"s_add_u32 s{sOff}, s{sOff}, {6144*256}")
    I(f"s_lshl_b32 s{s2_}, s{s1_}, 18")
    I(f"s_bfe_u32 s{s3_}, s2, 0x50002")
    I(f"s_lshl_b32 s{s3_}, s{s3_}, 8")
    I(f"s_add_u32 s{s2_}, s{s2_}, s{s3_}")
    I(f"s_lshl_b32 s{s1_}, s{s1_}, 6")
    I("s_waitcnt lgkmcnt(0)")
    stamp(2)
    srd(sW, sWs, WS_SIZE)
    I(f"buffer_load_dword v{vTag}, v{vZ}, s[{sW}:{sW+3}], 0 offen offset:{WS_EPOCH} sc1")
    I(f"s_and_b32 s{s0_}, s2, 0x8f")
    I(f"s_or_b32 s{s0_}, s{s0_}, s{sWave}")
    I(f"s_cmp_lg_u32 s{s0_}, 0")
    I("s_cbranch_scc1 L_nocnt")
    I(f"s_lshr_b32 s{s0_}, s2, 4")
    I(f"s_lshl_b32 s{s0_}, s{s0_}, 8")
    I(f"s_add_u32 s{s0_}, s{s0_}, {WS_CNT}")
    I(f"v_lshlrev_b32 v{vTmp}, 11, v{vL}")
    I("s_mov_b64 exec, 0x1ff")
    I(f"buffer_store_dword v{vZ}, v{vTmp}, s[{sW}:{sW+3}], s{s0_} offen sc1")
    I("s_mov_b64 exec, -1")
    A("L_nocnt:")
    I(f"s_cmp_lt_u32 s2, 128")
    I(f"s_cselect_b32 s{sT}, s{sAx}, s{sBx}")
    I(f"s_cselect_b32 s{sT+1}, s{sAx+1}, s{sBx+1}")
    I(f"s_cselect_b32 s{sT2}, s{sAwq}, s{sBwq}")
    I(f"s_cselect_b32 s{sT2+1}, s{sAwq+1}, s{sBwq+1}")
    I(f"s_and_b32 s{sT+1}, s{sT+1}, 0xffff")
    I(f"s_and_b32 s{sT2+1}, s{sT2+1}, 0xffff")
    I(f"s_mov_b32 s{sT+2}, 8192"); I(f"s_mov_b32 s{sT+3}, 0x20000")
    I(f"s_mov_b32 s{sT2+2}, 0x400000"); I(f"s_mov_b32 s{sT2+3}, 0x20000")
    vX = vG + 2
    I(f"buffer_load_dwordx4 v[{vX}:{vX+3}], v{vXoff}, s[{sT}:{sT+3}], s{s1_} offen")
    I(f"s_add_u32 s{s1_}, s{s1_}, 4096")
    I(f"buffer_load_dwordx4 v[{vX+4}:{vX+7}], v{vXoff}, s[{sT}:{sT+3}], s{s1_} offen")
    WSLOT = R - 1
    for t in range(8):
        a = WSLOT*32 + 4*t
        I(f"buffer_load_dwordx4 a[{a}:{a+3}], v{vWoff}, s[{sT2}:{sT2+3}], s{s2_} offen {pol(cfg.fWq)}")
        if t < 7: I(f"s_add_u32 s{s2_}, s{s2_}, 8192")
    srd(sK, sAk, 0x8000000)
    srd(sV, sAv, 0x8000000)
    I(f"s_mov_b32 s{sIss}, 0")
    I(f"s_mov_b32 s{sStep}, 16384")
    I(f"s_and_b32 s{sBk+1}, s{sBk+1}, 0xffff")
    I(f"s_and_b32 s{sBv+1}, s{sBv+1}, 0xffff")

    late_blocks = []; uniq = [0]
    def tile_loads(slot, fk, fv):
        for t in range(4):
            a = slot*32 + 4*t
            I(f"buffer_load_dwordx4 a[{a}:{a+3}], v{vOffK}, s[{sK}:{sK+3}], s{sOff} offen offset:{t*1024} {fk}")
        for t in range(4):
            a = slot*32 + 16 + 4*t
            I(f"buffer_load_dwordx4 a[{a}:{a+3}], v{vOffV}, s[{sV}:{sV+3}], s{sOff} offen offset:{t*1024} {fv}")
    def issue_tile(slot, phase=None):
        pa = (pol(cfg.fAk), pol(cfg.fAv)); pb = (pol(cfg.fBk), pol(cfg.fBv))
        if phase == "A" or pa == pb:
            tile_loads(slot, *pa)
        else:
            u = uniq[0]; uniq[0] += 1
            I(f"s_cmp_lt_u32 s{sIss}, 8")
            I(f"s_cbranch_scc1 L_ia{u}")
            tile_loads(slot, *pb)
            A(f"L_ib{u}:")
            late_blocks.append((u, slot, pa))
        I(f"s_add_u32 s{sOff}, s{sOff}, s{sStep}")
        I(f"s_add_u32 s{sIss}, s{sIss}, 1")
        I(f"s_cmp_eq_u32 s{sIss}, 8")
        I(f"s_cselect_b32 s{sOff}, s{sOffB}, s{sOff}")
        I(f"s_cselect_b32 s{sStep}, 0x10000, s{sStep}")
        I(f"s_cselect_b32 s{sK}, s{sBk}, s{sK}")
        I(f"s_cselect_b32 s{sK+1}, s{sBk+1}, s{sK+1}")
        I(f"s_cselect_b32 s{sV}, s{sBv}, s{sV}")
        I(f"s_cselect_b32 s{sV+1}, s{sBv+1}, s{sV+1}")

    if cfg.t0at == "pre": issue_tile(0, "A")
    I(f"s_mov_b32 s{sC}, {hex(f32bits(C_SCALE))}")
    I(f"s_mov_b32 s{sFF}, 0xff")
    I(f"s_mov_b32 s{sMaskHi}, 0xffffff00")
    I(f"v_mul_u32_u24 v{vLdsW}, 196, v{vPhi}")
    I(f"v_mad_u32_u24 v{vLdsW}, v{vPlo}, 48, v{vLdsW}")
    I(f"v_add_lshl_u32 v{vLdsW}, v{vLdsW}, v{vP}, 2")
    I(f"v_lshrrev_b32 v{vRd}, 5, v0")
    I(f"v_mul_u32_u24 v{vRd}, 196, v{vRd}")
    I(f"v_bfe_u32 v{vTmp}, v0, 3, 2")
    I(f"v_mad_u32_u24 v{vRd}, v{vTmp}, 48, v{vRd}")
    I(f"v_and_b32 v{vTmp}, 7, v0")
    I(f"v_lshl_add_u32 v{vRd}, v{vTmp}, 2, v{vRd}")
    I(f"v_lshlrev_b32 v{vRd}, 2, v{vRd}")
    vSel = vG + 10
    def pick(dst, r, lo, hi, other):
        I(f"v_mov_b32 v{dst}, {hex(other)}")
        I(f"v_mov_b32 v{vTmp}, {hex(lo)}")
        I(f"v_cmp_eq_u32 vcc, {2*r}, v{vP}")
        I(f"s_nop 1")
        I(f"v_cndmask_b32 v{dst}, v{dst}, v{vTmp}, vcc")
        I(f"v_mov_b32 v{vTmp}, {hex(hi)}")
        I(f"v_cmp_eq_u32 vcc, {2*r+1}, v{vP}")
        I(f"s_nop 1")
        I(f"v_cndmask_b32 v{dst}, v{dst}, v{vTmp}, vcc")
    for r in range(2):
        pick(vSel + 2*r + 0, r, 0x0c0c0100, 0x01000c0c, 0x0c0c0c0c)
        pick(vSel + 2*r + 1, r, 0x0c0c0302, 0x03020c0c, 0x0c0c0c0c)
    pick(vMask0, 0, 0xffff, 0xffff0000, 0)
    pick(vMask1, 1, 0xffff, 0xffff0000, 0)
    for k in range(8): I(f"v_mov_b32 v{vBp+k}, 0")
    I(f"v_lshlrev_b32 v{vTmp}, 2, v{vL}")
    I("s_mov_b64 exec, 3")
    I(f"ds_write_b32 v{vTmp}, v{vZ} offset:{LDS_CNT}")
    I("s_mov_b64 exec, -1")
    t0t = {"pre": -1, "post": 99}.get(cfg.t0at, None)
    if t0t is None: t0t = int(cfg.t0at[1:])
    if t0t == -1:
        I("s_waitcnt vmcnt(15)")
    else:
        I("s_waitcnt vmcnt(7)")
        if t0t == 0: issue_tile(0, "A")
    I(f"v_add_u32 v{vTag}, 1, v{vTag}")
    vQacc = vG + 16
    vXB = vG + 32
    for t in range(8):
        bs = vXB + (t & 1)*4
        if t > 0:
            I(f"s_waitcnt vmcnt({7 - t + (8 if t0t < t else 0)})")
            if t == t0t: issue_tile(0, "A")
            if t == 7:
                stamp(2)
                if cfg.t1at == "w7": issue_tile(1, "A")
                stamp(1)
        for m in range(2):
            for r in range(2):
                I(f"v_perm_b32 v{bs+2*m+r}, v{vX+4*m+(t>>1)}, v{vX+4*m+(t>>1)}, v{vSel+2*r+(t&1)}")
        for m in range(2):
            for h in range(2):
                d = vQacc + (m*2+h)*4
                a = WSLOT*32 + 4*t + 2*h
                c = "0" if t == 0 else f"v[{d}:{d+3}]"
                I(f"v_mfma_f32_16x16x16_bf16 v[{d}:{d+3}], a[{a}:{a+1}], v[{bs+2*m}:{bs+2*m+1}], {c}")
    I(f"s_mul_i32 s{s0_}, s{sWave}, {8*ROW}")
    I(f"v_add_u32 v{vTmp}, s{s0_}, v{vLdsW}")
    I(f"s_lshr_b32 s{s0_}, s2, 4")
    I(f"s_lshl_b32 s{s0_}, s{s0_}, 2")
    I(f"s_add_u32 s{s0_}, s{s0_}, s{sJ}")
    I(f"s_lshl_b32 s{s0_}, s{s0_}, 14")
    I(f"s_bfe_u32 s{s1_}, s2, 0x20002")
    I(f"s_lshl_b32 s{s1_}, s{s1_}, 9")
    I(f"s_add_u32 s{s0_}, s{s0_}, s{s1_}")
    I(f"s_add_u32 s{s0_}, s{s0_}, {WS_QP}")
    for m in range(2):
        for h in range(2):
            for r in range(4):
                I(f"ds_write_b32 v{vTmp}, v{vQacc+(m*2+h)*4+r} offset:{LDS_QR + m*4*ROW + (8*r+4*h)*4}")
    I(f"v_lshrrev_b32 v{vTmp}, 5, v0")
    I(f"v_lshlrev_b32 v{vTmp}, 11, v{vTmp}")
    I(f"v_and_b32 v{vTmp2}, 31, v0")
    I(f"v_lshl_add_u32 v{vTmp}, v{vTmp2}, 4, v{vTmp}")
    I("s_waitcnt lgkmcnt(0)")
    stamp(1)
    I("s_barrier")
    stamp(1)
    vR = vG + 44
    for w in range(4):
        I(f"ds_read_b128 v[{vR+4*w}:{vR+4*w+3}], v{vRd} offset:{LDS_QR + w*8*ROW}")
    vQoff = vG + 41
    I(f"v_lshlrev_b32 v{vQoff}, 9, v{vPhi}")
    I(f"v_lshl_add_u32 v{vQoff}, v{vPlo}, 7, v{vQoff}")
    I(f"v_lshl_add_u32 v{vQoff}, v{vP}, 5, v{vQoff}")
    I(f"s_lshl_b32 s{s2_}, s{sG}, 2")
    I(f"s_add_u32 s{s2_}, s{s2_}, s{sWave}")
    I(f"s_lshl_b32 s{s2_}, s{s2_}, 3")
    I(f"s_add_u32 s{s2_}, s{s2_}, s{sB}")
    I(f"s_lshl_b32 s{s2_}, s{s2_}, 11")
    I(f"s_add_u32 s{sQ0}, s{s2_}, {WS_QP}")
    I(f"s_add_u32 s{sQ1}, s{sQ0}, 0x80000")
    I("s_waitcnt lgkmcnt(0)")
    for k in range(4):
        I(f"v_add_f32 v{vR+k}, v{vR+k}, v{vR+4+k}")
        I(f"v_add_f32 v{vR+8+k}, v{vR+8+k}, v{vR+12+k}")
    for k in range(4): I(f"v_add_f32 v{vR+k}, v{vR+k}, v{vR+8+k}")
    for k in range(4): I(f"v_bfi_b32 v{vR+k}, s{sFF}, v{vTag}, v{vR+k}")
    I(f"buffer_store_dwordx4 v[{vR}:{vR+3}], v{vTmp}, s[{sW}:{sW+3}], s{s0_} offen sc1")
    stamp(2)
    vQL = vG + 16
    def qpoll_loads():
        I(f"buffer_load_dwordx4 v[{vQL}:{vQL+3}], v{vQoff}, s[{sW}:{sW+3}], s{sQ0} offen sc1")
        I(f"buffer_load_dwordx4 v[{vQL+4}:{vQL+7}], v{vQoff}, s[{sW}:{sW+3}], s{sQ0} offen offset:16 sc1")
        I(f"buffer_load_dwordx4 v[{vQL+8}:{vQL+11}], v{vQoff}, s[{sW}:{sW+3}], s{sQ1} offen sc1")
        I(f"buffer_load_dwordx4 v[{vQL+12}:{vQL+15}], v{vQoff}, s[{sW}:{sW+3}], s{sQ1} offen offset:16 sc1")
    qregs = list(range(vQL, vQL+16))
    def init_state():
        for k in range(8): I(f"v_mov_b32 v{vAcc+k}, 0")
        I(f"v_mov_b32 v{vM}, 0xff800000")
        I(f"v_mov_b32 v{vMC}, 0xff800000")
        I(f"v_mov_b32 v{vLs}, 0")
    I(f"s_mov_b32 s{sLate}, 0")
    if t0t == 99: issue_tile(0, "A")
    if cfg.t1at == "post": issue_tile(1, "A")
    def idle_setup():
        def init_state():
            for k in range(8): I(f"v_mov_b32 v{vAcc+k}, 0")
            I(f"v_mov_b32 v{vM}, 0xff800000")
            I(f"v_mov_b32 v{vMC}, 0xff800000")
            I(f"v_mov_b32 v{vLs}, 0")
        init_state()
        I(f"v_and_b32 v{vTmp}, 3, v{vL}")
        I(f"v_bfe_u32 v{vTmp2}, v{vL}, 2, 2")
        I(f"v_lshlrev_b32 v{vPo}, 13, v{vTmp}")
        I(f"v_lshl_add_u32 v{vPo}, v{vTmp2}, 11, v{vPo}")
        I(f"v_lshlrev_b32 v{vPm}, 7, v{vTmp}")
        I(f"v_lshl_add_u32 v{vPm}, v{vTmp2}, 5, v{vPm}")
        I(f"v_lshrrev_b32 v{vTmp}, 4, v{vL}")
        I(f"v_lshl_add_u32 v{vPo}, v{vTmp}, 4, v{vPo}")
        I(f"v_lshlrev_b32 v{vWo}, 12, v{vTmp}")
        I(f"v_and_b32 v{vTmp2}, 15, v{vL}")
        I(f"v_lshl_add_u32 v{vWo}, v{vTmp2}, 4, v{vWo}")
        I(f"s_lshr_b32 s{s0_}, s2, 5")
        I(f"s_bfe_u32 s{s1_}, s2, 0x20003")
        I(f"s_bfe_u32 s{s2_}, s2, 0x10002")
        I(f"s_lshl_b32 s{s3_}, s{s0_}, 16")
        I(f"s_lshl_b32 s{s4_}, s{s1_}, 9"); I(f"s_add_u32 s{s3_}, s{s3_}, s{s4_}")
        I(f"s_lshl_b32 s{s4_}, s{s2_}, 8"); I(f"s_add_u32 s{s3_}, s{s3_}, s{s4_}")
        I(f"s_lshl_b32 s{s4_}, s{sWave}, 6"); I(f"s_add_u32 s{s3_}, s{s3_}, s{s4_}")
        I(f"s_add_u32 s{sO[0]}, s{s3_}, {WS_PO}")
        I(f"s_lshl_b32 s{s4_}, s{s0_}, 10")
        I(f"s_lshl_b32 s{s5_}, s{s1_}, 3"); I(f"s_add_u32 s{s4_}, s{s4_}, s{s5_}")
        I(f"s_add_u32 s{sO[1]}, s{s4_}, {WS_PML}")
        I(f"v_lshrrev_b32 v{vOp}, 5, v0")
        I(f"v_lshlrev_b32 v{vOp}, 9, v{vOp}")
        I(f"v_and_b32 v{vTmp}, 31, v0")
        I(f"v_lshl_add_u32 v{vOp}, v{vTmp}, 4, v{vOp}")
        I(f"s_lshr_b32 s{s0_}, s2, 2")
        I(f"s_lshl_b32 s{s1_}, s{sJ}, 6")
        I(f"s_add_u32 s{s1_}, s{s0_}, s{s1_}")
        I(f"s_lshl_b32 s{s1_}, s{s1_}, 12")
        I(f"s_add_u32 s{sO[2]}, s{s1_}, {WS_OP}")
        I(f"s_lshl_b32 s{s0_}, s{s0_}, 2"); I(f"s_add_u32 s{s0_}, s{s0_}, s{sWave}")
        I(f"s_lshl_b32 s{s0_}, s{s0_}, 14")
        I(f"s_lshl_b32 s{s1_}, s{sJ}, 8"); I(f"s_add_u32 s{sWoOff}, s{s0_}, s{s1_}")
        srd(sT, sAwo, 0x400000)
        srd(sT2, sBwo, 0x400000)
        I(f"s_lshl_b32 s{sRdyP}, s{sG}, 8"); I(f"s_add_u32 s{sRdyP}, s{sRdyP}, {WS_CNT + 0x4000}")
        I(f"s_lshr_b32 s{sRdyC}, s2, 5"); I(f"s_lshl_b32 s{sRdyC}, s{sRdyC}, 8"); I(f"s_add_u32 s{sRdyC}, s{sRdyC}, {WS_CNT + 0x4000}")

    for k in range(2, R):
        qpoll_loads(); issue_tile(k, "A")
        if k == 2: idle_setup()
        I(f"s_mov_b32 s{sLand}, {k}")
        I("s_waitcnt vmcnt(8)")
        if k == 2: stamp(1)
        tagcheck(qregs, f"L_qok{k}")
    I(f"s_mov_b32 s{sLand}, {R}")
    I(f"s_mov_b32 s{sLate}, 1")
    qpoll_loads()
    I("s_waitcnt vmcnt(0)")
    poll_loop("qp", qpoll_loads, qregs, cfg.masked)
    I("s_branch L_qok")
    for k in range(R-1, 1, -1):
        A(f"L_qok{k}:")
        if R == 4:
            if k == 2: issue_tile(3, "A")
            I(f"s_mov_b32 s{sLate}, 1")
        else:
            for n_ in (k+1, k+2):
                if n_ < R: issue_tile(n_, "A")
            if k + 2 >= R - 1: I(f"s_mov_b32 s{sLate}, 1")
            else: I(f"s_mov_b32 s{sLate}, {k+3+8}")
        if k > 2: I("s_branch L_qok")
    A("L_qok:")
    stamp(2)
    if cfg.stamps: I(f"s_mov_b32 s{sLand0}, s{sLand}")
    for r in qregs: I(f"v_and_b32 v{r}, s{sMaskHi}, v{r}")
    I(f"s_lshl_b32 s{s0_}, s{sWave}, 12")
    I(f"v_add_u32 v{vTmp}, s{s0_}, v{vOffV}")
    for k in range(4):
        I(f"ds_write_b128 v{vTmp}, v[{vQL+4*k}:{vQL+4*k+3}] offset:{LDS_QX + k*1024}")
    I("s_waitcnt lgkmcnt(0)")
    I("s_barrier")
    vQR = vG + 0
    def assemble_q(br, dq):
        for w in range(4):
            for k in range(2):
                d = vQR + (w*2+k)*4
                I(f"ds_read_b128 v[{d}:{d+3}], v{vOffV} offset:{LDS_QX + w*4096 + (br*2+k)*1024}")
        I("s_waitcnt lgkmcnt(0)")
        for e in range(8):
            I(f"v_add_f32 v{vQR+e}, v{vQR+e}, v{vQR+8+e}")
            I(f"v_add_f32 v{vQR+16+e}, v{vQR+16+e}, v{vQR+24+e}")
        for e in range(8): I(f"v_add_f32 v{vQR+e}, v{vQR+e}, v{vQR+16+e}")
        for r in range(4): I(f"v_cvt_pk_bf16_f32 v{dq+r}, v{vQR+2*r}, v{vQR+2*r+1}")
    assemble_q(0, vQ)
    if not cfg.qbdefer: assemble_q(1, vQB)
    I(f"s_mov_b32 s{sI}, 0")
    I(f"s_mov_b32 s{sPre}, 0")
    I(f"s_mov_b32 s{sEnd}, -1")
    stamp(2)
    late_steps = {1: 0} if R == 4 else {1: 0, 4: 1}
    A(".p2align 3")
    A("L_round:")
    if cfg.stamps and cfg.diag == 6:
        for k in range(1, 10):
            I(f"s_cmp_eq_u32 s{sI}, {4*(k-1)}")
            I(f"s_cbranch_scc0 L_ps{k}")
            I(f"s_memrealtime s[{sStamp+2*k}:{sStamp+2*k+1}]")
            A(f"L_ps{k}:")
    for s in range(R):
        I(f"s_cmp_lt_u32 s{sI}, s{sLand}")
        I(f"s_cbranch_scc1 L_nowait{s}")
        I(f"s_sub_u32 s{s0_}, s{sIss}, s{sI}")
        I(f"s_cmp_eq_u32 s{s0_}, {W}")
        I(f"s_cbranch_scc0 L_wait{s}")
        I(f"s_waitcnt vmcnt({8*(W-1)})")
        A(f"L_nowait{s}:")
        if cfg.stamps and cfg.diag == 5 and s < 4:
            I(f"s_cmp_eq_u32 s{sI}, {cfg.iA + s}")
            I(f"s_cbranch_scc0 L_nost{s}")
            I(f"s_memrealtime s[{sStamp+2*(6+s)}:{sStamp+2*(6+s)+1}]")
            A(f"L_nost{s}:")
        I(f"s_add_u32 s{s0_}, s{sI}, {W}")
        I(f"s_add_u32 s{sI}, s{sI}, 1")
        if s in late_steps:
            I(f"s_cmp_eq_u32 s{sLate}, 1")
            I(f"s_cbranch_scc1 L_late{s}")
        if s == 0 and R == 8:
            I(f"s_cmp_gt_u32 s{sLate}, 1")
            I(f"s_cbranch_scc1 L_br0")
        I(f"s_cmp_eq_u32 s{sIss}, s{s0_}")
        I(f"s_cbranch_scc0 L_noiss{s}")
        I(f"s_cmp_ge_u32 s{sIss}, {NST-1}")
        I(f"s_cbranch_scc1 L_dyn{s}")
        A(f"L_loads{s}:")
        issue_tile((s+W) % R)
        A(f"L_noiss{s}:")
        for t in range(4):
            a = s*32 + 4*t
            I(f"v_mfma_f32_16x16x32_bf16 v[{vD+4*t}:{vD+4*t+3}], a[{a}:{a+3}], v[{vQ}:{vQ+3}], 0")
        I("s_nop 4")
        for t in range(4):
            hbs = [(t+1) & 3, (t+2) & 3, (t+3) & 3]
            n = [(4*(t-hb)) % 16 for hb in hbs]
            I(f"v_add_f32_dpp v{vTmp}, v{vD+4*t+hbs[0]}, v{vD+4*t+t} row_ror:{n[0]} row_mask:0xf bank_mask:0xf")
            I(f"v_add_f32_dpp v{vTmp}, v{vD+4*t+hbs[1]}, v{vTmp} row_ror:{n[1]} row_mask:0xf bank_mask:0xf")
            I(f"v_add_f32_dpp v{vS}, v{vD+4*t+hbs[2]}, v{vTmp} row_ror:{n[2]} row_mask:0xf bank_mask:{hex(1<<t)}")
        I(f"v_cmp_gt_f32 vcc, v{vS}, v{vM}")
        I(f"s_cbranch_vccnz L_rare{s}")
        A(f"L_cont{s}:")
        I(f"v_fma_f32 v{vP}, v{vS}, s{sC}, -v{vMC}")
        I(f"v_exp_f32 v{vP}, v{vP}")
        I("s_nop 0")
        I(f"v_cvt_pk_bf16_f32 v{vPlo}, v{vP}, 0")
        I(f"v_cvt_pk_bf16_f32 v{vPhi}, 0, v{vP}")
        I(f"v_add_f32 v{vLs}, v{vLs}, v{vP}")
        I("s_nop 0")
        for t in range(4):
            for beta in range(4):
                src = vPlo if beta % 2 == 0 else vPhi
                n = (4*(beta - t)) % 16
                ctl = f"row_ror:{n}" if n else "quad_perm:[0,1,2,3]"
                I(f"v_mov_b32_dpp v{vBp+2*t+(beta>>1)}, v{src} {ctl} row_mask:0xf bank_mask:{hex(1<<beta)}")
        for t in range(4):
            for h in range(2):
                a = s*32 + 16 + 4*t + 2*h
                I(f"v_mfma_f32_16x16x16_bf16 v[{vAcc+4*h}:{vAcc+4*h+3}], a[{a}:{a+1}], v[{vBp+2*t}:{vBp+2*t+1}], v[{vAcc+4*h}:{vAcc+4*h+3}]")
        I(f"s_cmp_eq_u32 s{sI}, s{sEnd}")
        I("s_cbranch_scc1 L_exit")
    I(f"s_mov_b32 s{sLate}, 0")
    I(f"s_cmp_eq_u32 s{sI}, 8")
    I("s_cbranch_scc0 L_round")

    def write_partial(pr, ml, lvl=None, barrier=True):
        I("s_nop 7")
        allsum(vLs)
        I(f"s_mul_i32 s{s0_}, s{sWave}, {4*ROW}")
        I(f"v_add_u32 v{vTmp}, s{s0_}, v{vLdsW}")
        for h in range(2):
            for r in range(4):
                I(f"ds_write_b32 v{vTmp}, v{vAcc+4*h+r} offset:{pr + (8*r+4*h)*4}")
        I(f"s_lshl_b32 s{s0_}, s{sWave}, 5")
        I(f"v_lshl_add_u32 v{vTmp}, v{vL}, 3, s{s0_}")
        I(f"v_mov_b32 v{vG}, v{vM}"); I(f"v_mov_b32 v{vG+1}, v{vLs}")
        I("s_mov_b64 exec, 0xf")
        I(f"ds_write_b64 v{vTmp}, v[{vG}:{vG+1}] offset:{ml}")
        I("s_mov_b64 exec, -1")
        I("s_waitcnt lgkmcnt(0)")
        if lvl is not None: stamp(lvl)
        if barrier: I("s_barrier")
        if lvl is not None: stamp(lvl)
    def combine_pass(br, pr, ml, vRdX, hd_src, hoff):
        vA = vG + 8; vMl = vG + 24; vHd = vG + 2; vSo = vG + 3; vSm = vG + 4; vMx = vG + 32; vLt = vG + 33
        I(f"v_lshrrev_b32 v{vHd}, 5, v{hd_src}")
        if hoff: I(f"v_add_u32 v{vHd}, {hoff}, v{vHd}")
        I(f"v_lshlrev_b32 v{vSm}, 3, v{vHd}")
        for w in range(4): I(f"ds_read_b64 v[{vMl+2*w}:{vMl+2*w+1}], v{vSm} offset:{ml + w*32}")
        for w in range(4): I(f"ds_read_b128 v[{vA+4*w}:{vA+4*w+3}], v{vRdX} offset:{pr + hoff*ROW + w*4*ROW}")
        I(f"s_lshl_b32 s{s0_}, s{sG}, 3"); I(f"s_add_u32 s{s0_}, s{s0_}, s{sB}")
        I(f"s_lshl_b32 s{s0_}, s{s0_}, 2"); I(f"s_add_u32 s{s0_}, s{s0_}, s{sJa}")
        I(f"s_lshl_b32 s{s1_}, s{s0_}, 5"); I(f"s_add_u32 s{s1_}, s{s1_}, {WS_PML + br*8192}")
        I(f"s_lshl_b32 s{s0_}, s{s0_}, 11"); I(f"s_add_u32 s{s0_}, s{s0_}, {WS_PO + br*0x80000}")
        I(f"v_lshlrev_b32 v{vSo}, 9, v{vHd}")
        I(f"v_and_b32 v{vTmp}, 31, v{hd_src}")
        I(f"v_lshl_add_u32 v{vSo}, v{vTmp}, 4, v{vSo}")
        I("s_waitcnt lgkmcnt(4)")
        I(f"v_max_f32 v{vMx}, v{vMl}, v{vMl+2}")
        I(f"v_max3_f32 v{vMx}, v{vMx}, v{vMl+4}, v{vMl+6}")
        for w in range(4): I(f"v_sub_f32 v{vMl+2*w}, v{vMl+2*w}, v{vMx}")
        for w in range(4): I(f"v_mul_f32 v{vMl+2*w}, s{sC}, v{vMl+2*w}")
        for w in range(4): I(f"v_exp_f32 v{vMl+2*w}, v{vMl+2*w}")
        I(f"v_mul_f32 v{vLt}, v{vMl}, v{vMl+1}")
        for w in range(1, 4): I(f"v_fmac_f32 v{vLt}, v{vMl+2*w}, v{vMl+2*w+1}")
        I(f"v_rcp_f32 v{vMl+1}, v{vLt}")
        I(f"v_log_f32 v{vLt}, v{vLt}")
        I("s_nop 0")
        for w in range(4): I(f"v_mul_f32 v{vMl+2*w}, v{vMl+2*w}, v{vMl+1}")
        I(f"v_fma_f32 v{vMx}, v{vMx}, s{sC}, v{vLt}")
        I("s_waitcnt lgkmcnt(0)")
        for k in range(4): I(f"v_mul_f32 v{vA+k}, v{vMl}, v{vA+k}")
        for w in range(1, 4):
            for k in range(4): I(f"v_fmac_f32 v{vA+k}, v{vMl+2*w}, v{vA+4*w+k}")
        for k in range(4): I(f"v_bfi_b32 v{vA+k}, s{sFF}, v{vTag}, v{vA+k}")
        I(f"buffer_store_dwordx4 v[{vA}:{vA+3}], v{vSo}, s[{sW}:{sW+3}], s{s0_} offen sc1")
        I(f"v_bfi_b32 v{vMx}, s{sFF}, v{vTag}, v{vMx}")
        I(f"v_mov_b32 v{vLt}, v{vTag}")
        I(f"v_cmp_eq_u32 vcc, 0, v{vTmp}")
        I(f"s_and_saveexec_b64 s[{s2_}:{s3_}], vcc")
        I(f"buffer_store_dwordx2 v[{vMx}:{vMx+1}], v{vSm}, s[{sW}:{sW+3}], s{s1_} offen sc1")
        I("s_mov_b64 exec, -1")
    def combine_publish(br, pr, ml, skip, rdy=False):
        I(f"s_cmp_ge_u32 s{sWave}, 2")
        I(f"s_cbranch_scc1 {skip}")
        combine_pass(br, pr, ml, vRd, 0, 0)
        if rdy:
            I(f"v_mov_b32 v{vTmp2}, 1")
            I("s_mov_b64 exec, 1")
            I(f"buffer_atomic_add v{vTmp2}, v{vZ}, s[{sW}:{sW+3}], s{sRdyP} offen sc1")
            I("s_mov_b64 exec, -1")
        A(f"{skip}:")
    vRdL = vG + 40
    def lane_rd():
        I(f"v_lshrrev_b32 v{vRdL}, 5, v{vL}")
        I(f"v_mul_u32_u24 v{vRdL}, 196, v{vRdL}")
        I(f"v_bfe_u32 v{vTmp}, v{vL}, 3, 2")
        I(f"v_mad_u32_u24 v{vRdL}, v{vTmp}, 48, v{vRdL}")
        I(f"v_and_b32 v{vTmp}, 7, v{vL}")
        I(f"v_lshl_add_u32 v{vRdL}, v{vTmp}, 2, v{vRdL}")
        I(f"v_lshlrev_b32 v{vRdL}, 2, v{vRdL}")

    au = [0]
    def ahead_tiles():
        for k in range(1, cfg.ahead+1):
            u = au[0]; au[0] += 1
            I(f"s_add_u32 s{s4_}, s{sI}, {k}")
            I(f"s_cmp_eq_u32 s{sIss}, s{s4_}")
            I(f"s_cbranch_scc0 L_ah{u}")
            issue_tile(k)
            A(f"L_ah{u}:")
    ahead_tiles()
    if cfg.swbar:
        write_partial(LDS_PRA, LDS_MLA)
        combine_publish(0, LDS_PRA, LDS_MLA, "L_pubA_done")
    else:
        write_partial(LDS_PRA, LDS_MLA, barrier=False)
        arrive(0, "L_pubA_done")
        lane_rd()
        combine_pass(0, LDS_PRA, LDS_MLA, vRdL, vL, 0)
        I("s_nop 0")
        combine_pass(0, LDS_PRA, LDS_MLA, vRdL, vL, 2)
        A("L_pubA_done:")
    init_state()
    if cfg.qbdefer:
        assemble_q(1, vQ)
        I("s_nop 1")
    else:
        for k in range(4): I(f"v_mov_b32 v{vQ+k}, v{vQB+k}")
    I("s_branch L_round")

    vWoA = vG + 44
    rO = {0: list(range(vG+40, vG+44)) + list(range(40, 44)), 1: list(range(vG+8, vG+16))}
    rN = {0: list(range(vQB, vQB+4)), 1: list(range(vG+16, vG+20))}
    def part_loads(br):
        O, N = rO[br], rN[br]
        def f():
            I(f"s_add_u32 s{s4_}, s{sO[0]}, {br*0x80000}")
            I(f"s_add_u32 s{s5_}, s{sO[0]}, {br*0x80000 + 4*8192}")
            I(f"s_add_u32 s{sTl}, s{sO[1]}, {br*8192}")
            I(f"buffer_load_dwordx2 v[{N[0]}:{N[1]}], v{vPm}, s[{sW}:{sW+3}], s{sTl} offen sc1")
            I(f"buffer_load_dwordx2 v[{N[2]}:{N[3]}], v{vPm}, s[{sW}:{sW+3}], s{sTl} offen offset:512 sc1")
            I(f"buffer_load_dwordx4 v[{O[0]}:{O[3]}], v{vPo}, s[{sW}:{sW+3}], s{s4_} offen sc1")
            I(f"buffer_load_dwordx4 v[{O[4]}:{O[7]}], v{vPo}, s[{sW}:{sW+3}], s{s5_} offen sc1")
        return f
    def wo_loads(br):
        for t in range(4):
            dst = f"a[{4*t}:{4*t+3}]" if br else f"v[{vWoA+4*t}:{vWoA+4*t+3}]"
            I(f"buffer_load_dwordx4 {dst}, v{vWo}, s[{(sT2 if br else sT)}:{(sT2 if br else sT)+3}], s{sWoOff} offen offset:{t*1024} {pol(cfg.fWoB if br else cfg.fWoA)}")
    A("L_exit:")
    stamp(4)
    vOB = vG + 24
    vOA = vD
    if cfg.hint:
        I(f"v_mov_b32 v{vClaim}, 0")
        I("s_mov_b64 exec, 1")
        I(f"buffer_atomic_add v{vClaim}, v{vZ}, s[{sW}:{sW+3}], s{sRdyC} offen sc0 sc1")
        I("s_mov_b64 exec, -1")
    if not cfg.apre:
        wo_loads(0)
    if cfg.woearly: wo_loads(1)
    write_partial(LDS_PRB, LDS_MLB, 3)
    combine_publish(1, LDS_PRB, LDS_MLB, "L_pubB_done", rdy=cfg.hint)
    stamp(4)
    if cfg.apre:
        assert cfg.woearly and not cfg.bearly
        I(f"s_cmp_ge_u32 s{sWave}, 2")
        I("s_cbranch_scc1 L_wA4")
        I(f"s_waitcnt vmcnt({7 if cfg.hint else 6})")
        I("s_branch L_wAd")
        A("L_wA4:")
        I("s_waitcnt vmcnt(4)")
        A("L_wAd:")
        if cfg.hint:
            I(f"v_readfirstlane_b32 s{sEarly}, v{vClaim}")
            I("s_nop 1")
            I(f"s_cmp_ge_u32 s{sEarly}, {cfg.hintN}")
            I(f"s_cselect_b32 s{sEarly}, 1, 0")
            I("s_cbranch_scc0 L_noearly")
            part_loads(1)()
            A("L_noearly:")
    else:
        part_loads(0)()
        I("s_waitcnt vmcnt(0)")
    def project(br, orb):
        O, N = rO[br], rN[br]
        Nm = [N[0], N[2]]; Nl = [N[1], N[3]]
        poll_loop(f"h1{br}", part_loads(br), O + Nm, cfg.masked, full=Nl)
        if br == 1: stamp(4)
        if br == 1 and cfg.stamps and cfg.diag == 3: I(f"s_sub_u32 s{sLand0}, {hex(cfg.TO)}, s{sTo}")
        for r in Nm + O: I(f"v_and_b32 v{r}, s{sMaskHi}, v{r}")
        mx = [vTmp, vTmp2]
        for m in range(2): I(f"v_max_f32_dpp v{mx[m]}, v{Nm[m]}, v{Nm[m]} row_ror:4 row_mask:0xf bank_mask:0xf")
        I("s_nop 0")
        for m in range(2): I(f"v_max_f32_dpp v{mx[m]}, v{mx[m]}, v{mx[m]} row_ror:8 row_mask:0xf bank_mask:0xf")
        for m in range(2): I(f"v_sub_f32 v{Nm[m]}, v{Nm[m]}, v{mx[m]}")
        for m in range(2): I(f"v_exp_f32 v{Nm[m]}, v{Nm[m]}")
        I("s_nop 1")
        for m in range(2): I(f"v_add_f32_dpp v{Nl[m]}, v{Nm[m]}, v{Nm[m]} row_ror:4 row_mask:0xf bank_mask:0xf")
        I("s_nop 0")
        for m in range(2): I(f"v_add_f32_dpp v{Nl[m]}, v{Nl[m]}, v{Nl[m]} row_ror:8 row_mask:0xf bank_mask:0xf")
        for m in range(2): I(f"v_rcp_f32 v{Nl[m]}, v{Nl[m]}")
        I("s_nop 0")
        for m in range(2): I(f"v_mul_f32 v{Nm[m]}, v{Nm[m]}, v{Nl[m]}")
        for m in range(2):
            for k in range(4): I(f"v_mul_f32 v{O[4*m+k]}, v{Nm[m]}, v{O[4*m+k]}")
        for sh in (4, 8):
            for k in range(8): I(f"v_add_f32_dpp v{O[k]}, v{O[k]}, v{O[k]} row_ror:{sh} row_mask:0xf bank_mask:0xf")
        for k in range(8): I(f"v_cvt_pk_bf16_f32 v{O[k]}, v{O[k]}, v{O[k]}")
        for m in range(2):
            for t in range(4):
                I(f"v_and_b32 v{vOB+8*m+2*t}, v{O[4*m+t]}, v{vMask0}")
                I(f"v_and_b32 v{vOB+8*m+2*t+1}, v{O[4*m+t]}, v{vMask1}")
        I("s_nop 0")
        for t in range(4):
            for m in range(2):
                for h in range(2):
                    d = vOA + (m*2+h)*4
                    src = f"a[{4*t+2*h}:{4*t+2*h+1}]" if br else f"v[{vWoA+4*t+2*h}:{vWoA+4*t+2*h+1}]"
                    c = "0" if t == 0 else f"v[{d}:{d+3}]"
                    I(f"v_mfma_f32_16x16x16_bf16 v[{d}:{d+3}], {src}, v[{vOB+8*m+2*t}:{vOB+8*m+2*t+1}], {c}")
        I(f"s_mul_i32 s{s0_}, s{sWave}, {8*ROW}")
        I(f"v_add_u32 v{vTmp2}, s{s0_}, v{vLdsW}")
        I(f"s_add_u32 s{s1_}, s{sO[2]}, {br*4*64*8*512}")
        I("s_nop 5")
        for m in range(2):
            for h in range(2):
                for r in range(4):
                    I(f"ds_write_b32 v{vTmp2}, v{vOA+(m*2+h)*4+r} offset:{orb + m*4*ROW + (8*r+4*h)*4}")
        I("s_waitcnt lgkmcnt(0)")
        I("s_barrier")
        vA = vD
        for w in range(4): I(f"ds_read_b128 v[{vA+4*w}:{vA+4*w+3}], v{vRd} offset:{orb + w*8*ROW}")
        I("s_waitcnt lgkmcnt(0)")
        for k in range(4):
            I(f"v_add_f32 v{vA+k}, v{vA+k}, v{vA+4+k}")
            I(f"v_add_f32 v{vA+8+k}, v{vA+8+k}, v{vA+12+k}")
        for k in range(4): I(f"v_add_f32 v{vA+k}, v{vA+k}, v{vA+8+k}")
        for k in range(4): I(f"v_bfi_b32 v{vA+k}, s{sFF}, v{vTag}, v{vA+k}")
        I(f"buffer_store_dwordx4 v[{vA}:{vA+3}], v{vOp}, s[{sW}:{sW+3}], s{s1_} offen sc1")
    project(0, LDS_ORA)
    if cfg.bearly:
        I("s_waitcnt vmcnt(1)")
    elif cfg.hint:
        I(f"s_cmp_eq_u32 s{sEarly}, 1")
        I("s_cbranch_scc1 L_early")
        part_loads(1)()
        I("s_waitcnt vmcnt(0)")
        A("L_early:")
        I("s_waitcnt vmcnt(1)")
    else:
        part_loads(1)()
        I("s_waitcnt vmcnt(0)")
    if cfg.diag == 3: stamp(3); stamp(3)
    project(1, LDS_ORB2)
    stamp(4)
    def final_reduce(tag, ahead=None):
        I(f"s_lshr_b32 s{s0_}, s2, 7")
        I(f"s_bfe_u32 s{s1_}, s2, 0x30004")
        I(f"s_bfe_u32 s{s2_}, s2, 0x20002")
        I(f"s_lshl_b32 s{s3_}, s{s0_}, 2"); I(f"s_add_u32 s{s3_}, s{s3_}, s{s2_}")
        I(f"s_lshl_b32 s{s3_}, s{s3_}, 18")
        I(f"s_lshl_b32 s{s4_}, s{s1_}, 9"); I(f"s_add_u32 s{s3_}, s{s3_}, s{s4_}")
        I(f"s_lshl_b32 s{s4_}, s{sJ}, 7"); I(f"s_add_u32 s{s3_}, s{s3_}, s{s4_}")
        I(f"s_add_u32 s{s3_}, s{s3_}, {WS_OP}")
        I(f"v_lshrrev_b32 v{vG}, 3, v{vL}")
        I(f"v_lshlrev_b32 v{vG}, 12, v{vG}")
        I(f"v_and_b32 v{vG+1}, 7, v{vL}")
        I(f"v_lshl_add_u32 v{vG}, v{vG+1}, 4, v{vG}")
        vF = vG + 8
        I(f"s_lshl_b32 s{s4_}, s{s1_}, 11")
        I(f"s_lshl_b32 s{s5_}, s{s0_}, 10"); I(f"s_add_u32 s{s4_}, s{s4_}, s{s5_}")
        I(f"s_lshl_b32 s{s5_}, s{s2_}, 8"); I(f"s_add_u32 s{s4_}, s{s4_}, s{s5_}")
        I(f"s_lshl_b32 s{s5_}, s{sJ}, 6"); I(f"s_add_u32 s{s5_}, s{s4_}, s{s5_}")
        srd(sT, sOut, 16384)
        I(f"v_lshlrev_b32 v{vG+1}, 3, v{vG+1}")
        def loads():
            I(f"s_mov_b32 s{s4_}, s{s3_}")
            for i in range(8):
                I(f"buffer_load_dwordx4 v[{vF+4*i}:{vF+4*i+3}], v{vG}, s[{sW}:{sW+3}], s{s4_} offen sc1")
                if i < 7: I(f"s_add_u32 s{s4_}, s{s4_}, 32768")
        if ahead is None and cfg.probe:
            I(f"v_lshlrev_b32 v{vG+2}, 12, v{vL}")
            def probe():
                I(f"buffer_load_dword v{vG+3}, v{vG+2}, s[{sW}:{sW+3}], s{s3_} offen sc1")
            probe()
            I("s_waitcnt vmcnt(0)")
            poll_loop(f"pr{tag}", probe, [vG+3], True)
        loads()
        if ahead is not None:
            ahead()
        else:
            I("s_waitcnt vmcnt(0)")
        if not cfg.h2mask:
            poll_loop(f"h2{tag}", loads, list(range(vF, vF+32)), False)
        else:
            mk = [4 + 2*i for i in range(8)]
            for i in range(8): I(f"s_mov_b64 s[{mk[i]}:{mk[i]+1}], -1")
            I(f"s_mov_b32 s{sTo}, {hex(cfg.TO)}")
            A(f"L_h2{tag}_chk:")
            for i in range(8):
                I(f"s_mov_b64 exec, s[{mk[i]}:{mk[i]+1}]")
                I(f"s_cbranch_execz L_h2{tag}_c{i}")
                tagbad(list(range(vF+4*i, vF+4*i+4)))
                I("s_nop 0")
                I(f"s_mov_b64 s[{mk[i]}:{mk[i]+1}], vcc")
                A(f"L_h2{tag}_c{i}:")
            I("s_mov_b64 exec, -1")
            I(f"s_or_b64 vcc, s[{mk[0]}:{mk[0]+1}], s[{mk[1]}:{mk[1]+1}]")
            for i in range(2, 8): I(f"s_or_b64 vcc, vcc, s[{mk[i]}:{mk[i]+1}]")
            I(f"s_cbranch_scc0 L_h2{tag}_ok")
            I(f"s_sub_u32 s{sTo}, s{sTo}, 1")
            I(f"s_cmp_eq_u32 s{sTo}, 0")
            I(f"s_cbranch_scc1 L_h2{tag}_ok")
            I(f"s_mov_b32 s{s4_}, s{s3_}")
            for i in range(8):
                I(f"s_mov_b64 exec, s[{mk[i]}:{mk[i]+1}]")
                I(f"s_cbranch_execz L_h2{tag}_l{i}")
                I(f"buffer_load_dwordx4 v[{vF+4*i}:{vF+4*i+3}], v{vG}, s[{sW}:{sW+3}], s{s4_} offen sc1")
                A(f"L_h2{tag}_l{i}:")
                if i < 7: I(f"s_add_u32 s{s4_}, s{s4_}, 32768")
            I("s_mov_b64 exec, -1")
            I("s_waitcnt vmcnt(0)")
            I(f"s_branch L_h2{tag}_chk")
            A(f"L_h2{tag}_ok:")
        for r in range(vF, vF+32): I(f"v_and_b32 v{r}, s{sMaskHi}, v{r}")
        for step in (16, 8, 4):
            for k in range(step): I(f"v_add_f32 v{vF+k}, v{vF+k}, v{vF+step+k}")
        I("s_nop 0")
        for k in range(4): I(f"v_add_f32_dpp v{vF+k}, v{vF+k}, v{vF+k} row_ror:8 row_mask:0xf bank_mask:0xf")
        for k in range(4): I(f"v_mov_b32 v{vF+4+k}, v{vF+k}")
        I("s_nop 1")
        for k in range(4): I(f"v_permlane16_swap_b32 v{vF+k}, v{vF+4+k}")
        I("s_nop 1")
        for k in range(4): I(f"v_add_f32 v{vF+k}, v{vF+k}, v{vF+4+k}")
        for k in range(4): I(f"v_mov_b32 v{vF+4+k}, v{vF+k}")
        I("s_nop 1")
        for k in range(4): I(f"v_permlane32_swap_b32 v{vF+k}, v{vF+4+k}")
        I("s_nop 1")
        for k in range(4): I(f"v_add_f32 v{vF+k}, v{vF+k}, v{vF+4+k}")
        I(f"v_cvt_pk_bf16_f32 v{vF+8}, v{vF}, v{vF+1}")
        I(f"v_cvt_pk_bf16_f32 v{vF+9}, v{vF+2}, v{vF+3}")
        I("s_mov_b64 exec, 0xff")
        I(f"buffer_store_dwordx2 v[{vF+8}:{vF+9}], v{vG+1}, s[{sT}:{sT+3}], s{s5_} offen")
        I("s_mov_b64 exec, -1")

    I(f"s_cmp_lg_u32 s{sWave}, 0")
    I("s_cbranch_scc1 L_fin")
    final_reduce("E")
    I("s_cmp_lg_u32 s2, 0")
    I("s_cbranch_scc1 L_fin")
    I("s_mov_b64 exec, 1")
    I(f"buffer_store_dword v{vTag}, v{vZ}, s[{sW}:{sW+3}], 0 offen offset:{WS_EPOCH} sc1")
    A("L_fin:")
    if cfg.stamps:
        I("s_mov_b64 exec, 1")
        I(f"s_memrealtime s[100:101]")
        I("s_waitcnt lgkmcnt(0)")
        I(f"s_lshl_b32 s{s0_}, s2, 2"); I(f"s_add_u32 s{s0_}, s{s0_}, s{sWave}"); I(f"s_lshl_b32 s{s0_}, s{s0_}, 7")
        I(f"s_add_u32 s{s0_}, s{s0_}, {WS_STAMP}")
        for q in range(5):
            for k in range(4): I(f"v_mov_b32 v{vG+4*q+k}, s{sStamp+4*q+k}")
            I(f"buffer_store_dwordx4 v[{vG+4*q}:{vG+4*q+3}], v{vZ}, s[{sW}:{sW+3}], s{s0_} offen offset:{16*q}")
        I(f"s_getreg_b32 s{s1_}, hwreg(HW_REG_XCC_ID)")
        I(f"s_lshl_b32 s{s2_}, s{sEnd}, 8"); I(f"s_or_b32 s{sLand0}, s{sLand0}, s{s2_}")
        I(f"v_mov_b32 v{vG+20}, s100"); I(f"v_mov_b32 v{vG+21}, s101"); I(f"v_mov_b32 v{vG+22}, s{s1_}"); I(f"v_mov_b32 v{vG+23}, s{sLand0}")
        I(f"buffer_store_dwordx4 v[{vG+20}:{vG+23}], v{vZ}, s[{sW}:{sW+3}], s{s0_} offen offset:80")
    I("s_endpgm")
    for s in range(R):
        A(f"L_rare{s}:")
        I(f"v_mov_b32 v{vTmp}, v{vS}")
        allsum(vTmp, "max")
        I(f"v_max_f32 v{vTmp}, v{vTmp}, v{vM}")
        I(f"v_sub_f32 v{vTmp2}, v{vM}, v{vTmp}")
        I(f"v_mul_f32 v{vTmp2}, s{sC}, v{vTmp2}")
        I(f"v_exp_f32 v{vTmp2}, v{vTmp2}")
        I(f"v_mov_b32 v{vM}, v{vTmp}")
        I(f"v_mul_f32 v{vMC}, s{sC}, v{vTmp}")
        I(f"v_mul_f32 v{vLs}, v{vLs}, v{vTmp2}")
        for k in range(8): I(f"v_mul_f32 v{vAcc+k}, v{vAcc+k}, v{vTmp2}")
        I(f"s_branch L_cont{s}")
    if R == 8:
        A("L_br0:")
        for slot in (5, 6, 7):
            I(f"s_cmp_eq_u32 s{sLate}, {slot+8}")
            I(f"s_cbranch_scc1 L_br0_{slot}")
        I("s_branch L_noiss0")
        for slot in (5, 6, 7):
            A(f"L_br0_{slot}:")
            I(f"s_mov_b32 s{sLate}, 0")
            issue_tile(slot, "A")
            I("s_branch L_noiss0")
    for s, slot in late_steps.items():
        A(f"L_late{s}:")
        issue_tile(slot, "A" if R == 4 else None)
        I(f"s_branch L_noiss{s}")
    for s in range(R):
        A(f"L_wait{s}:")
        for d in (1, 2, 3):
            if d == W: continue
            I(f"s_cmp_eq_u32 s{s0_}, {d}")
            I(f"s_cbranch_scc1 L_wait{s}_{d}")
        I("s_waitcnt vmcnt(24)")
        I(f"s_branch L_nowait{s}")
        for d in (1, 2, 3):
            if d == W: continue
            A(f"L_wait{s}_{d}:")
            I(f"s_waitcnt vmcnt({8*(d-1)})")
            I(f"s_branch L_nowait{s}")
    for s in range(R):
        A(f"L_dyn{s}:")
        I(f"s_cmp_lt_u32 s{sIss}, {NST}")
        I(f"s_cbranch_scc1 L_claim{s}")
        I(f"s_cmp_lg_u32 s{sEnd}, -1")
        I(f"s_cbranch_scc1 L_noiss{s}")
        I(f"v_readfirstlane_b32 s{s1_}, v{vClaim}")
        I("s_nop 1")
        I(f"s_add_u32 s{s1_}, s{s1_}, {16*SB}")
        if cfg.apre:
            I(f"s_cmp_lt_u32 s{s1_}, {512 - cfg.preN}")
            I(f"s_cbranch_scc1 L_got{s}")
            I(f"s_cmp_lg_u32 s{sPre}, 0")
            I(f"s_cbranch_scc1 L_nopre{s}")
            I(f"s_mov_b32 s{sPre}, 1")
            wo_loads(0)
            part_loads(0)()
            A(f"L_nopre{s}:")
        I(f"s_cmp_lt_u32 s{s1_}, 512")
        I(f"s_cbranch_scc1 L_got{s}")
        I(f"s_mov_b32 s{sEnd}, s{sIss}")
        I(f"s_branch L_noiss{s}")
        A(f"L_got{s}:")
        I(f"s_lshl_b32 s{s1_}, s{s1_}, 12")
        I(f"s_add_u32 s{sOff}, s{sPair}, s{s1_}")
        A(f"L_claim{s}:")
        I(f"v_mov_b32 v{vClaim}, 1")
        I("s_mov_b64 exec, 1")
        I(f"buffer_atomic_add v{vClaim}, v{vZ}, s[{sW}:{sW+3}], s{sCnt} offen sc0 sc1")
        I("s_mov_b64 exec, -1")
        I(f"s_branch L_loads{s}")
    for (u, slot, pa) in late_blocks:
        A(f"L_ia{u}:")
        tile_loads(slot, *pa)
        I(f"s_branch L_ib{u}")
    A("L_end:")
    I("s_endpgm")
    A('.section .rodata,"a"'); A(".p2align 6"); A(f".amdhsa_kernel {KNAME}")
    I(f".amdhsa_next_free_vgpr {NV + 32*R}")
    I(f".amdhsa_next_free_sgpr {NS}")
    I(f".amdhsa_accum_offset {NV}")
    I(".amdhsa_group_segment_fixed_size 0")
    I(".amdhsa_kernarg_size 104")
    I(".amdhsa_user_sgpr_count 2")
    I(".amdhsa_user_sgpr_kernarg_segment_ptr 1")
    I(".amdhsa_system_sgpr_workgroup_id_x 1")
    I(".amdhsa_float_denorm_mode_32 3")
    A(".end_amdhsa_kernel")
    return "\n".join(L) + "\n"

if __name__ == "__main__":
    out = sys.argv[1]
    cfg = Cfg()
    for kv in sys.argv[2:]:
        k, v = kv.split("=")
        cur = getattr(cfg, k)
        setattr(cfg, k, (v not in ("0", "False")) if isinstance(cur, bool) else (int(v, 0) if isinstance(cur, int) else v))
    open(out, "w").write(gen(cfg))
```

```python
import sys, math, struct
KNAME = "concat_heads__sliding_block_cached__gqa_block_cached__decode_kernel"

class Cfg:
    stamps = False
    fAk = "nt"; fAv = "nt"; fBk = "nt"; fBv = "nt"
    fWq = "nt"; fWoA = "nt"; fWoB = "nt"
    R = 4
    W = 1
    SB = 24
    TO = 0x40000
    diag = 0
    ahead = 1
    t0at = 'w2'
    t1at = 'post'
    codepf = True
    bpos = 'bar'
    qbdefer = True
    gate1 = True
    gate2 = True
    g1early = True
    gto = 4096
    hint = False
    hintN = 60
    apre = True
    preN = 0
    bearly = False
    xmix = False
    woearly = True
    h2mask = False
    probe = False
    swbar = False
    masked = True
    wexcl = False

WS_EPOCH = 0
WS_CNT  = 0x008000
WS_QP   = 0x010000
WS_PO   = 0x110000
WS_PML  = 0x210000
WS_OP   = 0x220000
WS_R1   = 0x00C000
WS_R2   = 0x420000
WS_STAMP = 0x500000
WS_SIZE = 0x600000

ROW = 196*4
LDS_QR  = 0
LDS_PRA = 0
LDS_MLA = 12544
LDS_PRB = 12800
LDS_MLB = 25344
LDS_ORB = 25600
LDS_ORB2 = 0
LDS_QX  = 25600
LDS_ORA = 25600
LDS_CNT = 25600 + 25088
LDS_SIZE = LDS_CNT + 16

C_SCALE = math.log2(math.e)/math.sqrt(128.0)
def f32bits(x): return struct.unpack("<I", struct.pack("<f", x))[0]
def pol(x): return "" if x == "def" else x.replace("+", " ")

def gen(cfg):
    L = []
    def A(s): L.append(s)
    def I(s): L.append("  " + s)
    R, W, SB = cfg.R, cfg.W, cfg.SB
    assert R in (4, 8) and W == 1
    NST = 8 + SB
    assert 8 + cfg.ahead < NST - 1

    sAx, sAk, sAv, sAwq, sAwo, sBx, sBk, sBv = 4, 6, 8, 10, 12, 14, 16, 18
    sBwq, sBwo, sOut, sDbg = 20, 22, 24, 26
    sWs = 28
    sPc = 30
    sK, sV, sW, sT, sT2 = 32, 36, 40, 44, 48
    sWave = 52; sOff = 53; sOffB = 54; sIss = 55; sLand = 56; sI = 57; sLate = 58
    sC = 59; sFF = 60; sMaskHi = 61
    s0_, s1_, s2_, s3_, s4_, s5_ = 62, 63, 64, 65, 66, 67
    sTo = 68; sStep = 69; sB, sG, sJ = 70, 71, 72
    sLand0 = 73; sPair = 74; sEnd = 75
    sStamp = 76
    sQ0, sQ1 = 100, 101
    sR2P = 9
    sRdyP = 20; sRdyC = 21; sEarly = 22
    sTl = 27; sPre = 31; sJa = 30
    sCnt = 96; sO = [97, 98, 99]; sWoOff = 26
    NS = 102

    vL = 1; vOffK = 2; vOffV = 3; vLdsW = 4; vTag = 5
    vM, vMC, vLs, vRd, vClaim = 6, 7, 8, 9, 10
    vS, vP, vPlo, vPhi, vTmp, vTmp2 = 11, 12, 13, 14, 15, 16
    vMask0, vMask1 = 17, 18
    vZ = 19
    vQ = 20; vQB = 24
    vAcc = 28
    vPo, vPm, vOp, vWo = 36, 37, 38, 39
    vBp = 44
    vD = 52
    vG = 68
    NV = 128

    def srd(q, ptr, size):
        I(f"s_mov_b32 s{q}, s{ptr}")
        I(f"s_and_b32 s{q+1}, s{ptr+1}, 0xffff")
        I(f"s_mov_b32 s{q+2}, {hex(size)}")
        I(f"s_mov_b32 s{q+3}, 0x20000")
    stamp_n = [0]
    def stamp(level=0):
        if not cfg.stamps: return
        if cfg.diag == 0 and level not in (0, 2, 4): return
        if cfg.diag == 1 and level not in (1, 2): return
        if cfg.diag == 3 and level not in (3, 4): return
        if cfg.diag == 5 and level != 5: return
        if cfg.diag == 6: return
        if cfg.diag == 7 and level not in (4, 7): return
        n = stamp_n[0]; stamp_n[0] += 1
        assert n < 10
        I(f"s_memrealtime s[{sStamp+2*n}:{sStamp+2*n+1}]")
    def tagcheck(regs, okl):
        I(f"v_xor_b32 v{vTmp}, v{regs[0]}, v{vTag}")
        for r in regs[1:]:
            I(f"v_bitop3_b32 v{vTmp}, v{vTmp}, v{r}, v{vTag} bitop3:0xf6")
        I(f"v_and_b32 v{vTmp}, 0xff, v{vTmp}")
        I(f"v_cmp_ne_u32 vcc, 0, v{vTmp}")
        I(f"s_cbranch_vccz {okl}")
    def tagbad(regs, full=()):
        I(f"v_xor_b32 v{vTmp}, v{regs[0]}, v{vTag}")
        for r in regs[1:]:
            I(f"v_bitop3_b32 v{vTmp}, v{vTmp}, v{r}, v{vTag} bitop3:0xf6")
        I(f"v_and_b32 v{vTmp}, 0xff, v{vTmp}")
        for r in full:
            I(f"v_bitop3_b32 v{vTmp}, v{vTmp}, v{r}, v{vTag} bitop3:0xf6")
        I(f"v_cmp_ne_u32 vcc, 0, v{vTmp}")
    def poll_loop(name, loads, regs, masked, full=()):
        I(f"s_mov_b32 s{sTo}, {hex(cfg.TO)}")
        A(f"L_{name}_chk:")
        tagbad(regs, full)
        I(f"s_cbranch_vccz L_{name}_ok")
        I(f"s_sub_u32 s{sTo}, s{sTo}, 1")
        I(f"s_cmp_eq_u32 s{sTo}, 0")
        I(f"s_cbranch_scc1 L_{name}_ok")
        if masked: I("s_mov_b64 exec, vcc")
        loads()
        I("s_waitcnt vmcnt(0)")
        I(f"s_branch L_{name}_chk")
        A(f"L_{name}_ok:")
        if masked: I("s_mov_b64 exec, -1")
    def arrive(idx, notlast):
        I(f"v_mov_b32 v{vTmp}, 1")
        I("s_mov_b64 exec, 1")
        I(f"ds_add_rtn_u32 v{vTmp}, v{vZ}, v{vTmp} offset:{LDS_CNT + 4*idx}")
        I("s_mov_b64 exec, -1")
        I("s_waitcnt lgkmcnt(0)")
        I(f"v_readfirstlane_b32 s{s0_}, v{vTmp}")
        I("s_nop 1")
        I(f"s_cmp_lg_u32 s{s0_}, 3")
        I(f"s_cbranch_scc1 {notlast}")
    def allsum(v, op="add"):
        o = f"v_{op}_f32"
        I("s_nop 1")
        I(f"{o}_dpp v{v}, v{v}, v{v} row_ror:4 row_mask:0xf bank_mask:0xf")
        I("s_nop 1")
        I(f"{o}_dpp v{v}, v{v}, v{v} row_ror:8 row_mask:0xf bank_mask:0xf")
        I(f"v_mov_b32 v{vTmp2}, v{v}")
        I("s_nop 1")
        I(f"v_permlane16_swap_b32 v{v}, v{vTmp2}")
        I("s_nop 1")
        I(f"{o} v{v}, v{v}, v{vTmp2}")
        I(f"v_mov_b32 v{vTmp2}, v{v}")
        I("s_nop 1")
        I(f"v_permlane32_swap_b32 v{v}, v{vTmp2}")
        I("s_nop 1")
        I(f"{o} v{v}, v{v}, v{vTmp2}")

    A(f"; @launch grid=(256,1,1) block=(256,1,1) lds={LDS_SIZE}")
    A('.amdgcn_target "amdgcn-amd-amdhsa--gfx950"')
    A(".text"); A(f".globl {KNAME}"); A(".p2align 8"); A(f".type {KNAME},@function"); A(f"{KNAME}:")
    I("s_cmp_ge_u32 s2, 256")
    I("s_cbranch_scc1 L_end")
    stamp(2)
    if cfg.diag in (3, 5, 6, 7) and cfg.stamps: I(f"s_memrealtime s[{sStamp}:{sStamp+1}]"); stamp_n[0] = 1
    I(f"s_load_dwordx16 s[4:19], s[0:1], 0")
    I(f"s_load_dwordx8 s[20:27], s[0:1], 64")
    I(f"s_load_dwordx2 s[28:29], s[0:1], 96")
    I(f"s_getpc_b64 s[{sPc}:{sPc+1}]")
    A("L_pc:")
    I(f"v_lshlrev_b32 v{vTmp}, 7, v0")
    I(f"v_min_u32 v{vTmp}, L_end-L_pc, v{vTmp}")
    if cfg.codepf: I(f"global_load_dword v{vTmp2}, v{vTmp}, s[{sPc}:{sPc+1}]")
    I(f"v_and_b32 v{vL}, 63, v0")
    I(f"v_lshrrev_b32 v{vS}, 6, v0")
    I(f"v_mov_b32 v{vZ}, 0")
    I(f"v_readfirstlane_b32 s{sWave}, v{vS}")
    I(f"v_bfe_u32 v{vP}, v{vL}, 2, 2")
    I(f"v_lshrrev_b32 v{vPlo}, 4, v{vL}")
    I(f"v_and_b32 v{vPhi}, 3, v{vL}")
    I(f"v_and_b32 v{vM}, 15, v{vL}")
    I(f"v_lshlrev_b32 v{vOffV}, 4, v{vL}")
    I(f"v_lshlrev_b32 v{vOffK}, 8, v{vP}")
    I(f"v_lshl_add_u32 v{vOffK}, v{vPlo}, 6, v{vOffK}")
    I(f"v_lshl_add_u32 v{vOffK}, v{vPhi}, 4, v{vOffK}")
    vWoff, vXoff = vG, vG+1
    I(f"v_lshlrev_b32 v{vWoff}, 16, v{vPlo}")
    I(f"v_lshl_add_u32 v{vWoff}, v{vM}, 4, v{vWoff}")
    I(f"v_lshlrev_b32 v{vXoff}, 10, v{vPhi}")
    I(f"v_lshl_add_u32 v{vXoff}, v{vPlo}, 4, v{vXoff}")
    if cfg.xmix:
        I(f"s_and_b32 s{s0_}, s2, 7")
        I(f"s_bcnt1_i32_b32 s{s1_}, s{s0_}")
        I(f"s_and_b32 s{s1_}, s{s1_}, 1")
        I(f"s_lshr_b32 s{sJa}, s{s0_}, 1")
        I(f"s_lshr_b32 s{sPair}, s2, 3")
        I(f"s_lshl_b32 s{sPair}, s{sPair}, 1")
        I(f"s_or_b32 s{sPair}, s{sPair}, s{s1_}")
    else:
        I(f"s_and_b32 s{sJa}, s2, 3")
        I(f"s_lshr_b32 s{sPair}, s2, 2")
    I(f"s_lshr_b32 s{sB}, s{sPair}, 3")
    I(f"s_and_b32 s{sG}, s{sPair}, 7")
    I(f"s_and_b32 s{sJ}, s2, 3")
    I(f"s_lshl_b32 s{sCnt}, s{sPair}, 8")
    I(f"s_add_u32 s{sCnt}, s{sCnt}, {WS_CNT}")
    I(f"s_lshl_b32 s{sPair}, s{sPair}, 21")
    I(f"s_lshl_b32 s{s1_}, s{sJa}, 2")
    I(f"s_add_u32 s{s1_}, s{s1_}, s{sWave}")
    I(f"s_lshl_b32 s{s0_}, s{s1_}, 12")
    I(f"s_add_u32 s{sOffB}, s{sPair}, s{s0_}")
    I(f"s_lshl_b32 s{s1_}, s{sJ}, 2")
    I(f"s_add_u32 s{s1_}, s{s1_}, s{sWave}")
    I(f"s_lshl_b32 s{s0_}, s{sWave}, 12")
    I(f"s_add_u32 s{sOff}, s{sPair}, s{s0_}")
    I(f"s_lshl_b32 s{s0_}, s{sJa}, 17")
    I(f"s_add_u32 s{sOff}, s{sOff}, s{s0_}")
    I(f"s_add_u32 s{sOff}, s{sOff}, {6144*256}")
    I(f"s_lshl_b32 s{s2_}, s{s1_}, 18")
    I(f"s_bfe_u32 s{s3_}, s2, 0x50002")
    I(f"s_lshl_b32 s{s3_}, s{s3_}, 8")
    I(f"s_add_u32 s{s2_}, s{s2_}, s{s3_}")
    I(f"s_lshl_b32 s{s1_}, s{s1_}, 6")
    I("s_waitcnt lgkmcnt(0)")
    stamp(2)
    srd(sW, sWs, WS_SIZE)
    I(f"buffer_load_dword v{vTag}, v{vZ}, s[{sW}:{sW+3}], 0 offen offset:{WS_EPOCH} sc1")
    I(f"s_and_b32 s{s0_}, s2, 0x8f")
    I(f"s_or_b32 s{s0_}, s{s0_}, s{sWave}")
    I(f"s_cmp_lg_u32 s{s0_}, 0")
    I("s_cbranch_scc1 L_nocnt")
    I(f"s_lshr_b32 s{s0_}, s2, 4")
    I(f"s_lshl_b32 s{s0_}, s{s0_}, 8")
    I(f"s_add_u32 s{s0_}, s{s0_}, {WS_CNT}")
    I(f"v_lshlrev_b32 v{vTmp}, 11, v{vL}")
    I("s_mov_b64 exec, 0xff")
    I(f"buffer_store_dword v{vZ}, v{vTmp}, s[{sW}:{sW+3}], s{s0_} offen sc1")
    I(f"s_lshr_b32 s{s0_}, s2, 4")
    I(f"s_lshl_b32 s{s3_}, s{s0_}, 11"); I(f"s_add_u32 s{s3_}, s{s3_}, {WS_R1}")
    I(f"v_lshlrev_b32 v{vTmp}, 8, v{vL}")
    I(f"buffer_store_dword v{vZ}, v{vTmp}, s[{sW}:{sW+3}], s{s3_} offen sc1")
    I(f"s_lshl_b32 s{s3_}, s{s0_}, 8"); I(f"s_add_u32 s{s3_}, s{s3_}, {WS_R2}")
    I(f"v_lshlrev_b32 v{vTmp}, 11, v{vL}")
    I("s_mov_b64 exec, 0xf")
    I(f"buffer_store_dword v{vZ}, v{vTmp}, s[{sW}:{sW+3}], s{s3_} offen sc1")
    I("s_mov_b64 exec, -1")
    A("L_nocnt:")
    I(f"s_cmp_lt_u32 s2, 128")
    I(f"s_cselect_b32 s{sT}, s{sAx}, s{sBx}")
    I(f"s_cselect_b32 s{sT+1}, s{sAx+1}, s{sBx+1}")
    I(f"s_cselect_b32 s{sT2}, s{sAwq}, s{sBwq}")
    I(f"s_cselect_b32 s{sT2+1}, s{sAwq+1}, s{sBwq+1}")
    I(f"s_and_b32 s{sT+1}, s{sT+1}, 0xffff")
    I(f"s_and_b32 s{sT2+1}, s{sT2+1}, 0xffff")
    I(f"s_mov_b32 s{sT+2}, 8192"); I(f"s_mov_b32 s{sT+3}, 0x20000")
    I(f"s_mov_b32 s{sT2+2}, 0x400000"); I(f"s_mov_b32 s{sT2+3}, 0x20000")
    vX = vG + 2
    I(f"buffer_load_dwordx4 v[{vX}:{vX+3}], v{vXoff}, s[{sT}:{sT+3}], s{s1_} offen")
    I(f"s_add_u32 s{s1_}, s{s1_}, 4096")
    I(f"buffer_load_dwordx4 v[{vX+4}:{vX+7}], v{vXoff}, s[{sT}:{sT+3}], s{s1_} offen")
    WSLOT = R - 1
    for t in range(8):
        a = WSLOT*32 + 4*t
        I(f"buffer_load_dwordx4 a[{a}:{a+3}], v{vWoff}, s[{sT2}:{sT2+3}], s{s2_} offen {pol(cfg.fWq)}")
        if t < 7: I(f"s_add_u32 s{s2_}, s{s2_}, 8192")
    srd(sK, sAk, 0x8000000)
    srd(sV, sAv, 0x8000000)
    I(f"s_mov_b32 s{sIss}, 0")
    I(f"s_mov_b32 s{sStep}, 16384")
    I(f"s_and_b32 s{sBk+1}, s{sBk+1}, 0xffff")
    I(f"s_and_b32 s{sBv+1}, s{sBv+1}, 0xffff")

    late_blocks = []; uniq = [0]
    def tile_loads(slot, fk, fv):
        for t in range(4):
            a = slot*32 + 4*t
            I(f"buffer_load_dwordx4 a[{a}:{a+3}], v{vOffK}, s[{sK}:{sK+3}], s{sOff} offen offset:{t*1024} {fk}")
        for t in range(4):
            a = slot*32 + 16 + 4*t
            I(f"buffer_load_dwordx4 a[{a}:{a+3}], v{vOffV}, s[{sV}:{sV+3}], s{sOff} offen offset:{t*1024} {fv}")
    def issue_tile(slot, phase=None):
        pa = (pol(cfg.fAk), pol(cfg.fAv)); pb = (pol(cfg.fBk), pol(cfg.fBv))
        if phase == "A" or pa == pb:
            tile_loads(slot, *pa)
        else:
            u = uniq[0]; uniq[0] += 1
            I(f"s_cmp_lt_u32 s{sIss}, 8")
            I(f"s_cbranch_scc1 L_ia{u}")
            tile_loads(slot, *pb)
            A(f"L_ib{u}:")
            late_blocks.append((u, slot, pa))
        I(f"s_add_u32 s{sOff}, s{sOff}, s{sStep}")
        I(f"s_add_u32 s{sIss}, s{sIss}, 1")
        I(f"s_cmp_eq_u32 s{sIss}, 8")
        I(f"s_cselect_b32 s{sOff}, s{sOffB}, s{sOff}")
        I(f"s_cselect_b32 s{sStep}, 0x10000, s{sStep}")
        I(f"s_cselect_b32 s{sK}, s{sBk}, s{sK}")
        I(f"s_cselect_b32 s{sK+1}, s{sBk+1}, s{sK+1}")
        I(f"s_cselect_b32 s{sV}, s{sBv}, s{sV}")
        I(f"s_cselect_b32 s{sV+1}, s{sBv+1}, s{sV+1}")

    if cfg.t0at == "pre": issue_tile(0, "A")
    I(f"s_mov_b32 s{sC}, {hex(f32bits(C_SCALE))}")
    I(f"s_mov_b32 s{sFF}, 0xff")
    I(f"s_mov_b32 s{sMaskHi}, 0xffffff00")
    I(f"v_mul_u32_u24 v{vLdsW}, 196, v{vPhi}")
    I(f"v_mad_u32_u24 v{vLdsW}, v{vPlo}, 48, v{vLdsW}")
    I(f"v_add_lshl_u32 v{vLdsW}, v{vLdsW}, v{vP}, 2")
    I(f"v_lshrrev_b32 v{vRd}, 5, v0")
    I(f"v_mul_u32_u24 v{vRd}, 196, v{vRd}")
    I(f"v_bfe_u32 v{vTmp}, v0, 3, 2")
    I(f"v_mad_u32_u24 v{vRd}, v{vTmp}, 48, v{vRd}")
    I(f"v_and_b32 v{vTmp}, 7, v0")
    I(f"v_lshl_add_u32 v{vRd}, v{vTmp}, 2, v{vRd}")
    I(f"v_lshlrev_b32 v{vRd}, 2, v{vRd}")
    vSel = vG + 10
    def pick(dst, r, lo, hi, other):
        I(f"v_mov_b32 v{dst}, {hex(other)}")
        I(f"v_mov_b32 v{vTmp}, {hex(lo)}")
        I(f"v_cmp_eq_u32 vcc, {2*r}, v{vP}")
        I(f"s_nop 1")
        I(f"v_cndmask_b32 v{dst}, v{dst}, v{vTmp}, vcc")
        I(f"v_mov_b32 v{vTmp}, {hex(hi)}")
        I(f"v_cmp_eq_u32 vcc, {2*r+1}, v{vP}")
        I(f"s_nop 1")
        I(f"v_cndmask_b32 v{dst}, v{dst}, v{vTmp}, vcc")
    for r in range(2):
        pick(vSel + 2*r + 0, r, 0x0c0c0100, 0x01000c0c, 0x0c0c0c0c)
        pick(vSel + 2*r + 1, r, 0x0c0c0302, 0x03020c0c, 0x0c0c0c0c)
    pick(vMask0, 0, 0xffff, 0xffff0000, 0)
    pick(vMask1, 1, 0xffff, 0xffff0000, 0)
    for k in range(8): I(f"v_mov_b32 v{vBp+k}, 0")
    I(f"v_lshlrev_b32 v{vTmp}, 2, v{vL}")
    I("s_mov_b64 exec, 3")
    I(f"ds_write_b32 v{vTmp}, v{vZ} offset:{LDS_CNT}")
    I("s_mov_b64 exec, -1")
    t0t = {"pre": -1, "post": 99}.get(cfg.t0at, None)
    if t0t is None: t0t = int(cfg.t0at[1:])
    if t0t == -1:
        I("s_waitcnt vmcnt(15)")
    else:
        I("s_waitcnt vmcnt(7)")
        if t0t == 0: issue_tile(0, "A")
    I(f"v_add_u32 v{vTag}, 1, v{vTag}")
    vQacc = vG + 16
    vXB = vG + 32
    for t in range(8):
        bs = vXB + (t & 1)*4
        if t > 0:
            I(f"s_waitcnt vmcnt({7 - t + (8 if t0t < t else 0)})")
            if t == t0t: issue_tile(0, "A")
            if t == 7:
                stamp(2)
                if cfg.t1at == "w7": issue_tile(1, "A")
                stamp(1)
        for m in range(2):
            for r in range(2):
                I(f"v_perm_b32 v{bs+2*m+r}, v{vX+4*m+(t>>1)}, v{vX+4*m+(t>>1)}, v{vSel+2*r+(t&1)}")
        for m in range(2):
            for h in range(2):
                d = vQacc + (m*2+h)*4
                a = WSLOT*32 + 4*t + 2*h
                c = "0" if t == 0 else f"v[{d}:{d+3}]"
                I(f"v_mfma_f32_16x16x16_bf16 v[{d}:{d+3}], a[{a}:{a+1}], v[{bs+2*m}:{bs+2*m+1}], {c}")
    I(f"s_mul_i32 s{s0_}, s{sWave}, {8*ROW}")
    I(f"v_add_u32 v{vTmp}, s{s0_}, v{vLdsW}")
    I(f"s_lshr_b32 s{s0_}, s2, 4")
    I(f"s_lshl_b32 s{s0_}, s{s0_}, 2")
    I(f"s_add_u32 s{s0_}, s{s0_}, s{sJ}")
    I(f"s_lshl_b32 s{s0_}, s{s0_}, 14")
    I(f"s_bfe_u32 s{s1_}, s2, 0x20002")
    I(f"s_lshl_b32 s{s1_}, s{s1_}, 9")
    I(f"s_add_u32 s{s0_}, s{s0_}, s{s1_}")
    I(f"s_add_u32 s{s0_}, s{s0_}, {WS_QP}")
    for m in range(2):
        for h in range(2):
            for r in range(4):
                I(f"ds_write_b32 v{vTmp}, v{vQacc+(m*2+h)*4+r} offset:{LDS_QR + m*4*ROW + (8*r+4*h)*4}")
    I(f"v_lshrrev_b32 v{vTmp}, 5, v0")
    I(f"v_lshlrev_b32 v{vTmp}, 11, v{vTmp}")
    I(f"v_and_b32 v{vTmp2}, 31, v0")
    I(f"v_lshl_add_u32 v{vTmp}, v{vTmp2}, 4, v{vTmp}")
    I("s_waitcnt lgkmcnt(0)")
    stamp(1)
    I("s_barrier")
    stamp(1)
    vR = vG + 44
    for w in range(4):
        I(f"ds_read_b128 v[{vR+4*w}:{vR+4*w+3}], v{vRd} offset:{LDS_QR + w*8*ROW}")
    vQoff = vG + 41
    I(f"v_lshlrev_b32 v{vQoff}, 9, v{vPhi}")
    I(f"v_lshl_add_u32 v{vQoff}, v{vPlo}, 7, v{vQoff}")
    I(f"v_lshl_add_u32 v{vQoff}, v{vP}, 5, v{vQoff}")
    I(f"s_lshl_b32 s{s2_}, s{sG}, 2")
    I(f"s_add_u32 s{s2_}, s{s2_}, s{sWave}")
    I(f"s_lshl_b32 s{s2_}, s{s2_}, 3")
    I(f"s_add_u32 s{s2_}, s{s2_}, s{sB}")
    I(f"s_lshl_b32 s{s2_}, s{s2_}, 11")
    I(f"s_add_u32 s{sQ0}, s{s2_}, {WS_QP}")
    I(f"s_add_u32 s{sQ1}, s{sQ0}, 0x80000")
    I("s_waitcnt lgkmcnt(0)")
    for k in range(4):
        I(f"v_add_f32 v{vR+k}, v{vR+k}, v{vR+4+k}")
        I(f"v_add_f32 v{vR+8+k}, v{vR+8+k}, v{vR+12+k}")
    for k in range(4): I(f"v_add_f32 v{vR+k}, v{vR+k}, v{vR+8+k}")
    for k in range(4): I(f"v_bfi_b32 v{vR+k}, s{sFF}, v{vTag}, v{vR+k}")
    I(f"buffer_store_dwordx4 v[{vR}:{vR+3}], v{vTmp}, s[{sW}:{sW+3}], s{s0_} offen sc1")
    stamp(2)
    vQL = vG + 16
    def qpoll_loads():
        I(f"buffer_load_dwordx4 v[{vQL}:{vQL+3}], v{vQoff}, s[{sW}:{sW+3}], s{sQ0} offen sc1")
        I(f"buffer_load_dwordx4 v[{vQL+4}:{vQL+7}], v{vQoff}, s[{sW}:{sW+3}], s{sQ0} offen offset:16 sc1")
        I(f"buffer_load_dwordx4 v[{vQL+8}:{vQL+11}], v{vQoff}, s[{sW}:{sW+3}], s{sQ1} offen sc1")
        I(f"buffer_load_dwordx4 v[{vQL+12}:{vQL+15}], v{vQoff}, s[{sW}:{sW+3}], s{sQ1} offen offset:16 sc1")
    qregs = list(range(vQL, vQL+16))
    def init_state():
        for k in range(8): I(f"v_mov_b32 v{vAcc+k}, 0")
        I(f"v_mov_b32 v{vM}, 0xff800000")
        I(f"v_mov_b32 v{vMC}, 0xff800000")
        I(f"v_mov_b32 v{vLs}, 0")
    I(f"s_mov_b32 s{sLate}, 0")
    if t0t == 99: issue_tile(0, "A")
    if cfg.t1at == "post": issue_tile(1, "A")
    def idle_setup():
        def init_state():
            for k in range(8): I(f"v_mov_b32 v{vAcc+k}, 0")
            I(f"v_mov_b32 v{vM}, 0xff800000")
            I(f"v_mov_b32 v{vMC}, 0xff800000")
            I(f"v_mov_b32 v{vLs}, 0")
        init_state()
        I(f"v_and_b32 v{vTmp}, 3, v{vL}")
        I(f"v_bfe_u32 v{vTmp2}, v{vL}, 2, 2")
        I(f"v_lshlrev_b32 v{vPo}, 13, v{vTmp}")
        I(f"v_lshl_add_u32 v{vPo}, v{vTmp2}, 11, v{vPo}")
        I(f"v_lshlrev_b32 v{vPm}, 7, v{vTmp}")
        I(f"v_lshl_add_u32 v{vPm}, v{vTmp2}, 5, v{vPm}")
        I(f"v_lshrrev_b32 v{vTmp}, 4, v{vL}")
        I(f"v_lshl_add_u32 v{vPo}, v{vTmp}, 4, v{vPo}")
        I(f"v_lshlrev_b32 v{vWo}, 12, v{vTmp}")
        I(f"v_and_b32 v{vTmp2}, 15, v{vL}")
        I(f"v_lshl_add_u32 v{vWo}, v{vTmp2}, 4, v{vWo}")
        I(f"s_lshr_b32 s{s0_}, s2, 5")
        I(f"s_bfe_u32 s{s1_}, s2, 0x20003")
        I(f"s_bfe_u32 s{s2_}, s2, 0x10002")
        I(f"s_lshl_b32 s{s3_}, s{s0_}, 16")
        I(f"s_lshl_b32 s{s4_}, s{s1_}, 9"); I(f"s_add_u32 s{s3_}, s{s3_}, s{s4_}")
        I(f"s_lshl_b32 s{s4_}, s{s2_}, 8"); I(f"s_add_u32 s{s3_}, s{s3_}, s{s4_}")
        I(f"s_lshl_b32 s{s4_}, s{sWave}, 6"); I(f"s_add_u32 s{s3_}, s{s3_}, s{s4_}")
        I(f"s_add_u32 s{sO[0]}, s{s3_}, {WS_PO}")
        I(f"s_lshl_b32 s{s4_}, s{s0_}, 10")
        I(f"s_lshl_b32 s{s5_}, s{s1_}, 3"); I(f"s_add_u32 s{s4_}, s{s4_}, s{s5_}")
        I(f"s_add_u32 s{sO[1]}, s{s4_}, {WS_PML}")
        I(f"v_lshrrev_b32 v{vOp}, 5, v0")
        I(f"v_lshlrev_b32 v{vOp}, 9, v{vOp}")
        I(f"v_and_b32 v{vTmp}, 31, v0")
        I(f"v_lshl_add_u32 v{vOp}, v{vTmp}, 4, v{vOp}")
        I(f"s_lshr_b32 s{s0_}, s2, 2")
        I(f"s_lshl_b32 s{s1_}, s{sJ}, 6")
        I(f"s_add_u32 s{s1_}, s{s0_}, s{s1_}")
        I(f"s_lshl_b32 s{s1_}, s{s1_}, 12")
        I(f"s_add_u32 s{sO[2]}, s{s1_}, {WS_OP}")
        I(f"s_lshl_b32 s{s0_}, s{s0_}, 2"); I(f"s_add_u32 s{s0_}, s{s0_}, s{sWave}")
        I(f"s_lshl_b32 s{s0_}, s{s0_}, 14")
        I(f"s_lshl_b32 s{s1_}, s{sJ}, 8"); I(f"s_add_u32 s{sWoOff}, s{s0_}, s{s1_}")
        srd(sT, sAwo, 0x400000)
        srd(sT2, sBwo, 0x400000)
        I(f"s_lshl_b32 s{sRdyP}, s{sG}, 11"); I(f"s_add_u32 s{sRdyP}, s{sRdyP}, {WS_R1}")
        I(f"s_lshr_b32 s{sRdyC}, s2, 5"); I(f"s_lshl_b32 s{sRdyC}, s{sRdyC}, 3")
        I(f"s_and_b32 s{s0_}, s2, 1"); I(f"s_lshl_b32 s{s0_}, s{s0_}, 2"); I(f"s_add_u32 s{s0_}, s{s0_}, s{sWave}")
        I(f"s_add_u32 s{sRdyC}, s{sRdyC}, s{s0_}"); I(f"s_lshl_b32 s{sRdyC}, s{sRdyC}, 8"); I(f"s_add_u32 s{sRdyC}, s{sRdyC}, {WS_R1}")
        I(f"s_lshl_b32 s{sR2P}, s{sJ}, 3"); I(f"s_add_u32 s{sR2P}, s{sR2P}, s{sG}")
        I(f"s_lshl_b32 s{sR2P}, s{sR2P}, 8"); I(f"s_add_u32 s{sR2P}, s{sR2P}, {WS_R2}")

    for k in range(2, R):
        qpoll_loads(); issue_tile(k, "A")
        if k == 2: idle_setup()
        I(f"s_mov_b32 s{sLand}, {k}")
        I("s_waitcnt vmcnt(8)")
        if k == 2: stamp(1)
        tagcheck(qregs, f"L_qok{k}")
    I(f"s_mov_b32 s{sLand}, {R}")
    I(f"s_mov_b32 s{sLate}, 1")
    qpoll_loads()
    I("s_waitcnt vmcnt(0)")
    poll_loop("qp", qpoll_loads, qregs, cfg.masked)
    I("s_branch L_qok")
    for k in range(R-1, 1, -1):
        A(f"L_qok{k}:")
        if R == 4:
            if k == 2: issue_tile(3, "A")
            I(f"s_mov_b32 s{sLate}, 1")
        else:
            for n_ in (k+1, k+2):
                if n_ < R: issue_tile(n_, "A")
            if k + 2 >= R - 1: I(f"s_mov_b32 s{sLate}, 1")
            else: I(f"s_mov_b32 s{sLate}, {k+3+8}")
        if k > 2: I("s_branch L_qok")
    A("L_qok:")
    stamp(2)
    if cfg.stamps: I(f"s_mov_b32 s{sLand0}, s{sLand}")
    for r in qregs: I(f"v_and_b32 v{r}, s{sMaskHi}, v{r}")
    I(f"s_lshl_b32 s{s0_}, s{sWave}, 12")
    I(f"v_add_u32 v{vTmp}, s{s0_}, v{vOffV}")
    for k in range(4):
        I(f"ds_write_b128 v{vTmp}, v[{vQL+4*k}:{vQL+4*k+3}] offset:{LDS_QX + k*1024}")
    I("s_waitcnt lgkmcnt(0)")
    I("s_barrier")
    vQR = vG + 0
    def assemble_q(br, dq):
        for w in range(4):
            for k in range(2):
                d = vQR + (w*2+k)*4
                I(f"ds_read_b128 v[{d}:{d+3}], v{vOffV} offset:{LDS_QX + w*4096 + (br*2+k)*1024}")
        I("s_waitcnt lgkmcnt(0)")
        for e in range(8):
            I(f"v_add_f32 v{vQR+e}, v{vQR+e}, v{vQR+8+e}")
            I(f"v_add_f32 v{vQR+16+e}, v{vQR+16+e}, v{vQR+24+e}")
        for e in range(8): I(f"v_add_f32 v{vQR+e}, v{vQR+e}, v{vQR+16+e}")
        for r in range(4): I(f"v_cvt_pk_bf16_f32 v{dq+r}, v{vQR+2*r}, v{vQR+2*r+1}")
    assemble_q(0, vQ)
    if not cfg.qbdefer: assemble_q(1, vQB)
    I(f"s_mov_b32 s{sI}, 0")
    I(f"s_mov_b32 s{sPre}, 0")
    I(f"s_mov_b32 s{sEnd}, -1")
    stamp(2)
    late_steps = {1: 0} if R == 4 else {1: 0, 4: 1}
    A(".p2align 3")
    A("L_round:")
    if cfg.stamps and cfg.diag == 6:
        for k in range(1, 10):
            I(f"s_cmp_eq_u32 s{sI}, {4*(k-1)}")
            I(f"s_cbranch_scc0 L_ps{k}")
            I(f"s_memrealtime s[{sStamp+2*k}:{sStamp+2*k+1}]")
            A(f"L_ps{k}:")
    for s in range(R):
        I(f"s_cmp_lt_u32 s{sI}, s{sLand}")
        I(f"s_cbranch_scc1 L_nowait{s}")
        I(f"s_sub_u32 s{s0_}, s{sIss}, s{sI}")
        I(f"s_cmp_eq_u32 s{s0_}, {W}")
        I(f"s_cbranch_scc0 L_wait{s}")
        I(f"s_waitcnt vmcnt({8*(W-1)})")
        A(f"L_nowait{s}:")
        if cfg.stamps and cfg.diag == 5 and s < 4:
            I(f"s_cmp_eq_u32 s{sI}, {cfg.iA + s}")
            I(f"s_cbranch_scc0 L_nost{s}")
            I(f"s_memrealtime s[{sStamp+2*(6+s)}:{sStamp+2*(6+s)+1}]")
            A(f"L_nost{s}:")
        I(f"s_add_u32 s{s0_}, s{sI}, {W}")
        I(f"s_add_u32 s{sI}, s{sI}, 1")
        if s in late_steps:
            I(f"s_cmp_eq_u32 s{sLate}, 1")
            I(f"s_cbranch_scc1 L_late{s}")
        if s == 0 and R == 8:
            I(f"s_cmp_gt_u32 s{sLate}, 1")
            I(f"s_cbranch_scc1 L_br0")
        I(f"s_cmp_eq_u32 s{sIss}, s{s0_}")
        I(f"s_cbranch_scc0 L_noiss{s}")
        I(f"s_cmp_ge_u32 s{sIss}, {NST-1}")
        I(f"s_cbranch_scc1 L_dyn{s}")
        A(f"L_loads{s}:")
        issue_tile((s+W) % R)
        A(f"L_noiss{s}:")
        for t in range(4):
            a = s*32 + 4*t
            I(f"v_mfma_f32_16x16x32_bf16 v[{vD+4*t}:{vD+4*t+3}], a[{a}:{a+3}], v[{vQ}:{vQ+3}], 0")
        I("s_nop 4")
        for t in range(4):
            hbs = [(t+1) & 3, (t+2) & 3, (t+3) & 3]
            n = [(4*(t-hb)) % 16 for hb in hbs]
            I(f"v_add_f32_dpp v{vTmp}, v{vD+4*t+hbs[0]}, v{vD+4*t+t} row_ror:{n[0]} row_mask:0xf bank_mask:0xf")
            I(f"v_add_f32_dpp v{vTmp}, v{vD+4*t+hbs[1]}, v{vTmp} row_ror:{n[1]} row_mask:0xf bank_mask:0xf")
            I(f"v_add_f32_dpp v{vS}, v{vD+4*t+hbs[2]}, v{vTmp} row_ror:{n[2]} row_mask:0xf bank_mask:{hex(1<<t)}")
        I(f"v_cmp_gt_f32 vcc, v{vS}, v{vM}")
        I(f"s_cbranch_vccnz L_rare{s}")
        A(f"L_cont{s}:")
        I(f"v_fma_f32 v{vP}, v{vS}, s{sC}, -v{vMC}")
        I(f"v_exp_f32 v{vP}, v{vP}")
        I("s_nop 0")
        I(f"v_cvt_pk_bf16_f32 v{vPlo}, v{vP}, 0")
        I(f"v_cvt_pk_bf16_f32 v{vPhi}, 0, v{vP}")
        I(f"v_add_f32 v{vLs}, v{vLs}, v{vP}")
        I("s_nop 0")
        for t in range(4):
            for beta in range(4):
                src = vPlo if beta % 2 == 0 else vPhi
                n = (4*(beta - t)) % 16
                ctl = f"row_ror:{n}" if n else "quad_perm:[0,1,2,3]"
                I(f"v_mov_b32_dpp v{vBp+2*t+(beta>>1)}, v{src} {ctl} row_mask:0xf bank_mask:{hex(1<<beta)}")
        for t in range(4):
            for h in range(2):
                a = s*32 + 16 + 4*t + 2*h
                I(f"v_mfma_f32_16x16x16_bf16 v[{vAcc+4*h}:{vAcc+4*h+3}], a[{a}:{a+1}], v[{vBp+2*t}:{vBp+2*t+1}], v[{vAcc+4*h}:{vAcc+4*h+3}]")
        I(f"s_cmp_eq_u32 s{sI}, s{sEnd}")
        I("s_cbranch_scc1 L_exit")
    I(f"s_mov_b32 s{sLate}, 0")
    I(f"s_cmp_eq_u32 s{sI}, 8")
    I("s_cbranch_scc0 L_round")

    def write_partial(pr, ml, lvl=None, barrier=True):
        I("s_nop 7")
        allsum(vLs)
        I(f"s_mul_i32 s{s0_}, s{sWave}, {4*ROW}")
        I(f"v_add_u32 v{vTmp}, s{s0_}, v{vLdsW}")
        for h in range(2):
            for r in range(4):
                I(f"ds_write_b32 v{vTmp}, v{vAcc+4*h+r} offset:{pr + (8*r+4*h)*4}")
        I(f"s_lshl_b32 s{s0_}, s{sWave}, 5")
        I(f"v_lshl_add_u32 v{vTmp}, v{vL}, 3, s{s0_}")
        I(f"v_mov_b32 v{vG}, v{vM}"); I(f"v_mov_b32 v{vG+1}, v{vLs}")
        I("s_mov_b64 exec, 0xf")
        I(f"ds_write_b64 v{vTmp}, v[{vG}:{vG+1}] offset:{ml}")
        I("s_mov_b64 exec, -1")
        I("s_waitcnt lgkmcnt(0)")
        if lvl is not None: stamp(lvl)
        if barrier: I("s_barrier")
        if lvl is not None: stamp(lvl)
    def combine_pass(br, pr, ml, vRdX, hd_src, hoff):
        vA = vG + 8; vMl = vG + 24; vHd = vG + 2; vSo = vG + 3; vSm = vG + 4; vMx = vG + 32; vLt = vG + 33
        I(f"v_lshrrev_b32 v{vHd}, 5, v{hd_src}")
        if hoff: I(f"v_add_u32 v{vHd}, {hoff}, v{vHd}")
        I(f"v_lshlrev_b32 v{vSm}, 3, v{vHd}")
        for w in range(4): I(f"ds_read_b64 v[{vMl+2*w}:{vMl+2*w+1}], v{vSm} offset:{ml + w*32}")
        for w in range(4): I(f"ds_read_b128 v[{vA+4*w}:{vA+4*w+3}], v{vRdX} offset:{pr + hoff*ROW + w*4*ROW}")
        I(f"s_lshl_b32 s{s0_}, s{sG}, 3"); I(f"s_add_u32 s{s0_}, s{s0_}, s{sB}")
        I(f"s_lshl_b32 s{s0_}, s{s0_}, 2"); I(f"s_add_u32 s{s0_}, s{s0_}, s{sJa}")
        I(f"s_lshl_b32 s{s1_}, s{s0_}, 5"); I(f"s_add_u32 s{s1_}, s{s1_}, {WS_PML + br*8192}")
        I(f"s_lshl_b32 s{s0_}, s{s0_}, 11"); I(f"s_add_u32 s{s0_}, s{s0_}, {WS_PO + br*0x80000}")
        I(f"v_lshlrev_b32 v{vSo}, 9, v{vHd}")
        I(f"v_and_b32 v{vTmp}, 31, v{hd_src}")
        I(f"v_lshl_add_u32 v{vSo}, v{vTmp}, 4, v{vSo}")
        I("s_waitcnt lgkmcnt(4)")
        I(f"v_max_f32 v{vMx}, v{vMl}, v{vMl+2}")
        I(f"v_max3_f32 v{vMx}, v{vMx}, v{vMl+4}, v{vMl+6}")
        for w in range(4): I(f"v_sub_f32 v{vMl+2*w}, v{vMl+2*w}, v{vMx}")
        for w in range(4): I(f"v_mul_f32 v{vMl+2*w}, s{sC}, v{vMl+2*w}")
        for w in range(4): I(f"v_exp_f32 v{vMl+2*w}, v{vMl+2*w}")
        I(f"v_mul_f32 v{vLt}, v{vMl}, v{vMl+1}")
        for w in range(1, 4): I(f"v_fmac_f32 v{vLt}, v{vMl+2*w}, v{vMl+2*w+1}")
        I(f"v_rcp_f32 v{vMl+1}, v{vLt}")
        I(f"v_log_f32 v{vLt}, v{vLt}")
        I("s_nop 0")
        for w in range(4): I(f"v_mul_f32 v{vMl+2*w}, v{vMl+2*w}, v{vMl+1}")
        I(f"v_fma_f32 v{vMx}, v{vMx}, s{sC}, v{vLt}")
        I("s_waitcnt lgkmcnt(0)")
        for k in range(4): I(f"v_mul_f32 v{vA+k}, v{vMl}, v{vA+k}")
        for w in range(1, 4):
            for k in range(4): I(f"v_fmac_f32 v{vA+k}, v{vMl+2*w}, v{vA+4*w+k}")
        for k in range(4): I(f"v_bfi_b32 v{vA+k}, s{sFF}, v{vTag}, v{vA+k}")
        I(f"buffer_store_dwordx4 v[{vA}:{vA+3}], v{vSo}, s[{sW}:{sW+3}], s{s0_} offen sc1")
        I(f"v_bfi_b32 v{vMx}, s{sFF}, v{vTag}, v{vMx}")
        I(f"v_mov_b32 v{vLt}, v{vTag}")
        I(f"v_cmp_eq_u32 vcc, 0, v{vTmp}")
        I(f"s_and_saveexec_b64 s[{s2_}:{s3_}], vcc")
        I(f"buffer_store_dwordx2 v[{vMx}:{vMx+1}], v{vSm}, s[{sW}:{sW+3}], s{s1_} offen sc1")
        I("s_mov_b64 exec, -1")
    def combine_publish(br, pr, ml, skip, rdy=False):
        I(f"s_cmp_ge_u32 s{sWave}, 2")
        I(f"s_cbranch_scc1 {skip}")
        combine_pass(br, pr, ml, vRd, 0, 0)
        if rdy:
            I(f"v_mov_b32 v{vTmp2}, 1")
            I(f"v_lshlrev_b32 v{vTmp}, 8, v{vL}")
            I("s_mov_b64 exec, 0xff")
            I(f"buffer_atomic_add v{vTmp2}, v{vTmp}, s[{sW}:{sW+3}], s{sRdyP} offen sc1")
            I("s_mov_b64 exec, -1")
        A(f"{skip}:")
    vRdL = vG + 40
    def lane_rd():
        I(f"v_lshrrev_b32 v{vRdL}, 5, v{vL}")
        I(f"v_mul_u32_u24 v{vRdL}, 196, v{vRdL}")
        I(f"v_bfe_u32 v{vTmp}, v{vL}, 3, 2")
        I(f"v_mad_u32_u24 v{vRdL}, v{vTmp}, 48, v{vRdL}")
        I(f"v_and_b32 v{vTmp}, 7, v{vL}")
        I(f"v_lshl_add_u32 v{vRdL}, v{vTmp}, 2, v{vRdL}")
        I(f"v_lshlrev_b32 v{vRdL}, 2, v{vRdL}")

    au = [0]
    def ahead_tiles():
        for k in range(1, cfg.ahead+1):
            u = au[0]; au[0] += 1
            I(f"s_add_u32 s{s4_}, s{sI}, {k}")
            I(f"s_cmp_eq_u32 s{sIss}, s{s4_}")
            I(f"s_cbranch_scc0 L_ah{u}")
            issue_tile(k)
            A(f"L_ah{u}:")
    ahead_tiles()
    if cfg.swbar:
        write_partial(LDS_PRA, LDS_MLA)
        combine_publish(0, LDS_PRA, LDS_MLA, "L_pubA_done")
    else:
        write_partial(LDS_PRA, LDS_MLA, barrier=False)
        arrive(0, "L_pubA_done")
        lane_rd()
        combine_pass(0, LDS_PRA, LDS_MLA, vRdL, vL, 0)
        I("s_nop 0")
        combine_pass(0, LDS_PRA, LDS_MLA, vRdL, vL, 2)
        A("L_pubA_done:")
    init_state()
    if cfg.qbdefer:
        assemble_q(1, vQ)
        I("s_nop 1")
    else:
        for k in range(4): I(f"v_mov_b32 v{vQ+k}, v{vQB+k}")
    I("s_branch L_round")

    vWoA = vG + 44
    rO = {0: list(range(vG+40, vG+44)) + list(range(40, 44)), 1: list(range(vG+8, vG+16))}
    rN = {0: list(range(vQB, vQB+4)), 1: list(range(vG+16, vG+20))}
    def part_loads(br):
        O, N = rO[br], rN[br]
        def f():
            I(f"s_add_u32 s{s4_}, s{sO[0]}, {br*0x80000}")
            I(f"s_add_u32 s{s5_}, s{sO[0]}, {br*0x80000 + 4*8192}")
            I(f"s_add_u32 s{sTl}, s{sO[1]}, {br*8192}")
            I(f"buffer_load_dwordx2 v[{N[0]}:{N[1]}], v{vPm}, s[{sW}:{sW+3}], s{sTl} offen sc1")
            I(f"buffer_load_dwordx2 v[{N[2]}:{N[3]}], v{vPm}, s[{sW}:{sW+3}], s{sTl} offen offset:512 sc1")
            I(f"buffer_load_dwordx4 v[{O[0]}:{O[3]}], v{vPo}, s[{sW}:{sW+3}], s{s4_} offen sc1")
            I(f"buffer_load_dwordx4 v[{O[4]}:{O[7]}], v{vPo}, s[{sW}:{sW+3}], s{s5_} offen sc1")
        return f
    def wo_loads(br):
        for t in range(4):
            dst = f"a[{4*t}:{4*t+3}]" if br else f"v[{vWoA+4*t}:{vWoA+4*t+3}]"
            I(f"buffer_load_dwordx4 {dst}, v{vWo}, s[{(sT2 if br else sT)}:{(sT2 if br else sT)+3}], s{sWoOff} offen offset:{t*1024} {pol(cfg.fWoB if br else cfg.fWoA)}")
    A("L_exit:")
    stamp(4)
    vOB = vG + 24
    vOA = vD
    if cfg.hint:
        I(f"v_mov_b32 v{vClaim}, 0")
        I("s_mov_b64 exec, 1")
        I(f"buffer_atomic_add v{vClaim}, v{vZ}, s[{sW}:{sW+3}], s{sRdyC} offen sc0 sc1")
        I("s_mov_b64 exec, -1")
    if not cfg.apre:
        wo_loads(0)
    if cfg.woearly: wo_loads(1)
    write_partial(LDS_PRB, LDS_MLB, 3)
    combine_publish(1, LDS_PRB, LDS_MLB, "L_pubB_done", rdy=cfg.gate1)
    stamp(4)
    if cfg.apre:
        assert cfg.woearly and not cfg.bearly
        I(f"s_cmp_ge_u32 s{sWave}, 2")
        I("s_cbranch_scc1 L_wA4")
        I(f"s_waitcnt vmcnt({7 if cfg.gate1 else 6})")
        I("s_branch L_wAd")
        A("L_wA4:")
        I("s_waitcnt vmcnt(4)")
        A("L_wAd:")
        if cfg.hint:
            I(f"v_readfirstlane_b32 s{sEarly}, v{vClaim}")
            I("s_nop 1")
            I(f"s_cmp_ge_u32 s{sEarly}, {cfg.hintN}")
            I(f"s_cselect_b32 s{sEarly}, 1, 0")
            I("s_cbranch_scc0 L_noearly")
            part_loads(1)()
            A("L_noearly:")
    else:
        part_loads(0)()
        I("s_waitcnt vmcnt(0)")
    def query1():
        I(f"v_mov_b32 v{vClaim}, 0")
        I("s_mov_b64 exec, 1")
        I(f"buffer_atomic_add v{vClaim}, v{vZ}, s[{sW}:{sW+3}], s{sRdyC} offen sc0 sc1")
        I("s_mov_b64 exec, -1")
    def project(br, orb):
        O, N = rO[br], rN[br]
        Nm = [N[0], N[2]]; Nl = [N[1], N[3]]
        poll_loop(f"h1{br}", part_loads(br), O + Nm, cfg.masked, full=Nl)
        if br == 1: stamp(4)
        if br == 0: stamp(7)
        if br == 1 and cfg.stamps and cfg.diag == 3: I(f"s_sub_u32 s{sLand0}, {hex(cfg.TO)}, s{sTo}")
        for r in Nm + O: I(f"v_and_b32 v{r}, s{sMaskHi}, v{r}")
        mx = [vTmp, vTmp2]
        for m in range(2): I(f"v_max_f32_dpp v{mx[m]}, v{Nm[m]}, v{Nm[m]} row_ror:4 row_mask:0xf bank_mask:0xf")
        I("s_nop 0")
        for m in range(2): I(f"v_max_f32_dpp v{mx[m]}, v{mx[m]}, v{mx[m]} row_ror:8 row_mask:0xf bank_mask:0xf")
        for m in range(2): I(f"v_sub_f32 v{Nm[m]}, v{Nm[m]}, v{mx[m]}")
        for m in range(2): I(f"v_exp_f32 v{Nm[m]}, v{Nm[m]}")
        I("s_nop 1")
        for m in range(2): I(f"v_add_f32_dpp v{Nl[m]}, v{Nm[m]}, v{Nm[m]} row_ror:4 row_mask:0xf bank_mask:0xf")
        I("s_nop 0")
        for m in range(2): I(f"v_add_f32_dpp v{Nl[m]}, v{Nl[m]}, v{Nl[m]} row_ror:8 row_mask:0xf bank_mask:0xf")
        for m in range(2): I(f"v_rcp_f32 v{Nl[m]}, v{Nl[m]}")
        I("s_nop 0")
        for m in range(2): I(f"v_mul_f32 v{Nm[m]}, v{Nm[m]}, v{Nl[m]}")
        for m in range(2):
            for k in range(4): I(f"v_mul_f32 v{O[4*m+k]}, v{Nm[m]}, v{O[4*m+k]}")
        for sh in (4, 8):
            for k in range(8): I(f"v_add_f32_dpp v{O[k]}, v{O[k]}, v{O[k]} row_ror:{sh} row_mask:0xf bank_mask:0xf")
        for k in range(8): I(f"v_cvt_pk_bf16_f32 v{O[k]}, v{O[k]}, v{O[k]}")
        for m in range(2):
            for t in range(4):
                I(f"v_and_b32 v{vOB+8*m+2*t}, v{O[4*m+t]}, v{vMask0}")
                I(f"v_and_b32 v{vOB+8*m+2*t+1}, v{O[4*m+t]}, v{vMask1}")
        if br == 0 and cfg.gate1 and cfg.g1early: query1()
        I("s_nop 0")
        for t in range(4):
            for m in range(2):
                for h in range(2):
                    d = vOA + (m*2+h)*4
                    src = f"a[{4*t+2*h}:{4*t+2*h+1}]" if br else f"v[{vWoA+4*t+2*h}:{vWoA+4*t+2*h+1}]"
                    c = "0" if t == 0 else f"v[{d}:{d+3}]"
                    I(f"v_mfma_f32_16x16x16_bf16 v[{d}:{d+3}], {src}, v[{vOB+8*m+2*t}:{vOB+8*m+2*t+1}], {c}")
        I(f"s_mul_i32 s{s0_}, s{sWave}, {8*ROW}")
        I(f"v_add_u32 v{vTmp2}, s{s0_}, v{vLdsW}")
        I(f"s_add_u32 s{s1_}, s{sO[2]}, {br*4*64*8*512}")
        if br == 0 and cfg.gate1 and not cfg.g1early: query1()
        I("s_nop 5")
        for m in range(2):
            for h in range(2):
                for r in range(4):
                    I(f"ds_write_b32 v{vTmp2}, v{vOA+(m*2+h)*4+r} offset:{orb + m*4*ROW + (8*r+4*h)*4}")
        I("s_waitcnt lgkmcnt(0)")
        if br == 0: stamp(7)
        I("s_barrier")
        if br == 0: stamp(7)
        if br == 0 and cfg.bpos == "bar" and not cfg.gate1: part_loads(1)()
        if br == 0 and cfg.gate1 and cfg.g1early:
            I("s_waitcnt vmcnt(0)")
            I(f"v_readfirstlane_b32 s{sEarly}, v{vClaim}")
            I("s_nop 1")
            I(f"s_cmp_ge_u32 s{sEarly}, 64")
            I(f"s_cselect_b32 s{sEarly}, 1, 0")
            I("s_cbranch_scc0 L_g1late")
            part_loads(1)()
            A("L_g1late:")
        vA = vD
        for w in range(4): I(f"ds_read_b128 v[{vA+4*w}:{vA+4*w+3}], v{vRd} offset:{orb + w*8*ROW}")
        I("s_waitcnt lgkmcnt(0)")
        for k in range(4):
            I(f"v_add_f32 v{vA+k}, v{vA+k}, v{vA+4+k}")
            I(f"v_add_f32 v{vA+8+k}, v{vA+8+k}, v{vA+12+k}")
        for k in range(4): I(f"v_add_f32 v{vA+k}, v{vA+k}, v{vA+8+k}")
        for k in range(4): I(f"v_bfi_b32 v{vA+k}, s{sFF}, v{vTag}, v{vA+k}")
        I(f"buffer_store_dwordx4 v[{vA}:{vA+3}], v{vOp}, s[{sW}:{sW+3}], s{s1_} offen sc1")
    project(0, LDS_ORA)
    stamp(7)
    if cfg.gate1:
        if cfg.g1early:
            I(f"s_cmp_eq_u32 s{sEarly}, 1")
            I("s_cbranch_scc1 L_g1have")
            query1()
            I("s_waitcnt vmcnt(0)")
        else:
            I("s_waitcnt vmcnt(1)")
        I(f"s_mov_b32 s{sTo}, {cfg.gto}")
        A("L_g1:")
        I(f"v_readfirstlane_b32 s{s0_}, v{vClaim}")
        I("s_nop 1")
        I(f"s_cmp_ge_u32 s{s0_}, 64")
        I("s_cbranch_scc1 L_g1ok")
        I(f"s_sub_u32 s{sTo}, s{sTo}, 1")
        I(f"s_cmp_eq_u32 s{sTo}, 0")
        I("s_cbranch_scc1 L_g1ok")
        query1()
        I("s_waitcnt vmcnt(0)")
        I("s_branch L_g1")
        A("L_g1ok:")
        part_loads(1)()
        I("s_waitcnt vmcnt(0)")
        if cfg.g1early:
            A("L_g1have:")
            I("s_waitcnt vmcnt(1)")
    elif cfg.bpos == "store":
        part_loads(1)()
        I("s_waitcnt vmcnt(0)")
    else:
        I("s_waitcnt vmcnt(1)")
    if cfg.diag == 3: stamp(3); stamp(3)
    project(1, LDS_ORB2)
    if cfg.gate2:
        I(f"v_mov_b32 v{vTmp2}, 1")
        I("s_mov_b64 exec, 1")
        I(f"buffer_atomic_add v{vTmp2}, v{vZ}, s[{sW}:{sW+3}], s{sR2P} offen sc1")
        I("s_mov_b64 exec, -1")
    stamp(4)
    def final_reduce(tag, ahead=None):
        I(f"s_lshr_b32 s{s0_}, s2, 7")
        I(f"s_bfe_u32 s{s1_}, s2, 0x30004")
        I(f"s_bfe_u32 s{s2_}, s2, 0x20002")
        I(f"s_lshl_b32 s{s3_}, s{s0_}, 2"); I(f"s_add_u32 s{s3_}, s{s3_}, s{s2_}")
        I(f"s_lshl_b32 s{s3_}, s{s3_}, 18")
        I(f"s_lshl_b32 s{s4_}, s{s1_}, 9"); I(f"s_add_u32 s{s3_}, s{s3_}, s{s4_}")
        I(f"s_lshl_b32 s{s4_}, s{sJ}, 7"); I(f"s_add_u32 s{s3_}, s{s3_}, s{s4_}")
        I(f"s_add_u32 s{s3_}, s{s3_}, {WS_OP}")
        I(f"v_lshrrev_b32 v{vG}, 3, v{vL}")
        I(f"v_lshlrev_b32 v{vG}, 12, v{vG}")
        I(f"v_and_b32 v{vG+1}, 7, v{vL}")
        I(f"v_lshl_add_u32 v{vG}, v{vG+1}, 4, v{vG}")
        vF = vG + 8
        I(f"s_lshl_b32 s{s4_}, s{s1_}, 11")
        I(f"s_lshl_b32 s{s5_}, s{s0_}, 10"); I(f"s_add_u32 s{s4_}, s{s4_}, s{s5_}")
        I(f"s_lshl_b32 s{s5_}, s{s2_}, 8"); I(f"s_add_u32 s{s4_}, s{s4_}, s{s5_}")
        I(f"s_lshl_b32 s{s5_}, s{sJ}, 6"); I(f"s_add_u32 s{s5_}, s{s4_}, s{s5_}")
        srd(sT, sOut, 16384)
        I(f"v_lshlrev_b32 v{vG+1}, 3, v{vG+1}")
        def loads():
            I(f"s_mov_b32 s{s4_}, s{s3_}")
            for i in range(8):
                I(f"buffer_load_dwordx4 v[{vF+4*i}:{vF+4*i+3}], v{vG}, s[{sW}:{sW+3}], s{s4_} offen sc1")
                if i < 7: I(f"s_add_u32 s{s4_}, s{s4_}, 32768")
        if ahead is None and cfg.probe:
            I(f"v_lshlrev_b32 v{vG+2}, 12, v{vL}")
            def probe():
                I(f"buffer_load_dword v{vG+3}, v{vG+2}, s[{sW}:{sW+3}], s{s3_} offen sc1")
            probe()
            I("s_waitcnt vmcnt(0)")
            poll_loop(f"pr{tag}", probe, [vG+3], True)
        if cfg.gate2:
            I("s_cmp_lt_u32 s2, 128")
            I(f"s_cbranch_scc1 L_g2ok")
            I(f"s_lshl_b32 s{s4_}, s{s2_}, 11"); I(f"s_add_u32 s{sTl}, s{s4_}, {WS_R2}")
            I(f"v_lshlrev_b32 v{vG+2}, 8, v{vL}")
            I(f"s_mov_b32 s{sTo}, {cfg.gto}")
            A("L_g2:")
            I(f"v_mov_b32 v{vG+3}, 0")
            I("s_mov_b64 exec, 0xff")
            I(f"buffer_atomic_add v{vG+3}, v{vG+2}, s[{sW}:{sW+3}], s{sTl} offen sc0 sc1")
            I("s_waitcnt vmcnt(0)")
            I(f"v_cmp_gt_u32 vcc, 32, v{vG+3}")
            I("s_mov_b64 exec, -1")
            I("s_cbranch_vccz L_g2ok")
            I(f"s_sub_u32 s{sTo}, s{sTo}, 1")
            I(f"s_cmp_lg_u32 s{sTo}, 0")
            I("s_cbranch_scc1 L_g2")
            A("L_g2ok:")
        loads()
        if ahead is not None:
            ahead()
        else:
            I("s_waitcnt vmcnt(0)")
        if not cfg.h2mask:
            poll_loop(f"h2{tag}", loads, list(range(vF, vF+32)), False)
        else:
            mk = [4 + 2*i for i in range(8)]
            for i in range(8): I(f"s_mov_b64 s[{mk[i]}:{mk[i]+1}], -1")
            I(f"s_mov_b32 s{sTo}, {hex(cfg.TO)}")
            A(f"L_h2{tag}_chk:")
            for i in range(8):
                I(f"s_mov_b64 exec, s[{mk[i]}:{mk[i]+1}]")
                I(f"s_cbranch_execz L_h2{tag}_c{i}")
                tagbad(list(range(vF+4*i, vF+4*i+4)))
                I("s_nop 0")
                I(f"s_mov_b64 s[{mk[i]}:{mk[i]+1}], vcc")
                A(f"L_h2{tag}_c{i}:")
            I("s_mov_b64 exec, -1")
            I(f"s_or_b64 vcc, s[{mk[0]}:{mk[0]+1}], s[{mk[1]}:{mk[1]+1}]")
            for i in range(2, 8): I(f"s_or_b64 vcc, vcc, s[{mk[i]}:{mk[i]+1}]")
            I(f"s_cbranch_scc0 L_h2{tag}_ok")
            I(f"s_sub_u32 s{sTo}, s{sTo}, 1")
            I(f"s_cmp_eq_u32 s{sTo}, 0")
            I(f"s_cbranch_scc1 L_h2{tag}_ok")
            I(f"s_mov_b32 s{s4_}, s{s3_}")
            for i in range(8):
                I(f"s_mov_b64 exec, s[{mk[i]}:{mk[i]+1}]")
                I(f"s_cbranch_execz L_h2{tag}_l{i}")
                I(f"buffer_load_dwordx4 v[{vF+4*i}:{vF+4*i+3}], v{vG}, s[{sW}:{sW+3}], s{s4_} offen sc1")
                A(f"L_h2{tag}_l{i}:")
                if i < 7: I(f"s_add_u32 s{s4_}, s{s4_}, 32768")
            I("s_mov_b64 exec, -1")
            I("s_waitcnt vmcnt(0)")
            I(f"s_branch L_h2{tag}_chk")
            A(f"L_h2{tag}_ok:")
        for r in range(vF, vF+32): I(f"v_and_b32 v{r}, s{sMaskHi}, v{r}")
        for step in (16, 8, 4):
            for k in range(step): I(f"v_add_f32 v{vF+k}, v{vF+k}, v{vF+step+k}")
        I("s_nop 0")
        for k in range(4): I(f"v_add_f32_dpp v{vF+k}, v{vF+k}, v{vF+k} row_ror:8 row_mask:0xf bank_mask:0xf")
        for k in range(4): I(f"v_mov_b32 v{vF+4+k}, v{vF+k}")
        I("s_nop 1")
        for k in range(4): I(f"v_permlane16_swap_b32 v{vF+k}, v{vF+4+k}")
        I("s_nop 1")
        for k in range(4): I(f"v_add_f32 v{vF+k}, v{vF+k}, v{vF+4+k}")
        for k in range(4): I(f"v_mov_b32 v{vF+4+k}, v{vF+k}")
        I("s_nop 1")
        for k in range(4): I(f"v_permlane32_swap_b32 v{vF+k}, v{vF+4+k}")
        I("s_nop 1")
        for k in range(4): I(f"v_add_f32 v{vF+k}, v{vF+k}, v{vF+4+k}")
        I(f"v_cvt_pk_bf16_f32 v{vF+8}, v{vF}, v{vF+1}")
        I(f"v_cvt_pk_bf16_f32 v{vF+9}, v{vF+2}, v{vF+3}")
        I("s_mov_b64 exec, 0xff")
        I(f"buffer_store_dwordx2 v[{vF+8}:{vF+9}], v{vG+1}, s[{sT}:{sT+3}], s{s5_} offen")
        I("s_mov_b64 exec, -1")

    I(f"s_cmp_lg_u32 s{sWave}, 0")
    I("s_cbranch_scc1 L_fin")
    final_reduce("E")
    I("s_cmp_lg_u32 s2, 0")
    I("s_cbranch_scc1 L_fin")
    I("s_mov_b64 exec, 1")
    I(f"buffer_store_dword v{vTag}, v{vZ}, s[{sW}:{sW+3}], 0 offen offset:{WS_EPOCH} sc1")
    A("L_fin:")
    if cfg.stamps:
        I("s_mov_b64 exec, 1")
        I(f"s_memrealtime s[100:101]")
        I("s_waitcnt lgkmcnt(0)")
        I(f"s_lshl_b32 s{s0_}, s2, 2"); I(f"s_add_u32 s{s0_}, s{s0_}, s{sWave}"); I(f"s_lshl_b32 s{s0_}, s{s0_}, 7")
        I(f"s_add_u32 s{s0_}, s{s0_}, {WS_STAMP}")
        for q in range(5):
            for k in range(4): I(f"v_mov_b32 v{vG+4*q+k}, s{sStamp+4*q+k}")
            I(f"buffer_store_dwordx4 v[{vG+4*q}:{vG+4*q+3}], v{vZ}, s[{sW}:{sW+3}], s{s0_} offen offset:{16*q}")
        I(f"s_getreg_b32 s{s1_}, hwreg(HW_REG_XCC_ID)")
        I(f"s_lshl_b32 s{s2_}, s{sEnd}, 8"); I(f"s_or_b32 s{sLand0}, s{sLand0}, s{s2_}")
        I(f"v_mov_b32 v{vG+20}, s100"); I(f"v_mov_b32 v{vG+21}, s101"); I(f"v_mov_b32 v{vG+22}, s{s1_}"); I(f"v_mov_b32 v{vG+23}, s{sLand0}")
        I(f"buffer_store_dwordx4 v[{vG+20}:{vG+23}], v{vZ}, s[{sW}:{sW+3}], s{s0_} offen offset:80")
    I("s_endpgm")
    for s in range(R):
        A(f"L_rare{s}:")
        I(f"v_mov_b32 v{vTmp}, v{vS}")
        allsum(vTmp, "max")
        I(f"v_max_f32 v{vTmp}, v{vTmp}, v{vM}")
        I(f"v_sub_f32 v{vTmp2}, v{vM}, v{vTmp}")
        I(f"v_mul_f32 v{vTmp2}, s{sC}, v{vTmp2}")
        I(f"v_exp_f32 v{vTmp2}, v{vTmp2}")
        I(f"v_mov_b32 v{vM}, v{vTmp}")
        I(f"v_mul_f32 v{vMC}, s{sC}, v{vTmp}")
        I(f"v_mul_f32 v{vLs}, v{vLs}, v{vTmp2}")
        for k in range(8): I(f"v_mul_f32 v{vAcc+k}, v{vAcc+k}, v{vTmp2}")
        I(f"s_branch L_cont{s}")
    if R == 8:
        A("L_br0:")
        for slot in (5, 6, 7):
            I(f"s_cmp_eq_u32 s{sLate}, {slot+8}")
            I(f"s_cbranch_scc1 L_br0_{slot}")
        I("s_branch L_noiss0")
        for slot in (5, 6, 7):
            A(f"L_br0_{slot}:")
            I(f"s_mov_b32 s{sLate}, 0")
            issue_tile(slot, "A")
            I("s_branch L_noiss0")
    for s, slot in late_steps.items():
        A(f"L_late{s}:")
        issue_tile(slot, "A" if R == 4 else None)
        I(f"s_branch L_noiss{s}")
    for s in range(R):
        A(f"L_wait{s}:")
        for d in (1, 2, 3):
            if d == W: continue
            I(f"s_cmp_eq_u32 s{s0_}, {d}")
            I(f"s_cbranch_scc1 L_wait{s}_{d}")
        I("s_waitcnt vmcnt(24)")
        I(f"s_branch L_nowait{s}")
        for d in (1, 2, 3):
            if d == W: continue
            A(f"L_wait{s}_{d}:")
            I(f"s_waitcnt vmcnt({8*(d-1)})")
            I(f"s_branch L_nowait{s}")
    for s in range(R):
        A(f"L_dyn{s}:")
        I(f"s_cmp_lt_u32 s{sIss}, {NST}")
        I(f"s_cbranch_scc1 L_claim{s}")
        I(f"s_cmp_lg_u32 s{sEnd}, -1")
        I(f"s_cbranch_scc1 L_noiss{s}")
        I(f"v_readfirstlane_b32 s{s1_}, v{vClaim}")
        I("s_nop 1")
        I(f"s_add_u32 s{s1_}, s{s1_}, {16*SB}")
        if cfg.apre:
            I(f"s_cmp_lt_u32 s{s1_}, {512 - cfg.preN}")
            I(f"s_cbranch_scc1 L_got{s}")
            I(f"s_cmp_lg_u32 s{sPre}, 0")
            I(f"s_cbranch_scc1 L_nopre{s}")
            I(f"s_mov_b32 s{sPre}, 1")
            wo_loads(0)
            part_loads(0)()
            A(f"L_nopre{s}:")
        I(f"s_cmp_lt_u32 s{s1_}, 512")
        I(f"s_cbranch_scc1 L_got{s}")
        I(f"s_mov_b32 s{sEnd}, s{sIss}")
        I(f"s_branch L_noiss{s}")
        A(f"L_got{s}:")
        I(f"s_lshl_b32 s{s1_}, s{s1_}, 12")
        I(f"s_add_u32 s{sOff}, s{sPair}, s{s1_}")
        A(f"L_claim{s}:")
        I(f"v_mov_b32 v{vClaim}, 1")
        I("s_mov_b64 exec, 1")
        I(f"buffer_atomic_add v{vClaim}, v{vZ}, s[{sW}:{sW+3}], s{sCnt} offen sc0 sc1")
        I("s_mov_b64 exec, -1")
        I(f"s_branch L_loads{s}")
    for (u, slot, pa) in late_blocks:
        A(f"L_ia{u}:")
        tile_loads(slot, *pa)
        I(f"s_branch L_ib{u}")
    A("L_end:")
    I("s_endpgm")
    A('.section .rodata,"a"'); A(".p2align 6"); A(f".amdhsa_kernel {KNAME}")
    I(f".amdhsa_next_free_vgpr {NV + 32*R}")
    I(f".amdhsa_next_free_sgpr {NS}")
    I(f".amdhsa_accum_offset {NV}")
    I(".amdhsa_group_segment_fixed_size 0")
    I(".amdhsa_kernarg_size 104")
    I(".amdhsa_user_sgpr_count 2")
    I(".amdhsa_user_sgpr_kernarg_segment_ptr 1")
    I(".amdhsa_system_sgpr_workgroup_id_x 1")
    I(".amdhsa_float_denorm_mode_32 3")
    A(".end_amdhsa_kernel")
    return "\n".join(L) + "\n"

if __name__ == "__main__":
    out = sys.argv[1]
    cfg = Cfg()
    for kv in sys.argv[2:]:
        k, v = kv.split("=")
        cur = getattr(cfg, k)
        setattr(cfg, k, (v not in ("0", "False")) if isinstance(cur, bool) else (int(v, 0) if isinstance(cur, int) else v))
    open(out, "w").write(gen(cfg))
```

```python
import sys, math, struct
KNAME = "concat_heads__sliding_block_cached__gqa_block_cached__decode_kernel"

class Cfg:
    stamps = False
    fAk = "nt"; fAv = "nt"; fBk = "nt"; fBv = "nt"
    fWq = "nt"; fWoA = "nt"; fWoB = "nt"
    R = 4
    W = 1
    SB = 24
    TO = 0x40000
    diag = 0
    ahead = 1
    t0at = 'w2'
    t1at = 'post'
    codepf = True
    bpos = 'bar'
    qbdefer = True
    gate1 = True
    gate2 = True
    g1early = True
    outf = ''
    preafter = True
    wobpost = True
    r1lead = 1
    r2lead = 2
    gto = 4096
    hint = False
    hintN = 64
    apre = True
    preN = 0
    bearly = False
    xmix = False
    woearly = True
    h2mask = False
    probe = False
    swbar = False
    masked = True
    wexcl = False

WS_EPOCH = 0
WS_CNT  = 0x008000
WS_QP   = 0x010000
WS_PO   = 0x110000
WS_PML  = 0x210000
WS_OP   = 0x220000
WS_R1   = 0x00C000
WS_R2   = 0x420000
WS_STAMP = 0x500000
WS_SIZE = 0x600000

ROW = 196*4
LDS_QR  = 0
LDS_PRA = 0
LDS_MLA = 12544
LDS_PRB = 12800
LDS_MLB = 25344
LDS_ORB = 25600
LDS_ORB2 = 0
LDS_QX  = 25600
LDS_ORA = 25600
LDS_CNT = 25600 + 25088
LDS_SIZE = LDS_CNT + 16

C_SCALE = math.log2(math.e)/math.sqrt(128.0)
def f32bits(x): return struct.unpack("<I", struct.pack("<f", x))[0]
def pol(x): return "" if x == "def" else x.replace("+", " ")

def gen(cfg):
    L = []
    def A(s): L.append(s)
    def I(s): L.append("  " + s)
    R, W, SB = cfg.R, cfg.W, cfg.SB
    assert R in (4, 8) and W == 1
    NST = 8 + SB
    assert 8 + cfg.ahead < NST - 1

    sAx, sAk, sAv, sAwq, sAwo, sBx, sBk, sBv = 4, 6, 8, 10, 12, 14, 16, 18
    sBwq, sBwo, sOut, sDbg = 20, 22, 24, 26
    sWs = 28
    sPc = 30
    sK, sV, sW, sT, sT2 = 32, 36, 40, 44, 48
    sWave = 52; sOff = 53; sOffB = 54; sIss = 55; sLand = 56; sI = 57; sLate = 58
    sC = 59; sFF = 60; sMaskHi = 61
    s0_, s1_, s2_, s3_, s4_, s5_ = 62, 63, 64, 65, 66, 67
    sTo = 68; sStep = 69; sB, sG, sJ = 70, 71, 72
    sLand0 = 73; sPair = 74; sEnd = 75
    sStamp = 76
    sQ0, sQ1 = 100, 101
    sR2P = 9; sExtra = 10
    sRdyP = 20; sRdyC = 21; sEarly = 22
    sTl = 27; sPre = 31; sJa = 30
    sCnt = 96; sO = [97, 98, 99]; sWoOff = 26
    NS = 102

    vL = 1; vOffK = 2; vOffV = 3; vLdsW = 4; vTag = 5
    vM, vMC, vLs, vRd, vClaim = 6, 7, 8, 9, 10
    vS, vP, vPlo, vPhi, vTmp, vTmp2 = 11, 12, 13, 14, 15, 16
    vMask0, vMask1 = 17, 18
    vZ = 19
    vQ = 20; vQB = 24
    vAcc = 28
    vPo, vPm, vOp, vWo = 36, 37, 38, 39
    vBp = 44
    vD = 52
    vG = 68
    NV = 128

    def srd(q, ptr, size):
        I(f"s_mov_b32 s{q}, s{ptr}")
        I(f"s_and_b32 s{q+1}, s{ptr+1}, 0xffff")
        I(f"s_mov_b32 s{q+2}, {hex(size)}")
        I(f"s_mov_b32 s{q+3}, 0x20000")
    stamp_n = [0]
    def stamp(level=0):
        if not cfg.stamps: return
        if cfg.diag == 0 and level not in (0, 2, 4): return
        if cfg.diag == 1 and level not in (1, 2): return
        if cfg.diag == 3 and level not in (3, 4): return
        if cfg.diag == 5 and level != 5: return
        if cfg.diag == 6: return
        if cfg.diag == 7 and level not in (4, 7): return
        n = stamp_n[0]; stamp_n[0] += 1
        assert n < 10
        I(f"s_memrealtime s[{sStamp+2*n}:{sStamp+2*n+1}]")
    def tagcheck(regs, okl):
        I(f"v_xor_b32 v{vTmp}, v{regs[0]}, v{vTag}")
        for r in regs[1:]:
            I(f"v_bitop3_b32 v{vTmp}, v{vTmp}, v{r}, v{vTag} bitop3:0xf6")
        I(f"v_and_b32 v{vTmp}, 0xff, v{vTmp}")
        I(f"v_cmp_ne_u32 vcc, 0, v{vTmp}")
        I(f"s_cbranch_vccz {okl}")
    def tagbad(regs, full=()):
        I(f"v_xor_b32 v{vTmp}, v{regs[0]}, v{vTag}")
        for r in regs[1:]:
            I(f"v_bitop3_b32 v{vTmp}, v{vTmp}, v{r}, v{vTag} bitop3:0xf6")
        I(f"v_and_b32 v{vTmp}, 0xff, v{vTmp}")
        for r in full:
            I(f"v_bitop3_b32 v{vTmp}, v{vTmp}, v{r}, v{vTag} bitop3:0xf6")
        I(f"v_cmp_ne_u32 vcc, 0, v{vTmp}")
    def poll_loop(name, loads, regs, masked, full=()):
        I(f"s_mov_b32 s{sTo}, {hex(cfg.TO)}")
        A(f"L_{name}_chk:")
        tagbad(regs, full)
        I(f"s_cbranch_vccz L_{name}_ok")
        I(f"s_sub_u32 s{sTo}, s{sTo}, 1")
        I(f"s_cmp_eq_u32 s{sTo}, 0")
        I(f"s_cbranch_scc1 L_{name}_ok")
        if masked: I("s_mov_b64 exec, vcc")
        loads()
        I("s_waitcnt vmcnt(0)")
        I(f"s_branch L_{name}_chk")
        A(f"L_{name}_ok:")
        if masked: I("s_mov_b64 exec, -1")
    def arrive(idx, notlast):
        I(f"v_mov_b32 v{vTmp}, 1")
        I("s_mov_b64 exec, 1")
        I(f"ds_add_rtn_u32 v{vTmp}, v{vZ}, v{vTmp} offset:{LDS_CNT + 4*idx}")
        I("s_mov_b64 exec, -1")
        I("s_waitcnt lgkmcnt(0)")
        I(f"v_readfirstlane_b32 s{s0_}, v{vTmp}")
        I("s_nop 1")
        I(f"s_cmp_lg_u32 s{s0_}, 3")
        I(f"s_cbranch_scc1 {notlast}")
    def allsum(v, op="add"):
        o = f"v_{op}_f32"
        I("s_nop 1")
        I(f"{o}_dpp v{v}, v{v}, v{v} row_ror:4 row_mask:0xf bank_mask:0xf")
        I("s_nop 1")
        I(f"{o}_dpp v{v}, v{v}, v{v} row_ror:8 row_mask:0xf bank_mask:0xf")
        I(f"v_mov_b32 v{vTmp2}, v{v}")
        I("s_nop 1")
        I(f"v_permlane16_swap_b32 v{v}, v{vTmp2}")
        I("s_nop 1")
        I(f"{o} v{v}, v{v}, v{vTmp2}")
        I(f"v_mov_b32 v{vTmp2}, v{v}")
        I("s_nop 1")
        I(f"v_permlane32_swap_b32 v{v}, v{vTmp2}")
        I("s_nop 1")
        I(f"{o} v{v}, v{v}, v{vTmp2}")

    A(f"; @launch grid=(256,1,1) block=(256,1,1) lds={LDS_SIZE}")
    A('.amdgcn_target "amdgcn-amd-amdhsa--gfx950"')
    A(".text"); A(f".globl {KNAME}"); A(".p2align 8"); A(f".type {KNAME},@function"); A(f"{KNAME}:")
    I("s_cmp_ge_u32 s2, 256")
    I("s_cbranch_scc1 L_end")
    stamp(2)
    if cfg.diag in (3, 5, 6, 7) and cfg.stamps: I(f"s_memrealtime s[{sStamp}:{sStamp+1}]"); stamp_n[0] = 1
    I(f"s_load_dwordx16 s[4:19], s[0:1], 0")
    I(f"s_load_dwordx8 s[20:27], s[0:1], 64")
    I(f"s_load_dwordx2 s[28:29], s[0:1], 96")
    I(f"s_getpc_b64 s[{sPc}:{sPc+1}]")
    A("L_pc:")
    I(f"v_lshlrev_b32 v{vTmp}, 7, v0")
    I(f"v_min_u32 v{vTmp}, L_end-L_pc, v{vTmp}")
    if cfg.codepf: I(f"global_load_dword v{vTmp2}, v{vTmp}, s[{sPc}:{sPc+1}]")
    I(f"v_and_b32 v{vL}, 63, v0")
    I(f"v_lshrrev_b32 v{vS}, 6, v0")
    I(f"v_mov_b32 v{vZ}, 0")
    I(f"v_readfirstlane_b32 s{sWave}, v{vS}")
    I(f"v_bfe_u32 v{vP}, v{vL}, 2, 2")
    I(f"v_lshrrev_b32 v{vPlo}, 4, v{vL}")
    I(f"v_and_b32 v{vPhi}, 3, v{vL}")
    I(f"v_and_b32 v{vM}, 15, v{vL}")
    I(f"v_lshlrev_b32 v{vOffV}, 4, v{vL}")
    I(f"v_lshlrev_b32 v{vOffK}, 8, v{vP}")
    I(f"v_lshl_add_u32 v{vOffK}, v{vPlo}, 6, v{vOffK}")
    I(f"v_lshl_add_u32 v{vOffK}, v{vPhi}, 4, v{vOffK}")
    vWoff, vXoff = vG, vG+1
    I(f"v_lshlrev_b32 v{vWoff}, 16, v{vPlo}")
    I(f"v_lshl_add_u32 v{vWoff}, v{vM}, 4, v{vWoff}")
    I(f"v_lshlrev_b32 v{vXoff}, 10, v{vPhi}")
    I(f"v_lshl_add_u32 v{vXoff}, v{vPlo}, 4, v{vXoff}")
    if cfg.xmix:
        I(f"s_and_b32 s{s0_}, s2, 7")
        I(f"s_bcnt1_i32_b32 s{s1_}, s{s0_}")
        I(f"s_and_b32 s{s1_}, s{s1_}, 1")
        I(f"s_lshr_b32 s{sJa}, s{s0_}, 1")
        I(f"s_lshr_b32 s{sPair}, s2, 3")
        I(f"s_lshl_b32 s{sPair}, s{sPair}, 1")
        I(f"s_or_b32 s{sPair}, s{sPair}, s{s1_}")
    else:
        I(f"s_and_b32 s{sJa}, s2, 3")
        I(f"s_lshr_b32 s{sPair}, s2, 2")
    I(f"s_lshr_b32 s{sB}, s{sPair}, 3")
    I(f"s_and_b32 s{sG}, s{sPair}, 7")
    I(f"s_and_b32 s{sJ}, s2, 3")
    I(f"s_lshl_b32 s{sCnt}, s{sPair}, 8")
    I(f"s_add_u32 s{sCnt}, s{sCnt}, {WS_CNT}")
    I(f"s_lshl_b32 s{sPair}, s{sPair}, 21")
    I(f"s_lshl_b32 s{s1_}, s{sJa}, 2")
    I(f"s_add_u32 s{s1_}, s{s1_}, s{sWave}")
    I(f"s_lshl_b32 s{s0_}, s{s1_}, 12")
    I(f"s_add_u32 s{sOffB}, s{sPair}, s{s0_}")
    I(f"s_lshl_b32 s{s1_}, s{sJ}, 2")
    I(f"s_add_u32 s{s1_}, s{s1_}, s{sWave}")
    I(f"s_lshl_b32 s{s0_}, s{sWave}, 12")
    I(f"s_add_u32 s{sOff}, s{sPair}, s{s0_}")
    I(f"s_lshl_b32 s{s0_}, s{sJa}, 17")
    I(f"s_add_u32 s{sOff}, s{sOff}, s{s0_}")
    I(f"s_add_u32 s{sOff}, s{sOff}, {6144*256}")
    I(f"s_lshl_b32 s{s2_}, s{s1_}, 18")
    I(f"s_bfe_u32 s{s3_}, s2, 0x50002")
    I(f"s_lshl_b32 s{s3_}, s{s3_}, 8")
    I(f"s_add_u32 s{s2_}, s{s2_}, s{s3_}")
    I(f"s_lshl_b32 s{s1_}, s{s1_}, 6")
    I("s_waitcnt lgkmcnt(0)")
    stamp(2)
    srd(sW, sWs, WS_SIZE)
    I(f"buffer_load_dword v{vTag}, v{vZ}, s[{sW}:{sW+3}], 0 offen offset:{WS_EPOCH} sc1")
    I(f"s_and_b32 s{s0_}, s2, 0x8f")
    I(f"s_or_b32 s{s0_}, s{s0_}, s{sWave}")
    I(f"s_cmp_lg_u32 s{s0_}, 0")
    I("s_cbranch_scc1 L_nocnt")
    I(f"s_lshr_b32 s{s0_}, s2, 4")
    I(f"s_lshl_b32 s{s0_}, s{s0_}, 8")
    I(f"s_add_u32 s{s0_}, s{s0_}, {WS_CNT}")
    I(f"v_lshlrev_b32 v{vTmp}, 11, v{vL}")
    I("s_mov_b64 exec, 0xff")
    I(f"buffer_store_dword v{vZ}, v{vTmp}, s[{sW}:{sW+3}], s{s0_} offen sc1")
    I(f"s_lshr_b32 s{s0_}, s2, 4")
    I(f"s_lshl_b32 s{s3_}, s{s0_}, 11"); I(f"s_add_u32 s{s3_}, s{s3_}, {WS_R1}")
    I(f"v_lshlrev_b32 v{vTmp}, 8, v{vL}")
    I(f"buffer_store_dword v{vZ}, v{vTmp}, s[{sW}:{sW+3}], s{s3_} offen sc1")
    I(f"s_lshl_b32 s{s3_}, s{s0_}, 8"); I(f"s_add_u32 s{s3_}, s{s3_}, {WS_R2}")
    I(f"v_lshlrev_b32 v{vTmp}, 11, v{vL}")
    I("s_mov_b64 exec, 0xf")
    I(f"buffer_store_dword v{vZ}, v{vTmp}, s[{sW}:{sW+3}], s{s3_} offen sc1")
    I("s_mov_b64 exec, -1")
    A("L_nocnt:")
    I(f"s_cmp_lt_u32 s2, 128")
    I(f"s_cselect_b32 s{sT}, s{sAx}, s{sBx}")
    I(f"s_cselect_b32 s{sT+1}, s{sAx+1}, s{sBx+1}")
    I(f"s_cselect_b32 s{sT2}, s{sAwq}, s{sBwq}")
    I(f"s_cselect_b32 s{sT2+1}, s{sAwq+1}, s{sBwq+1}")
    I(f"s_and_b32 s{sT+1}, s{sT+1}, 0xffff")
    I(f"s_and_b32 s{sT2+1}, s{sT2+1}, 0xffff")
    I(f"s_mov_b32 s{sT+2}, 8192"); I(f"s_mov_b32 s{sT+3}, 0x20000")
    I(f"s_mov_b32 s{sT2+2}, 0x400000"); I(f"s_mov_b32 s{sT2+3}, 0x20000")
    vX = vG + 2
    I(f"buffer_load_dwordx4 v[{vX}:{vX+3}], v{vXoff}, s[{sT}:{sT+3}], s{s1_} offen")
    I(f"s_add_u32 s{s1_}, s{s1_}, 4096")
    I(f"buffer_load_dwordx4 v[{vX+4}:{vX+7}], v{vXoff}, s[{sT}:{sT+3}], s{s1_} offen")
    WSLOT = R - 1
    for t in range(8):
        a = WSLOT*32 + 4*t
        I(f"buffer_load_dwordx4 a[{a}:{a+3}], v{vWoff}, s[{sT2}:{sT2+3}], s{s2_} offen {pol(cfg.fWq)}")
        if t < 7: I(f"s_add_u32 s{s2_}, s{s2_}, 8192")
    srd(sK, sAk, 0x8000000)
    srd(sV, sAv, 0x8000000)
    I(f"s_mov_b32 s{sIss}, 0")
    I(f"s_mov_b32 s{sStep}, 16384")
    I(f"s_and_b32 s{sBk+1}, s{sBk+1}, 0xffff")
    I(f"s_and_b32 s{sBv+1}, s{sBv+1}, 0xffff")

    late_blocks = []; uniq = [0]
    def tile_loads(slot, fk, fv):
        for t in range(4):
            a = slot*32 + 4*t
            I(f"buffer_load_dwordx4 a[{a}:{a+3}], v{vOffK}, s[{sK}:{sK+3}], s{sOff} offen offset:{t*1024} {fk}")
        for t in range(4):
            a = slot*32 + 16 + 4*t
            I(f"buffer_load_dwordx4 a[{a}:{a+3}], v{vOffV}, s[{sV}:{sV+3}], s{sOff} offen offset:{t*1024} {fv}")
    def issue_tile(slot, phase=None):
        pa = (pol(cfg.fAk), pol(cfg.fAv)); pb = (pol(cfg.fBk), pol(cfg.fBv))
        if phase == "A" or pa == pb:
            tile_loads(slot, *pa)
        else:
            u = uniq[0]; uniq[0] += 1
            I(f"s_cmp_lt_u32 s{sIss}, 8")
            I(f"s_cbranch_scc1 L_ia{u}")
            tile_loads(slot, *pb)
            A(f"L_ib{u}:")
            late_blocks.append((u, slot, pa))
        I(f"s_add_u32 s{sOff}, s{sOff}, s{sStep}")
        I(f"s_add_u32 s{sIss}, s{sIss}, 1")
        I(f"s_cmp_eq_u32 s{sIss}, 8")
        I(f"s_cselect_b32 s{sOff}, s{sOffB}, s{sOff}")
        I(f"s_cselect_b32 s{sStep}, 0x10000, s{sStep}")
        I(f"s_cselect_b32 s{sK}, s{sBk}, s{sK}")
        I(f"s_cselect_b32 s{sK+1}, s{sBk+1}, s{sK+1}")
        I(f"s_cselect_b32 s{sV}, s{sBv}, s{sV}")
        I(f"s_cselect_b32 s{sV+1}, s{sBv+1}, s{sV+1}")

    if cfg.t0at == "pre": issue_tile(0, "A")
    I(f"s_mov_b32 s{sC}, {hex(f32bits(C_SCALE))}")
    I(f"s_mov_b32 s{sFF}, 0xff")
    I(f"s_mov_b32 s{sMaskHi}, 0xffffff00")
    I(f"v_mul_u32_u24 v{vLdsW}, 196, v{vPhi}")
    I(f"v_mad_u32_u24 v{vLdsW}, v{vPlo}, 48, v{vLdsW}")
    I(f"v_add_lshl_u32 v{vLdsW}, v{vLdsW}, v{vP}, 2")
    I(f"v_lshrrev_b32 v{vRd}, 5, v0")
    I(f"v_mul_u32_u24 v{vRd}, 196, v{vRd}")
    I(f"v_bfe_u32 v{vTmp}, v0, 3, 2")
    I(f"v_mad_u32_u24 v{vRd}, v{vTmp}, 48, v{vRd}")
    I(f"v_and_b32 v{vTmp}, 7, v0")
    I(f"v_lshl_add_u32 v{vRd}, v{vTmp}, 2, v{vRd}")
    I(f"v_lshlrev_b32 v{vRd}, 2, v{vRd}")
    vSel = vG + 10
    def pick(dst, r, lo, hi, other):
        I(f"v_mov_b32 v{dst}, {hex(other)}")
        I(f"v_mov_b32 v{vTmp}, {hex(lo)}")
        I(f"v_cmp_eq_u32 vcc, {2*r}, v{vP}")
        I(f"s_nop 1")
        I(f"v_cndmask_b32 v{dst}, v{dst}, v{vTmp}, vcc")
        I(f"v_mov_b32 v{vTmp}, {hex(hi)}")
        I(f"v_cmp_eq_u32 vcc, {2*r+1}, v{vP}")
        I(f"s_nop 1")
        I(f"v_cndmask_b32 v{dst}, v{dst}, v{vTmp}, vcc")
    for r in range(2):
        pick(vSel + 2*r + 0, r, 0x0c0c0100, 0x01000c0c, 0x0c0c0c0c)
        pick(vSel + 2*r + 1, r, 0x0c0c0302, 0x03020c0c, 0x0c0c0c0c)
    pick(vMask0, 0, 0xffff, 0xffff0000, 0)
    pick(vMask1, 1, 0xffff, 0xffff0000, 0)
    for k in range(8): I(f"v_mov_b32 v{vBp+k}, 0")
    I(f"v_lshlrev_b32 v{vTmp}, 2, v{vL}")
    I("s_mov_b64 exec, 3")
    I(f"ds_write_b32 v{vTmp}, v{vZ} offset:{LDS_CNT}")
    I("s_mov_b64 exec, -1")
    t0t = {"pre": -1, "post": 99}.get(cfg.t0at, None)
    if t0t is None: t0t = int(cfg.t0at[1:])
    if t0t == -1:
        I("s_waitcnt vmcnt(15)")
    else:
        I("s_waitcnt vmcnt(7)")
        if t0t == 0: issue_tile(0, "A")
    I(f"v_add_u32 v{vTag}, 1, v{vTag}")
    vQacc = vG + 16
    vXB = vG + 32
    for t in range(8):
        bs = vXB + (t & 1)*4
        if t > 0:
            I(f"s_waitcnt vmcnt({7 - t + (8 if t0t < t else 0)})")
            if t == t0t: issue_tile(0, "A")
            if t == 7:
                stamp(2)
                if cfg.t1at == "w7": issue_tile(1, "A")
                stamp(1)
        for m in range(2):
            for r in range(2):
                I(f"v_perm_b32 v{bs+2*m+r}, v{vX+4*m+(t>>1)}, v{vX+4*m+(t>>1)}, v{vSel+2*r+(t&1)}")
        for m in range(2):
            for h in range(2):
                d = vQacc + (m*2+h)*4
                a = WSLOT*32 + 4*t + 2*h
                c = "0" if t == 0 else f"v[{d}:{d+3}]"
                I(f"v_mfma_f32_16x16x16_bf16 v[{d}:{d+3}], a[{a}:{a+1}], v[{bs+2*m}:{bs+2*m+1}], {c}")
    I(f"s_mul_i32 s{s0_}, s{sWave}, {8*ROW}")
    I(f"v_add_u32 v{vTmp}, s{s0_}, v{vLdsW}")
    I(f"s_lshr_b32 s{s0_}, s2, 4")
    I(f"s_lshl_b32 s{s0_}, s{s0_}, 2")
    I(f"s_add_u32 s{s0_}, s{s0_}, s{sJ}")
    I(f"s_lshl_b32 s{s0_}, s{s0_}, 14")
    I(f"s_bfe_u32 s{s1_}, s2, 0x20002")
    I(f"s_lshl_b32 s{s1_}, s{s1_}, 9")
    I(f"s_add_u32 s{s0_}, s{s0_}, s{s1_}")
    I(f"s_add_u32 s{s0_}, s{s0_}, {WS_QP}")
    for m in range(2):
        for h in range(2):
            for r in range(4):
                I(f"ds_write_b32 v{vTmp}, v{vQacc+(m*2+h)*4+r} offset:{LDS_QR + m*4*ROW + (8*r+4*h)*4}")
    I(f"v_lshrrev_b32 v{vTmp}, 5, v0")
    I(f"v_lshlrev_b32 v{vTmp}, 11, v{vTmp}")
    I(f"v_and_b32 v{vTmp2}, 31, v0")
    I(f"v_lshl_add_u32 v{vTmp}, v{vTmp2}, 4, v{vTmp}")
    I("s_waitcnt lgkmcnt(0)")
    stamp(1)
    I("s_barrier")
    stamp(1)
    vR = vG + 44
    for w in range(4):
        I(f"ds_read_b128 v[{vR+4*w}:{vR+4*w+3}], v{vRd} offset:{LDS_QR + w*8*ROW}")
    vQoff = vG + 41
    I(f"v_lshlrev_b32 v{vQoff}, 9, v{vPhi}")
    I(f"v_lshl_add_u32 v{vQoff}, v{vPlo}, 7, v{vQoff}")
    I(f"v_lshl_add_u32 v{vQoff}, v{vP}, 5, v{vQoff}")
    I(f"s_lshl_b32 s{s2_}, s{sG}, 2")
    I(f"s_add_u32 s{s2_}, s{s2_}, s{sWave}")
    I(f"s_lshl_b32 s{s2_}, s{s2_}, 3")
    I(f"s_add_u32 s{s2_}, s{s2_}, s{sB}")
    I(f"s_lshl_b32 s{s2_}, s{s2_}, 11")
    I(f"s_add_u32 s{sQ0}, s{s2_}, {WS_QP}")
    I(f"s_add_u32 s{sQ1}, s{sQ0}, 0x80000")
    I("s_waitcnt lgkmcnt(0)")
    for k in range(4):
        I(f"v_add_f32 v{vR+k}, v{vR+k}, v{vR+4+k}")
        I(f"v_add_f32 v{vR+8+k}, v{vR+8+k}, v{vR+12+k}")
    for k in range(4): I(f"v_add_f32 v{vR+k}, v{vR+k}, v{vR+8+k}")
    for k in range(4): I(f"v_bfi_b32 v{vR+k}, s{sFF}, v{vTag}, v{vR+k}")
    I(f"buffer_store_dwordx4 v[{vR}:{vR+3}], v{vTmp}, s[{sW}:{sW+3}], s{s0_} offen sc1")
    stamp(2)
    vQL = vG + 16
    def qpoll_loads():
        I(f"buffer_load_dwordx4 v[{vQL}:{vQL+3}], v{vQoff}, s[{sW}:{sW+3}], s{sQ0} offen sc1")
        I(f"buffer_load_dwordx4 v[{vQL+4}:{vQL+7}], v{vQoff}, s[{sW}:{sW+3}], s{sQ0} offen offset:16 sc1")
        I(f"buffer_load_dwordx4 v[{vQL+8}:{vQL+11}], v{vQoff}, s[{sW}:{sW+3}], s{sQ1} offen sc1")
        I(f"buffer_load_dwordx4 v[{vQL+12}:{vQL+15}], v{vQoff}, s[{sW}:{sW+3}], s{sQ1} offen offset:16 sc1")
    qregs = list(range(vQL, vQL+16))
    def init_state():
        for k in range(8): I(f"v_mov_b32 v{vAcc+k}, 0")
        I(f"v_mov_b32 v{vM}, 0xff800000")
        I(f"v_mov_b32 v{vMC}, 0xff800000")
        I(f"v_mov_b32 v{vLs}, 0")
    I(f"s_mov_b32 s{sLate}, 0")
    if t0t == 99: issue_tile(0, "A")
    if cfg.t1at == "post": issue_tile(1, "A")
    def idle_setup():
        def init_state():
            for k in range(8): I(f"v_mov_b32 v{vAcc+k}, 0")
            I(f"v_mov_b32 v{vM}, 0xff800000")
            I(f"v_mov_b32 v{vMC}, 0xff800000")
            I(f"v_mov_b32 v{vLs}, 0")
        init_state()
        I(f"v_and_b32 v{vTmp}, 3, v{vL}")
        I(f"v_bfe_u32 v{vTmp2}, v{vL}, 2, 2")
        I(f"v_lshlrev_b32 v{vPo}, 13, v{vTmp}")
        I(f"v_lshl_add_u32 v{vPo}, v{vTmp2}, 11, v{vPo}")
        I(f"v_lshlrev_b32 v{vPm}, 7, v{vTmp}")
        I(f"v_lshl_add_u32 v{vPm}, v{vTmp2}, 5, v{vPm}")
        I(f"v_lshrrev_b32 v{vTmp}, 4, v{vL}")
        I(f"v_lshl_add_u32 v{vPo}, v{vTmp}, 4, v{vPo}")
        I(f"v_lshlrev_b32 v{vWo}, 12, v{vTmp}")
        I(f"v_and_b32 v{vTmp2}, 15, v{vL}")
        I(f"v_lshl_add_u32 v{vWo}, v{vTmp2}, 4, v{vWo}")
        I(f"s_lshr_b32 s{s0_}, s2, 5")
        I(f"s_bfe_u32 s{s1_}, s2, 0x20003")
        I(f"s_bfe_u32 s{s2_}, s2, 0x10002")
        I(f"s_lshl_b32 s{s3_}, s{s0_}, 16")
        I(f"s_lshl_b32 s{s4_}, s{s1_}, 9"); I(f"s_add_u32 s{s3_}, s{s3_}, s{s4_}")
        I(f"s_lshl_b32 s{s4_}, s{s2_}, 8"); I(f"s_add_u32 s{s3_}, s{s3_}, s{s4_}")
        I(f"s_lshl_b32 s{s4_}, s{sWave}, 6"); I(f"s_add_u32 s{s3_}, s{s3_}, s{s4_}")
        I(f"s_add_u32 s{sO[0]}, s{s3_}, {WS_PO}")
        I(f"s_lshl_b32 s{s4_}, s{s0_}, 10")
        I(f"s_lshl_b32 s{s5_}, s{s1_}, 3"); I(f"s_add_u32 s{s4_}, s{s4_}, s{s5_}")
        I(f"s_add_u32 s{sO[1]}, s{s4_}, {WS_PML}")
        I(f"v_lshrrev_b32 v{vOp}, 5, v0")
        I(f"v_lshlrev_b32 v{vOp}, 9, v{vOp}")
        I(f"v_and_b32 v{vTmp}, 31, v0")
        I(f"v_lshl_add_u32 v{vOp}, v{vTmp}, 4, v{vOp}")
        I(f"s_lshr_b32 s{s0_}, s2, 2")
        I(f"s_lshl_b32 s{s1_}, s{sJ}, 6")
        I(f"s_add_u32 s{s1_}, s{s0_}, s{s1_}")
        I(f"s_lshl_b32 s{s1_}, s{s1_}, 12")
        I(f"s_add_u32 s{sO[2]}, s{s1_}, {WS_OP}")
        I(f"s_lshl_b32 s{s0_}, s{s0_}, 2"); I(f"s_add_u32 s{s0_}, s{s0_}, s{sWave}")
        I(f"s_lshl_b32 s{s0_}, s{s0_}, 14")
        I(f"s_lshl_b32 s{s1_}, s{sJ}, 8"); I(f"s_add_u32 s{sWoOff}, s{s0_}, s{s1_}")
        srd(sT, sAwo, 0x400000)
        srd(sT2, sBwo, 0x400000)
        I(f"s_lshl_b32 s{sRdyP}, s{sG}, 11"); I(f"s_add_u32 s{sRdyP}, s{sRdyP}, {WS_R1}")
        I(f"s_lshr_b32 s{sRdyC}, s2, 5"); I(f"s_lshl_b32 s{sRdyC}, s{sRdyC}, 3")
        I(f"s_and_b32 s{s0_}, s2, 1"); I(f"s_lshl_b32 s{s0_}, s{s0_}, 2"); I(f"s_add_u32 s{s0_}, s{s0_}, s{sWave}")
        I(f"s_add_u32 s{sRdyC}, s{sRdyC}, s{s0_}"); I(f"s_lshl_b32 s{sRdyC}, s{sRdyC}, 8"); I(f"s_add_u32 s{sRdyC}, s{sRdyC}, {WS_R1}")
        I(f"s_lshl_b32 s{sR2P}, s{sJ}, 3"); I(f"s_add_u32 s{sR2P}, s{sR2P}, s{sG}")
        I(f"s_lshl_b32 s{sR2P}, s{sR2P}, 8"); I(f"s_add_u32 s{sR2P}, s{sR2P}, {WS_R2}")

    for k in range(2, R):
        qpoll_loads(); issue_tile(k, "A")
        if k == 2: idle_setup()
        I(f"s_mov_b32 s{sLand}, {k}")
        I("s_waitcnt vmcnt(8)")
        if k == 2: stamp(1)
        tagcheck(qregs, f"L_qok{k}")
    I(f"s_mov_b32 s{sLand}, {R}")
    I(f"s_mov_b32 s{sLate}, 1")
    qpoll_loads()
    I("s_waitcnt vmcnt(0)")
    poll_loop("qp", qpoll_loads, qregs, cfg.masked)
    I("s_branch L_qok")
    for k in range(R-1, 1, -1):
        A(f"L_qok{k}:")
        if R == 4:
            if k == 2: issue_tile(3, "A")
            I(f"s_mov_b32 s{sLate}, 1")
        else:
            for n_ in (k+1, k+2):
                if n_ < R: issue_tile(n_, "A")
            if k + 2 >= R - 1: I(f"s_mov_b32 s{sLate}, 1")
            else: I(f"s_mov_b32 s{sLate}, {k+3+8}")
        if k > 2: I("s_branch L_qok")
    A("L_qok:")
    stamp(2)
    if cfg.stamps: I(f"s_mov_b32 s{sLand0}, s{sLand}")
    for r in qregs: I(f"v_and_b32 v{r}, s{sMaskHi}, v{r}")
    I(f"s_lshl_b32 s{s0_}, s{sWave}, 12")
    I(f"v_add_u32 v{vTmp}, s{s0_}, v{vOffV}")
    for k in range(4):
        I(f"ds_write_b128 v{vTmp}, v[{vQL+4*k}:{vQL+4*k+3}] offset:{LDS_QX + k*1024}")
    I("s_waitcnt lgkmcnt(0)")
    I("s_barrier")
    vQR = vG + 0
    def assemble_q(br, dq):
        for w in range(4):
            for k in range(2):
                d = vQR + (w*2+k)*4
                I(f"ds_read_b128 v[{d}:{d+3}], v{vOffV} offset:{LDS_QX + w*4096 + (br*2+k)*1024}")
        I("s_waitcnt lgkmcnt(0)")
        for e in range(8):
            I(f"v_add_f32 v{vQR+e}, v{vQR+e}, v{vQR+8+e}")
            I(f"v_add_f32 v{vQR+16+e}, v{vQR+16+e}, v{vQR+24+e}")
        for e in range(8): I(f"v_add_f32 v{vQR+e}, v{vQR+e}, v{vQR+16+e}")
        for r in range(4): I(f"v_cvt_pk_bf16_f32 v{dq+r}, v{vQR+2*r}, v{vQR+2*r+1}")
    assemble_q(0, vQ)
    if not cfg.qbdefer: assemble_q(1, vQB)
    I(f"s_mov_b32 s{sI}, 0")
    I(f"s_mov_b32 s{sPre}, 0")
    I(f"s_mov_b32 s{sExtra}, 0")
    I(f"s_mov_b32 s{sEnd}, -1")
    stamp(2)
    late_steps = {1: 0} if R == 4 else {1: 0, 4: 1}
    A(".p2align 3")
    A("L_round:")
    if cfg.stamps and cfg.diag == 6:
        for k in range(1, 10):
            I(f"s_cmp_eq_u32 s{sI}, {4*(k-1)}")
            I(f"s_cbranch_scc0 L_ps{k}")
            I(f"s_memrealtime s[{sStamp+2*k}:{sStamp+2*k+1}]")
            A(f"L_ps{k}:")
    for s in range(R):
        I(f"s_cmp_lt_u32 s{sI}, s{sLand}")
        I(f"s_cbranch_scc1 L_nowait{s}")
        I(f"s_sub_u32 s{s0_}, s{sIss}, s{sI}")
        if cfg.apre and cfg.preN and cfg.preafter:
            I(f"s_add_u32 s{s0_}, s{s0_}, s{sExtra}")
            I(f"s_mov_b32 s{sExtra}, 0")
        I(f"s_cmp_eq_u32 s{s0_}, {W}")
        I(f"s_cbranch_scc0 L_wait{s}")
        I(f"s_waitcnt vmcnt({8*(W-1)})")
        A(f"L_nowait{s}:")
        if cfg.stamps and cfg.diag == 5 and s < 4:
            I(f"s_cmp_eq_u32 s{sI}, {cfg.iA + s}")
            I(f"s_cbranch_scc0 L_nost{s}")
            I(f"s_memrealtime s[{sStamp+2*(6+s)}:{sStamp+2*(6+s)+1}]")
            A(f"L_nost{s}:")
        I(f"s_add_u32 s{s0_}, s{sI}, {W}")
        I(f"s_add_u32 s{sI}, s{sI}, 1")
        if s in late_steps:
            I(f"s_cmp_eq_u32 s{sLate}, 1")
            I(f"s_cbranch_scc1 L_late{s}")
        if s == 0 and R == 8:
            I(f"s_cmp_gt_u32 s{sLate}, 1")
            I(f"s_cbranch_scc1 L_br0")
        I(f"s_cmp_eq_u32 s{sIss}, s{s0_}")
        I(f"s_cbranch_scc0 L_noiss{s}")
        I(f"s_cmp_ge_u32 s{sIss}, {NST-1}")
        I(f"s_cbranch_scc1 L_dyn{s}")
        A(f"L_loads{s}:")
        issue_tile((s+W) % R)
        A(f"L_noiss{s}:")
        for t in range(4):
            a = s*32 + 4*t
            I(f"v_mfma_f32_16x16x32_bf16 v[{vD+4*t}:{vD+4*t+3}], a[{a}:{a+3}], v[{vQ}:{vQ+3}], 0")
        I("s_nop 4")
        for t in range(4):
            hbs = [(t+1) & 3, (t+2) & 3, (t+3) & 3]
            n = [(4*(t-hb)) % 16 for hb in hbs]
            I(f"v_add_f32_dpp v{vTmp}, v{vD+4*t+hbs[0]}, v{vD+4*t+t} row_ror:{n[0]} row_mask:0xf bank_mask:0xf")
            I(f"v_add_f32_dpp v{vTmp}, v{vD+4*t+hbs[1]}, v{vTmp} row_ror:{n[1]} row_mask:0xf bank_mask:0xf")
            I(f"v_add_f32_dpp v{vS}, v{vD+4*t+hbs[2]}, v{vTmp} row_ror:{n[2]} row_mask:0xf bank_mask:{hex(1<<t)}")
        I(f"v_cmp_gt_f32 vcc, v{vS}, v{vM}")
        I(f"s_cbranch_vccnz L_rare{s}")
        A(f"L_cont{s}:")
        I(f"v_fma_f32 v{vP}, v{vS}, s{sC}, -v{vMC}")
        I(f"v_exp_f32 v{vP}, v{vP}")
        I("s_nop 0")
        I(f"v_cvt_pk_bf16_f32 v{vPlo}, v{vP}, 0")
        I(f"v_cvt_pk_bf16_f32 v{vPhi}, 0, v{vP}")
        I(f"v_add_f32 v{vLs}, v{vLs}, v{vP}")
        I("s_nop 0")
        for t in range(4):
            for beta in range(4):
                src = vPlo if beta % 2 == 0 else vPhi
                n = (4*(beta - t)) % 16
                ctl = f"row_ror:{n}" if n else "quad_perm:[0,1,2,3]"
                I(f"v_mov_b32_dpp v{vBp+2*t+(beta>>1)}, v{src} {ctl} row_mask:0xf bank_mask:{hex(1<<beta)}")
        for t in range(4):
            for h in range(2):
                a = s*32 + 16 + 4*t + 2*h
                I(f"v_mfma_f32_16x16x16_bf16 v[{vAcc+4*h}:{vAcc+4*h+3}], a[{a}:{a+1}], v[{vBp+2*t}:{vBp+2*t+1}], v[{vAcc+4*h}:{vAcc+4*h+3}]")
        I(f"s_cmp_eq_u32 s{sI}, s{sEnd}")
        I("s_cbranch_scc1 L_exit")
    I(f"s_mov_b32 s{sLate}, 0")
    I(f"s_cmp_eq_u32 s{sI}, 8")
    I("s_cbranch_scc0 L_round")

    def write_partial(pr, ml, lvl=None, barrier=True):
        I("s_nop 7")
        allsum(vLs)
        I(f"s_mul_i32 s{s0_}, s{sWave}, {4*ROW}")
        I(f"v_add_u32 v{vTmp}, s{s0_}, v{vLdsW}")
        for h in range(2):
            for r in range(4):
                I(f"ds_write_b32 v{vTmp}, v{vAcc+4*h+r} offset:{pr + (8*r+4*h)*4}")
        I(f"s_lshl_b32 s{s0_}, s{sWave}, 5")
        I(f"v_lshl_add_u32 v{vTmp}, v{vL}, 3, s{s0_}")
        I(f"v_mov_b32 v{vG}, v{vM}"); I(f"v_mov_b32 v{vG+1}, v{vLs}")
        I("s_mov_b64 exec, 0xf")
        I(f"ds_write_b64 v{vTmp}, v[{vG}:{vG+1}] offset:{ml}")
        I("s_mov_b64 exec, -1")
        I("s_waitcnt lgkmcnt(0)")
        if lvl is not None: stamp(lvl)
        if barrier: I("s_barrier")
        if lvl is not None: stamp(lvl)
    def combine_pass(br, pr, ml, vRdX, hd_src, hoff):
        vA = vG + 8; vMl = vG + 24; vHd = vG + 2; vSo = vG + 3; vSm = vG + 4; vMx = vG + 32; vLt = vG + 33
        I(f"v_lshrrev_b32 v{vHd}, 5, v{hd_src}")
        if hoff: I(f"v_add_u32 v{vHd}, {hoff}, v{vHd}")
        I(f"v_lshlrev_b32 v{vSm}, 3, v{vHd}")
        for w in range(4): I(f"ds_read_b64 v[{vMl+2*w}:{vMl+2*w+1}], v{vSm} offset:{ml + w*32}")
        for w in range(4): I(f"ds_read_b128 v[{vA+4*w}:{vA+4*w+3}], v{vRdX} offset:{pr + hoff*ROW + w*4*ROW}")
        I(f"s_lshl_b32 s{s0_}, s{sG}, 3"); I(f"s_add_u32 s{s0_}, s{s0_}, s{sB}")
        I(f"s_lshl_b32 s{s0_}, s{s0_}, 2"); I(f"s_add_u32 s{s0_}, s{s0_}, s{sJa}")
        I(f"s_lshl_b32 s{s1_}, s{s0_}, 5"); I(f"s_add_u32 s{s1_}, s{s1_}, {WS_PML + br*8192}")
        I(f"s_lshl_b32 s{s0_}, s{s0_}, 11"); I(f"s_add_u32 s{s0_}, s{s0_}, {WS_PO + br*0x80000}")
        I(f"v_lshlrev_b32 v{vSo}, 9, v{vHd}")
        I(f"v_and_b32 v{vTmp}, 31, v{hd_src}")
        I(f"v_lshl_add_u32 v{vSo}, v{vTmp}, 4, v{vSo}")
        I("s_waitcnt lgkmcnt(4)")
        I(f"v_max_f32 v{vMx}, v{vMl}, v{vMl+2}")
        I(f"v_max3_f32 v{vMx}, v{vMx}, v{vMl+4}, v{vMl+6}")
        for w in range(4): I(f"v_sub_f32 v{vMl+2*w}, v{vMl+2*w}, v{vMx}")
        for w in range(4): I(f"v_mul_f32 v{vMl+2*w}, s{sC}, v{vMl+2*w}")
        for w in range(4): I(f"v_exp_f32 v{vMl+2*w}, v{vMl+2*w}")
        I(f"v_mul_f32 v{vLt}, v{vMl}, v{vMl+1}")
        for w in range(1, 4): I(f"v_fmac_f32 v{vLt}, v{vMl+2*w}, v{vMl+2*w+1}")
        I(f"v_rcp_f32 v{vMl+1}, v{vLt}")
        I(f"v_log_f32 v{vLt}, v{vLt}")
        I("s_nop 0")
        for w in range(4): I(f"v_mul_f32 v{vMl+2*w}, v{vMl+2*w}, v{vMl+1}")
        I(f"v_fma_f32 v{vMx}, v{vMx}, s{sC}, v{vLt}")
        I("s_waitcnt lgkmcnt(0)")
        for k in range(4): I(f"v_mul_f32 v{vA+k}, v{vMl}, v{vA+k}")
        for w in range(1, 4):
            for k in range(4): I(f"v_fmac_f32 v{vA+k}, v{vMl+2*w}, v{vA+4*w+k}")
        for k in range(4): I(f"v_bfi_b32 v{vA+k}, s{sFF}, v{vTag}, v{vA+k}")
        I(f"buffer_store_dwordx4 v[{vA}:{vA+3}], v{vSo}, s[{sW}:{sW+3}], s{s0_} offen sc1")
        I(f"v_bfi_b32 v{vMx}, s{sFF}, v{vTag}, v{vMx}")
        I(f"v_mov_b32 v{vLt}, v{vTag}")
        I(f"v_cmp_eq_u32 vcc, 0, v{vTmp}")
        I(f"s_and_saveexec_b64 s[{s2_}:{s3_}], vcc")
        I(f"buffer_store_dwordx2 v[{vMx}:{vMx+1}], v{vSm}, s[{sW}:{sW+3}], s{s1_} offen sc1")
        I("s_mov_b64 exec, -1")
    def combine_publish(br, pr, ml, skip, rdy=False):
        I(f"s_cmp_ge_u32 s{sWave}, 2")
        I(f"s_cbranch_scc1 {skip}")
        def arrive1():
            I(f"v_mov_b32 v{vTmp2}, 1")
            I(f"v_lshlrev_b32 v{vTmp}, 8, v{vL}")
            I("s_mov_b64 exec, 0xff")
            I(f"buffer_atomic_add v{vTmp2}, v{vTmp}, s[{sW}:{sW+3}], s{sRdyP} offen sc1")
            I("s_mov_b64 exec, -1")
        if rdy and cfg.r1lead: arrive1()
        combine_pass(br, pr, ml, vRd, 0, 0)
        if rdy and not cfg.r1lead: arrive1()
        A(f"{skip}:")
    vRdL = vG + 40
    def lane_rd():
        I(f"v_lshrrev_b32 v{vRdL}, 5, v{vL}")
        I(f"v_mul_u32_u24 v{vRdL}, 196, v{vRdL}")
        I(f"v_bfe_u32 v{vTmp}, v{vL}, 3, 2")
        I(f"v_mad_u32_u24 v{vRdL}, v{vTmp}, 48, v{vRdL}")
        I(f"v_and_b32 v{vTmp}, 7, v{vL}")
        I(f"v_lshl_add_u32 v{vRdL}, v{vTmp}, 2, v{vRdL}")
        I(f"v_lshlrev_b32 v{vRdL}, 2, v{vRdL}")

    au = [0]
    def ahead_tiles():
        for k in range(1, cfg.ahead+1):
            u = au[0]; au[0] += 1
            I(f"s_add_u32 s{s4_}, s{sI}, {k}")
            I(f"s_cmp_eq_u32 s{sIss}, s{s4_}")
            I(f"s_cbranch_scc0 L_ah{u}")
            issue_tile(k)
            A(f"L_ah{u}:")
    ahead_tiles()
    if cfg.swbar:
        write_partial(LDS_PRA, LDS_MLA)
        combine_publish(0, LDS_PRA, LDS_MLA, "L_pubA_done")
    else:
        write_partial(LDS_PRA, LDS_MLA, barrier=False)
        arrive(0, "L_pubA_done")
        lane_rd()
        combine_pass(0, LDS_PRA, LDS_MLA, vRdL, vL, 0)
        I("s_nop 0")
        combine_pass(0, LDS_PRA, LDS_MLA, vRdL, vL, 2)
        A("L_pubA_done:")
    init_state()
    if cfg.qbdefer:
        assemble_q(1, vQ)
        I("s_nop 1")
    else:
        for k in range(4): I(f"v_mov_b32 v{vQ+k}, v{vQB+k}")
    I("s_branch L_round")

    vWoA = vG + 44
    rO = {0: list(range(vG+40, vG+44)) + list(range(40, 44)), 1: list(range(vG+8, vG+16))}
    rN = {0: list(range(vQB, vQB+4)), 1: list(range(vG+16, vG+20))}
    def part_loads(br):
        O, N = rO[br], rN[br]
        def f():
            I(f"s_add_u32 s{s4_}, s{sO[0]}, {br*0x80000}")
            I(f"s_add_u32 s{s5_}, s{sO[0]}, {br*0x80000 + 4*8192}")
            I(f"s_add_u32 s{sTl}, s{sO[1]}, {br*8192}")
            I(f"buffer_load_dwordx2 v[{N[0]}:{N[1]}], v{vPm}, s[{sW}:{sW+3}], s{sTl} offen sc1")
            I(f"buffer_load_dwordx2 v[{N[2]}:{N[3]}], v{vPm}, s[{sW}:{sW+3}], s{sTl} offen offset:512 sc1")
            I(f"buffer_load_dwordx4 v[{O[0]}:{O[3]}], v{vPo}, s[{sW}:{sW+3}], s{s4_} offen sc1")
            I(f"buffer_load_dwordx4 v[{O[4]}:{O[7]}], v{vPo}, s[{sW}:{sW+3}], s{s5_} offen sc1")
        return f
    def wo_loads(br):
        for t in range(4):
            dst = f"a[{4*t}:{4*t+3}]" if br else f"v[{vWoA+4*t}:{vWoA+4*t+3}]"
            I(f"buffer_load_dwordx4 {dst}, v{vWo}, s[{(sT2 if br else sT)}:{(sT2 if br else sT)+3}], s{sWoOff} offen offset:{t*1024} {pol(cfg.fWoB if br else cfg.fWoA)}")
    A("L_exit:")
    stamp(4)
    vOB = vG + 24
    vOA = vD
    if cfg.hint:
        I(f"v_mov_b32 v{vClaim}, 0")
        I("s_mov_b64 exec, 1")
        I(f"buffer_atomic_add v{vClaim}, v{vZ}, s[{sW}:{sW+3}], s{sRdyC} offen sc0 sc1")
        I("s_mov_b64 exec, -1")
    if not cfg.apre:
        wo_loads(0)
    if cfg.woearly and not cfg.wobpost: wo_loads(1)
    write_partial(LDS_PRB, LDS_MLB, 3)
    combine_publish(1, LDS_PRB, LDS_MLB, "L_pubB_done", rdy=cfg.gate1)
    stamp(4)
    if cfg.wobpost: wo_loads(1)
    if cfg.apre:
        assert cfg.woearly and not cfg.bearly
        I(f"s_cmp_ge_u32 s{sWave}, 2")
        I("s_cbranch_scc1 L_wA4")
        I(f"s_waitcnt vmcnt({7 if cfg.gate1 else 6})")
        I("s_branch L_wAd")
        A("L_wA4:")
        I("s_waitcnt vmcnt(4)")
        A("L_wAd:")
        if cfg.hint:
            I(f"v_readfirstlane_b32 s{sEarly}, v{vClaim}")
            I("s_nop 1")
            I(f"s_cmp_ge_u32 s{sEarly}, {cfg.hintN}")
            I(f"s_cselect_b32 s{sEarly}, 1, 0")
            I("s_cbranch_scc0 L_noearly")
            part_loads(1)()
            A("L_noearly:")
    else:
        part_loads(0)()
        I("s_waitcnt vmcnt(0)")
    def arrive2():
        I(f"v_mov_b32 v{vTmp}, 1")
        I("s_mov_b64 exec, 1")
        I(f"buffer_atomic_add v{vTmp}, v{vZ}, s[{sW}:{sW+3}], s{sR2P} offen sc1")
        I("s_mov_b64 exec, -1")
    def query1():
        I(f"v_mov_b32 v{vClaim}, 0")
        I("s_mov_b64 exec, 1")
        I(f"buffer_atomic_add v{vClaim}, v{vZ}, s[{sW}:{sW+3}], s{sRdyC} offen sc0 sc1")
        I("s_mov_b64 exec, -1")
    def project(br, orb):
        O, N = rO[br], rN[br]
        Nm = [N[0], N[2]]; Nl = [N[1], N[3]]
        poll_loop(f"h1{br}", part_loads(br), O + Nm, cfg.masked, full=Nl)
        if br == 1: stamp(4)
        if br == 0: stamp(7)
        if br == 1 and cfg.stamps and cfg.diag == 3: I(f"s_sub_u32 s{sLand0}, {hex(cfg.TO)}, s{sTo}")
        if br == 1 and cfg.gate2 and cfg.r2lead == 3: arrive2()
        for r in Nm + O: I(f"v_and_b32 v{r}, s{sMaskHi}, v{r}")
        mx = [vTmp, vTmp2]
        for m in range(2): I(f"v_max_f32_dpp v{mx[m]}, v{Nm[m]}, v{Nm[m]} row_ror:4 row_mask:0xf bank_mask:0xf")
        I("s_nop 0")
        for m in range(2): I(f"v_max_f32_dpp v{mx[m]}, v{mx[m]}, v{mx[m]} row_ror:8 row_mask:0xf bank_mask:0xf")
        for m in range(2): I(f"v_sub_f32 v{Nm[m]}, v{Nm[m]}, v{mx[m]}")
        for m in range(2): I(f"v_exp_f32 v{Nm[m]}, v{Nm[m]}")
        I("s_nop 1")
        for m in range(2): I(f"v_add_f32_dpp v{Nl[m]}, v{Nm[m]}, v{Nm[m]} row_ror:4 row_mask:0xf bank_mask:0xf")
        I("s_nop 0")
        for m in range(2): I(f"v_add_f32_dpp v{Nl[m]}, v{Nl[m]}, v{Nl[m]} row_ror:8 row_mask:0xf bank_mask:0xf")
        for m in range(2): I(f"v_rcp_f32 v{Nl[m]}, v{Nl[m]}")
        I("s_nop 0")
        for m in range(2): I(f"v_mul_f32 v{Nm[m]}, v{Nm[m]}, v{Nl[m]}")
        for m in range(2):
            for k in range(4): I(f"v_mul_f32 v{O[4*m+k]}, v{Nm[m]}, v{O[4*m+k]}")
        for sh in (4, 8):
            for k in range(8): I(f"v_add_f32_dpp v{O[k]}, v{O[k]}, v{O[k]} row_ror:{sh} row_mask:0xf bank_mask:0xf")
        for k in range(8): I(f"v_cvt_pk_bf16_f32 v{O[k]}, v{O[k]}, v{O[k]}")
        for m in range(2):
            for t in range(4):
                I(f"v_and_b32 v{vOB+8*m+2*t}, v{O[4*m+t]}, v{vMask0}")
                I(f"v_and_b32 v{vOB+8*m+2*t+1}, v{O[4*m+t]}, v{vMask1}")
        if br == 0 and cfg.gate1 and cfg.g1early:
            if cfg.hint:
                I(f"s_cmp_eq_u32 s{sEarly}, 1")
                I("s_cbranch_scc1 L_noq1")
            query1()
            if cfg.hint: A("L_noq1:")
        if br == 1 and cfg.gate2 and cfg.r2lead == 2: arrive2()
        I("s_nop 0")
        for t in range(4):
            for m in range(2):
                for h in range(2):
                    d = vOA + (m*2+h)*4
                    src = f"a[{4*t+2*h}:{4*t+2*h+1}]" if br else f"v[{vWoA+4*t+2*h}:{vWoA+4*t+2*h+1}]"
                    c = "0" if t == 0 else f"v[{d}:{d+3}]"
                    I(f"v_mfma_f32_16x16x16_bf16 v[{d}:{d+3}], {src}, v[{vOB+8*m+2*t}:{vOB+8*m+2*t+1}], {c}")
        I(f"s_mul_i32 s{s0_}, s{sWave}, {8*ROW}")
        I(f"v_add_u32 v{vTmp2}, s{s0_}, v{vLdsW}")
        I(f"s_add_u32 s{s1_}, s{sO[2]}, {br*4*64*8*512}")
        if br == 0 and cfg.gate1 and not cfg.g1early: query1()
        I("s_nop 5")
        for m in range(2):
            for h in range(2):
                for r in range(4):
                    I(f"ds_write_b32 v{vTmp2}, v{vOA+(m*2+h)*4+r} offset:{orb + m*4*ROW + (8*r+4*h)*4}")
        if br == 1 and cfg.gate2 and cfg.r2lead == 1: arrive2()
        I("s_waitcnt lgkmcnt(0)")
        if br == 0: stamp(7)
        I("s_barrier")
        if br == 0: stamp(7)
        if br == 0 and cfg.bpos == "bar" and not cfg.gate1: part_loads(1)()
        if br == 0 and cfg.gate1 and cfg.g1early:
            if cfg.hint:
                I(f"s_cmp_eq_u32 s{sEarly}, 1")
                I("s_cbranch_scc1 L_g1late")
            I("s_waitcnt vmcnt(0)")
            I(f"v_readfirstlane_b32 s{sEarly}, v{vClaim}")
            I("s_nop 1")
            I(f"s_cmp_ge_u32 s{sEarly}, 64")
            I(f"s_cselect_b32 s{sEarly}, 1, 0")
            I("s_cbranch_scc0 L_g1late")
            part_loads(1)()
            A("L_g1late:")
        vA = vD
        for w in range(4): I(f"ds_read_b128 v[{vA+4*w}:{vA+4*w+3}], v{vRd} offset:{orb + w*8*ROW}")
        I("s_waitcnt lgkmcnt(0)")
        for k in range(4):
            I(f"v_add_f32 v{vA+k}, v{vA+k}, v{vA+4+k}")
            I(f"v_add_f32 v{vA+8+k}, v{vA+8+k}, v{vA+12+k}")
        for k in range(4): I(f"v_add_f32 v{vA+k}, v{vA+k}, v{vA+8+k}")
        for k in range(4): I(f"v_bfi_b32 v{vA+k}, s{sFF}, v{vTag}, v{vA+k}")
        I(f"buffer_store_dwordx4 v[{vA}:{vA+3}], v{vOp}, s[{sW}:{sW+3}], s{s1_} offen sc1")
    project(0, LDS_ORA)
    stamp(7)
    if cfg.gate1:
        if cfg.g1early:
            I(f"s_cmp_eq_u32 s{sEarly}, 1")
            I("s_cbranch_scc1 L_g1have")
            query1()
            I("s_waitcnt vmcnt(0)")
        else:
            I("s_waitcnt vmcnt(1)")
        I(f"s_mov_b32 s{sTo}, {cfg.gto}")
        A("L_g1:")
        I(f"v_readfirstlane_b32 s{s0_}, v{vClaim}")
        I("s_nop 1")
        I(f"s_cmp_ge_u32 s{s0_}, 64")
        I("s_cbranch_scc1 L_g1ok")
        I(f"s_sub_u32 s{sTo}, s{sTo}, 1")
        I(f"s_cmp_eq_u32 s{sTo}, 0")
        I("s_cbranch_scc1 L_g1ok")
        query1()
        I("s_waitcnt vmcnt(0)")
        I("s_branch L_g1")
        A("L_g1ok:")
        part_loads(1)()
        I("s_waitcnt vmcnt(0)")
        if cfg.g1early:
            A("L_g1have:")
            I("s_waitcnt vmcnt(1)")
    elif cfg.bpos == "store":
        part_loads(1)()
        I("s_waitcnt vmcnt(0)")
    else:
        I("s_waitcnt vmcnt(1)")
    if cfg.diag == 3: stamp(3); stamp(3)
    project(1, LDS_ORB2)
    if cfg.gate2 and cfg.r2lead == 0: arrive2()
    stamp(4)
    def final_reduce(tag, ahead=None):
        I(f"s_lshr_b32 s{s0_}, s2, 7")
        I(f"s_bfe_u32 s{s1_}, s2, 0x30004")
        I(f"s_bfe_u32 s{s2_}, s2, 0x20002")
        I(f"s_lshl_b32 s{s3_}, s{s0_}, 2"); I(f"s_add_u32 s{s3_}, s{s3_}, s{s2_}")
        I(f"s_lshl_b32 s{s3_}, s{s3_}, 18")
        I(f"s_lshl_b32 s{s4_}, s{s1_}, 9"); I(f"s_add_u32 s{s3_}, s{s3_}, s{s4_}")
        I(f"s_lshl_b32 s{s4_}, s{sJ}, 7"); I(f"s_add_u32 s{s3_}, s{s3_}, s{s4_}")
        I(f"s_add_u32 s{s3_}, s{s3_}, {WS_OP}")
        I(f"v_lshrrev_b32 v{vG}, 3, v{vL}")
        I(f"v_lshlrev_b32 v{vG}, 12, v{vG}")
        I(f"v_and_b32 v{vG+1}, 7, v{vL}")
        I(f"v_lshl_add_u32 v{vG}, v{vG+1}, 4, v{vG}")
        vF = vG + 8
        I(f"s_lshl_b32 s{s4_}, s{s1_}, 11")
        I(f"s_lshl_b32 s{s5_}, s{s0_}, 10"); I(f"s_add_u32 s{s4_}, s{s4_}, s{s5_}")
        I(f"s_lshl_b32 s{s5_}, s{s2_}, 8"); I(f"s_add_u32 s{s4_}, s{s4_}, s{s5_}")
        I(f"s_lshl_b32 s{s5_}, s{sJ}, 6"); I(f"s_add_u32 s{s5_}, s{s4_}, s{s5_}")
        srd(sT, sOut, 16384)
        I(f"v_lshlrev_b32 v{vG+1}, 3, v{vG+1}")
        def loads():
            I(f"s_mov_b32 s{s4_}, s{s3_}")
            for i in range(8):
                I(f"buffer_load_dwordx4 v[{vF+4*i}:{vF+4*i+3}], v{vG}, s[{sW}:{sW+3}], s{s4_} offen sc1")
                if i < 7: I(f"s_add_u32 s{s4_}, s{s4_}, 32768")
        if ahead is None and cfg.probe:
            I(f"v_lshlrev_b32 v{vG+2}, 12, v{vL}")
            def probe():
                I(f"buffer_load_dword v{vG+3}, v{vG+2}, s[{sW}:{sW+3}], s{s3_} offen sc1")
            probe()
            I("s_waitcnt vmcnt(0)")
            poll_loop(f"pr{tag}", probe, [vG+3], True)
        if cfg.gate2:
            I("s_cmp_lt_u32 s2, 128")
            I(f"s_cbranch_scc1 L_g2ok")
            I(f"s_lshl_b32 s{s4_}, s{s2_}, 11"); I(f"s_add_u32 s{sTl}, s{s4_}, {WS_R2}")
            I(f"v_lshlrev_b32 v{vG+2}, 8, v{vL}")
            I(f"s_mov_b32 s{sTo}, {cfg.gto}")
            A("L_g2:")
            I(f"v_mov_b32 v{vG+3}, 0")
            I("s_mov_b64 exec, 0xff")
            I(f"buffer_atomic_add v{vG+3}, v{vG+2}, s[{sW}:{sW+3}], s{sTl} offen sc0 sc1")
            I("s_waitcnt vmcnt(0)")
            I(f"v_cmp_gt_u32 vcc, 32, v{vG+3}")
            I("s_mov_b64 exec, -1")
            I("s_cbranch_vccz L_g2ok")
            I(f"s_sub_u32 s{sTo}, s{sTo}, 1")
            I(f"s_cmp_lg_u32 s{sTo}, 0")
            I("s_cbranch_scc1 L_g2")
            A("L_g2ok:")
        loads()
        if ahead is not None:
            ahead()
        else:
            I("s_waitcnt vmcnt(0)")
        if not cfg.h2mask:
            poll_loop(f"h2{tag}", loads, list(range(vF, vF+32)), False)
        else:
            mk = [4 + 2*i for i in range(8)]
            for i in range(8): I(f"s_mov_b64 s[{mk[i]}:{mk[i]+1}], -1")
            I(f"s_mov_b32 s{sTo}, {hex(cfg.TO)}")
            A(f"L_h2{tag}_chk:")
            for i in range(8):
                I(f"s_mov_b64 exec, s[{mk[i]}:{mk[i]+1}]")
                I(f"s_cbranch_execz L_h2{tag}_c{i}")
                tagbad(list(range(vF+4*i, vF+4*i+4)))
                I("s_nop 0")
                I(f"s_mov_b64 s[{mk[i]}:{mk[i]+1}], vcc")
                A(f"L_h2{tag}_c{i}:")
            I("s_mov_b64 exec, -1")
            I(f"s_or_b64 vcc, s[{mk[0]}:{mk[0]+1}], s[{mk[1]}:{mk[1]+1}]")
            for i in range(2, 8): I(f"s_or_b64 vcc, vcc, s[{mk[i]}:{mk[i]+1}]")
            I(f"s_cbranch_scc0 L_h2{tag}_ok")
            I(f"s_sub_u32 s{sTo}, s{sTo}, 1")
            I(f"s_cmp_eq_u32 s{sTo}, 0")
            I(f"s_cbranch_scc1 L_h2{tag}_ok")
            I(f"s_mov_b32 s{s4_}, s{s3_}")
            for i in range(8):
                I(f"s_mov_b64 exec, s[{mk[i]}:{mk[i]+1}]")
                I(f"s_cbranch_execz L_h2{tag}_l{i}")
                I(f"buffer_load_dwordx4 v[{vF+4*i}:{vF+4*i+3}], v{vG}, s[{sW}:{sW+3}], s{s4_} offen sc1")
                A(f"L_h2{tag}_l{i}:")
                if i < 7: I(f"s_add_u32 s{s4_}, s{s4_}, 32768")
            I("s_mov_b64 exec, -1")
            I("s_waitcnt vmcnt(0)")
            I(f"s_branch L_h2{tag}_chk")
            A(f"L_h2{tag}_ok:")
        for r in range(vF, vF+32): I(f"v_and_b32 v{r}, s{sMaskHi}, v{r}")
        for step in (16, 8, 4):
            for k in range(step): I(f"v_add_f32 v{vF+k}, v{vF+k}, v{vF+step+k}")
        I("s_nop 0")
        for k in range(4): I(f"v_add_f32_dpp v{vF+k}, v{vF+k}, v{vF+k} row_ror:8 row_mask:0xf bank_mask:0xf")
        for k in range(4): I(f"v_mov_b32 v{vF+4+k}, v{vF+k}")
        I("s_nop 1")
        for k in range(4): I(f"v_permlane16_swap_b32 v{vF+k}, v{vF+4+k}")
        I("s_nop 1")
        for k in range(4): I(f"v_add_f32 v{vF+k}, v{vF+k}, v{vF+4+k}")
        for k in range(4): I(f"v_mov_b32 v{vF+4+k}, v{vF+k}")
        I("s_nop 1")
        for k in range(4): I(f"v_permlane32_swap_b32 v{vF+k}, v{vF+4+k}")
        I("s_nop 1")
        for k in range(4): I(f"v_add_f32 v{vF+k}, v{vF+k}, v{vF+4+k}")
        I(f"v_cvt_pk_bf16_f32 v{vF+8}, v{vF}, v{vF+1}")
        I(f"v_cvt_pk_bf16_f32 v{vF+9}, v{vF+2}, v{vF+3}")
        I("s_mov_b64 exec, 0xff")
        I(f"buffer_store_dwordx2 v[{vF+8}:{vF+9}], v{vG+1}, s[{sT}:{sT+3}], s{s5_} offen {pol(cfg.outf) if cfg.outf else ''}")
        I("s_mov_b64 exec, -1")

    I(f"s_cmp_lg_u32 s{sWave}, 0")
    I("s_cbranch_scc1 L_fin")
    final_reduce("E")
    I("s_cmp_lg_u32 s2, 0")
    I("s_cbranch_scc1 L_fin")
    I("s_mov_b64 exec, 1")
    I(f"buffer_store_dword v{vTag}, v{vZ}, s[{sW}:{sW+3}], 0 offen offset:{WS_EPOCH} sc1")
    A("L_fin:")
    if cfg.stamps:
        I("s_mov_b64 exec, 1")
        I(f"s_memrealtime s[100:101]")
        I("s_waitcnt lgkmcnt(0)")
        I(f"s_lshl_b32 s{s0_}, s2, 2"); I(f"s_add_u32 s{s0_}, s{s0_}, s{sWave}"); I(f"s_lshl_b32 s{s0_}, s{s0_}, 7")
        I(f"s_add_u32 s{s0_}, s{s0_}, {WS_STAMP}")
        for q in range(5):
            for k in range(4): I(f"v_mov_b32 v{vG+4*q+k}, s{sStamp+4*q+k}")
            I(f"buffer_store_dwordx4 v[{vG+4*q}:{vG+4*q+3}], v{vZ}, s[{sW}:{sW+3}], s{s0_} offen offset:{16*q}")
        I(f"s_getreg_b32 s{s1_}, hwreg(HW_REG_XCC_ID)")
        I(f"s_lshl_b32 s{s2_}, s{sEnd}, 8"); I(f"s_or_b32 s{sLand0}, s{sLand0}, s{s2_}")
        I(f"v_mov_b32 v{vG+20}, s100"); I(f"v_mov_b32 v{vG+21}, s101"); I(f"v_mov_b32 v{vG+22}, s{s1_}"); I(f"v_mov_b32 v{vG+23}, s{sLand0}")
        I(f"buffer_store_dwordx4 v[{vG+20}:{vG+23}], v{vZ}, s[{sW}:{sW+3}], s{s0_} offen offset:80")
    I("s_endpgm")
    for s in range(R):
        A(f"L_rare{s}:")
        I(f"v_mov_b32 v{vTmp}, v{vS}")
        allsum(vTmp, "max")
        I(f"v_max_f32 v{vTmp}, v{vTmp}, v{vM}")
        I(f"v_sub_f32 v{vTmp2}, v{vM}, v{vTmp}")
        I(f"v_mul_f32 v{vTmp2}, s{sC}, v{vTmp2}")
        I(f"v_exp_f32 v{vTmp2}, v{vTmp2}")
        I(f"v_mov_b32 v{vM}, v{vTmp}")
        I(f"v_mul_f32 v{vMC}, s{sC}, v{vTmp}")
        I(f"v_mul_f32 v{vLs}, v{vLs}, v{vTmp2}")
        for k in range(8): I(f"v_mul_f32 v{vAcc+k}, v{vAcc+k}, v{vTmp2}")
        I(f"s_branch L_cont{s}")
    if R == 8:
        A("L_br0:")
        for slot in (5, 6, 7):
            I(f"s_cmp_eq_u32 s{sLate}, {slot+8}")
            I(f"s_cbranch_scc1 L_br0_{slot}")
        I("s_branch L_noiss0")
        for slot in (5, 6, 7):
            A(f"L_br0_{slot}:")
            I(f"s_mov_b32 s{sLate}, 0")
            issue_tile(slot, "A")
            I("s_branch L_noiss0")
    for s, slot in late_steps.items():
        A(f"L_late{s}:")
        issue_tile(slot, "A" if R == 4 else None)
        I(f"s_branch L_noiss{s}")
    for s in range(R):
        A(f"L_wait{s}:")
        for d in (1, 2, 3):
            if d == W: continue
            I(f"s_cmp_eq_u32 s{s0_}, {d}")
            I(f"s_cbranch_scc1 L_wait{s}_{d}")
        I("s_waitcnt vmcnt(24)")
        I(f"s_branch L_nowait{s}")
        for d in (1, 2, 3):
            if d == W: continue
            A(f"L_wait{s}_{d}:")
            I(f"s_waitcnt vmcnt({8*(d-1)})")
            I(f"s_branch L_nowait{s}")
    for s in range(R):
        A(f"L_dyn{s}:")
        I(f"s_cmp_lt_u32 s{sIss}, {NST}")
        I(f"s_cbranch_scc1 L_claim{s}")
        I(f"s_cmp_lg_u32 s{sEnd}, -1")
        I(f"s_cbranch_scc1 L_noiss{s}")
        I(f"v_readfirstlane_b32 s{s1_}, v{vClaim}")
        I("s_nop 1")
        I(f"s_add_u32 s{s1_}, s{s1_}, {16*SB}")
        if cfg.apre:
            I(f"s_cmp_lt_u32 s{s1_}, {512 - cfg.preN}")
            I(f"s_cbranch_scc1 L_got{s}")
            I(f"s_cmp_lg_u32 s{sPre}, 0")
            I(f"s_cbranch_scc1 L_nopre{s}")
            I(f"s_mov_b32 s{sPre}, 1")
            if cfg.preN and cfg.preafter:
                I(f"s_cmp_lt_u32 s{s1_}, 512")
                I(f"s_cbranch_scc1 L_presucc{s}")
            wo_loads(0)
            part_loads(0)()
            A(f"L_nopre{s}:")
        I(f"s_cmp_lt_u32 s{s1_}, 512")
        I(f"s_cbranch_scc1 L_got{s}")
        I(f"s_mov_b32 s{sEnd}, s{sIss}")
        I(f"s_branch L_noiss{s}")
        A(f"L_got{s}:")
        I(f"s_lshl_b32 s{s1_}, s{s1_}, 12")
        I(f"s_add_u32 s{sOff}, s{sPair}, s{s1_}")
        A(f"L_claim{s}:")
        I(f"v_mov_b32 v{vClaim}, 1")
        I("s_mov_b64 exec, 1")
        I(f"buffer_atomic_add v{vClaim}, v{vZ}, s[{sW}:{sW+3}], s{sCnt} offen sc0 sc1")
        I("s_mov_b64 exec, -1")
        I(f"s_branch L_loads{s}")
        if cfg.apre and cfg.preN and cfg.preafter:
            A(f"L_presucc{s}:")
            I(f"s_lshl_b32 s{s1_}, s{s1_}, 12")
            I(f"s_add_u32 s{sOff}, s{sPair}, s{s1_}")
            I(f"v_mov_b32 v{vClaim}, 1")
            I("s_mov_b64 exec, 1")
            I(f"buffer_atomic_add v{vClaim}, v{vZ}, s[{sW}:{sW+3}], s{sCnt} offen sc0 sc1")
            I("s_mov_b64 exec, -1")
            issue_tile((s+W) % R)
            wo_loads(0)
            part_loads(0)()
            I(f"s_mov_b32 s{sExtra}, 1")
            I(f"s_branch L_noiss{s}")
    for (u, slot, pa) in late_blocks:
        A(f"L_ia{u}:")
        tile_loads(slot, *pa)
        I(f"s_branch L_ib{u}")
    A("L_end:")
    I("s_endpgm")
    A('.section .rodata,"a"'); A(".p2align 6"); A(f".amdhsa_kernel {KNAME}")
    I(f".amdhsa_next_free_vgpr {NV + 32*R}")
    I(f".amdhsa_next_free_sgpr {NS}")
    I(f".amdhsa_accum_offset {NV}")
    I(".amdhsa_group_segment_fixed_size 0")
    I(".amdhsa_kernarg_size 104")
    I(".amdhsa_user_sgpr_count 2")
    I(".amdhsa_user_sgpr_kernarg_segment_ptr 1")
    I(".amdhsa_system_sgpr_workgroup_id_x 1")
    I(".amdhsa_float_denorm_mode_32 3")
    A(".end_amdhsa_kernel")
    return "\n".join(L) + "\n"

if __name__ == "__main__":
    out = sys.argv[1]
    cfg = Cfg()
    for kv in sys.argv[2:]:
        k, v = kv.split("=")
        cur = getattr(cfg, k)
        setattr(cfg, k, (v not in ("0", "False")) if isinstance(cur, bool) else (int(v, 0) if isinstance(cur, int) else v))
    open(out, "w").write(gen(cfg))
```

```python
import sys, math, struct
KNAME = "concat_heads__sliding_block_cached__gqa_block_cached__decode_kernel"

class Cfg:
    stamps = False
    fAk = "nt"; fAv = "nt"; fBk = "nt"; fBv = "nt"
    fWq = "nt"; fWoA = "nt"; fWoB = "nt"
    R = 4
    W = 1
    SB = 24
    TO = 0x40000
    diag = 0
    ahead = 1
    t0at = 'w2'
    t1at = 'post'
    codepf = True
    bpos = 'bar'
    qbdefer = True
    gate1 = True
    gate2 = True
    g1early = True
    outf = ''
    preafter = True
    wobpost = True
    r1lead = 1
    r2lead = 2
    gto = 4096
    hint = False
    hintN = 64
    apre = True
    preN = 0
    bearly = False
    xmix = False
    woearly = True
    h2mask = False
    probe = False
    swbar = False
    masked = True
    wexcl = False

WS_EPOCH = 0
WS_CNT  = 0x008000
WS_QP   = 0x010000
WS_PO   = 0x110000
WS_PML  = 0x210000
WS_OP   = 0x220000
WS_R1   = 0x00C000
WS_R2   = 0x420000
WS_STAMP = 0x500000
WS_SIZE = 0x600000

ROW = 196*4
LDS_QR  = 0
LDS_PRA = 0
LDS_MLA = 12544
LDS_PRB = 12800
LDS_MLB = 25344
LDS_ORB = 25600
LDS_ORB2 = 0
LDS_QX  = 25600
LDS_ORA = 25600
LDS_CNT = 25600 + 25088
LDS_SIZE = LDS_CNT + 16

C_SCALE = math.log2(math.e)/math.sqrt(128.0)
def f32bits(x): return struct.unpack("<I", struct.pack("<f", x))[0]
def pol(x): return "" if x == "def" else x.replace("+", " ")

def gen(cfg):
    L = []
    def A(s): L.append(s)
    def I(s): L.append("  " + s)
    R, W, SB = cfg.R, cfg.W, cfg.SB
    assert R in (4, 8) and W == 1
    NST = 8 + SB
    assert 8 + cfg.ahead < NST - 1

    sAx, sAk, sAv, sAwq, sAwo, sBx, sBk, sBv = 4, 6, 8, 10, 12, 14, 16, 18
    sBwq, sBwo, sOut, sDbg = 20, 22, 24, 26
    sWs = 28
    sPc = 30
    sK, sV, sW, sT, sT2 = 32, 36, 40, 44, 48
    sWave = 52; sOff = 53; sOffB = 54; sIss = 55; sLand = 56; sI = 57; sLate = 58
    sC = 59; sFF = 60; sMaskHi = 61
    s0_, s1_, s2_, s3_, s4_, s5_ = 62, 63, 64, 65, 66, 67
    sTo = 68; sStep = 69; sB, sG, sJ = 70, 71, 72
    sLand0 = 73; sPair = 74; sEnd = 75
    sStamp = 76
    sQ0, sQ1 = 100, 101
    sR2P = 9; sExtra = 10
    sRdyP = 20; sRdyC = 21; sEarly = 22
    sTl = 27; sPre = 31; sJa = 30
    sCnt = 96; sO = [97, 98, 99]; sWoOff = 26
    NS = 102

    vL = 1; vOffK = 2; vOffV = 3; vLdsW = 4; vTag = 5
    vM, vMC, vLs, vRd, vClaim = 6, 7, 8, 9, 10
    vS, vP, vPlo, vPhi, vTmp, vTmp2 = 11, 12, 13, 14, 15, 16
    vMask0, vMask1 = 17, 18
    vZ = 19
    vQ = 20; vQB = 24
    vAcc = 28
    vPo, vPm, vOp, vWo = 36, 37, 38, 39
    vBp = 44
    vD = 52
    vG = 68
    NV = 128

    def srd(q, ptr, size):
        I(f"s_mov_b32 s{q}, s{ptr}")
        I(f"s_and_b32 s{q+1}, s{ptr+1}, 0xffff")
        I(f"s_mov_b32 s{q+2}, {hex(size)}")
        I(f"s_mov_b32 s{q+3}, 0x20000")
    stamp_n = [0]
    def stamp(level=0):
        if not cfg.stamps: return
        if cfg.diag == 0 and level not in (0, 2, 4): return
        if cfg.diag == 1 and level not in (1, 2): return
        if cfg.diag == 3 and level not in (3, 4): return
        if cfg.diag == 5 and level != 5: return
        if cfg.diag == 6: return
        if cfg.diag == 7 and level not in (4, 7): return
        n = stamp_n[0]; stamp_n[0] += 1
        assert n < 10
        I(f"s_memrealtime s[{sStamp+2*n}:{sStamp+2*n+1}]")
    def tagcheck(regs, okl):
        I(f"v_xor_b32 v{vTmp}, v{regs[0]}, v{vTag}")
        for r in regs[1:]:
            I(f"v_bitop3_b32 v{vTmp}, v{vTmp}, v{r}, v{vTag} bitop3:0xf6")
        I(f"v_and_b32 v{vTmp}, 0xff, v{vTmp}")
        I(f"v_cmp_ne_u32 vcc, 0, v{vTmp}")
        I(f"s_cbranch_vccz {okl}")
    def tagbad(regs, full=()):
        I(f"v_xor_b32 v{vTmp}, v{regs[0]}, v{vTag}")
        for r in regs[1:]:
            I(f"v_bitop3_b32 v{vTmp}, v{vTmp}, v{r}, v{vTag} bitop3:0xf6")
        I(f"v_and_b32 v{vTmp}, 0xff, v{vTmp}")
        for r in full:
            I(f"v_bitop3_b32 v{vTmp}, v{vTmp}, v{r}, v{vTag} bitop3:0xf6")
        I(f"v_cmp_ne_u32 vcc, 0, v{vTmp}")
    def poll_loop(name, loads, regs, masked, full=()):
        I(f"s_mov_b32 s{sTo}, {hex(cfg.TO)}")
        A(f"L_{name}_chk:")
        tagbad(regs, full)
        I(f"s_cbranch_vccz L_{name}_ok")
        I(f"s_sub_u32 s{sTo}, s{sTo}, 1")
        I(f"s_cmp_eq_u32 s{sTo}, 0")
        I(f"s_cbranch_scc1 L_{name}_ok")
        if masked: I("s_mov_b64 exec, vcc")
        loads()
        I("s_waitcnt vmcnt(0)")
        I(f"s_branch L_{name}_chk")
        A(f"L_{name}_ok:")
        if masked: I("s_mov_b64 exec, -1")
    def arrive(idx, notlast):
        I(f"v_mov_b32 v{vTmp}, 1")
        I("s_mov_b64 exec, 1")
        I(f"ds_add_rtn_u32 v{vTmp}, v{vZ}, v{vTmp} offset:{LDS_CNT + 4*idx}")
        I("s_mov_b64 exec, -1")
        I("s_waitcnt lgkmcnt(0)")
        I(f"v_readfirstlane_b32 s{s0_}, v{vTmp}")
        I("s_nop 1")
        I(f"s_cmp_lg_u32 s{s0_}, 3")
        I(f"s_cbranch_scc1 {notlast}")
    def allsum(v, op="add"):
        o = f"v_{op}_f32"
        I("s_nop 1")
        I(f"{o}_dpp v{v}, v{v}, v{v} row_ror:4 row_mask:0xf bank_mask:0xf")
        I("s_nop 1")
        I(f"{o}_dpp v{v}, v{v}, v{v} row_ror:8 row_mask:0xf bank_mask:0xf")
        I(f"v_mov_b32 v{vTmp2}, v{v}")
        I("s_nop 1")
        I(f"v_permlane16_swap_b32 v{v}, v{vTmp2}")
        I("s_nop 1")
        I(f"{o} v{v}, v{v}, v{vTmp2}")
        I(f"v_mov_b32 v{vTmp2}, v{v}")
        I("s_nop 1")
        I(f"v_permlane32_swap_b32 v{v}, v{vTmp2}")
        I("s_nop 1")
        I(f"{o} v{v}, v{v}, v{vTmp2}")

    A(f"; @launch grid=(256,1,1) block=(256,1,1) lds={LDS_SIZE}")
    for t in """
Fused decode attention for two GQA branches (A: last 2048 keys, B: all 8192 keys), one persistent launch.
Kernarg (8-byte pointers): A_x A_k A_v A_wq A_wo B_x B_k B_v B_wq B_wo out debug ws.
256 workgroups x 4 waves; workgroup id = (b*8 + g)*4 + j : batch b, kv head g, key split j.
 1. q projection: every workgroup multiplies a 128x128 block of wq with x (MFMA, all 8 batches) and publishes
    its fp32 partial; each workgroup gathers the four k-parts of the q rows it needs.
 2. streaming: each wave walks 16-key tiles (K and V straight into AGPRs, read-once cache policy).
    QK^T: 16x16x32 MFMA on the natural K layout, DPP sums; online softmax with the true running max
    (rescale whenever a score exceeds it); PV: 16x16x16 MFMA with a one-hot placed P operand.
    8 A tiles and 24 B tiles per wave are fixed, the remaining B tiles of a (b,g) pair are claimed from a counter.
 3. split partials (O/l, m*c+log2 l) are published, combined per head, rounded to bf16 and multiplied with a
    64x128 block of wo; those partial outputs are published and summed into the bf16 result.
Hand-offs through ws: every published word carries this launch's tag (epoch word of ws + 1) in its low byte
(or is the tag), consumers re-read until all tags match; arrival counters only delay the first read.
""".strip().split("\n"):
        A("; " + t)
    A('.amdgcn_target "amdgcn-amd-amdhsa--gfx950"')
    A(".text"); A(f".globl {KNAME}"); A(".p2align 8"); A(f".type {KNAME},@function"); A(f"{KNAME}:")
    I("s_cmp_ge_u32 s2, 256")
    I("s_cbranch_scc1 L_end")
    stamp(2)
    if cfg.diag in (3, 5, 6, 7) and cfg.stamps: I(f"s_memrealtime s[{sStamp}:{sStamp+1}]"); stamp_n[0] = 1
    I(f"s_load_dwordx16 s[4:19], s[0:1], 0")
    I(f"s_load_dwordx8 s[20:27], s[0:1], 64")
    I(f"s_load_dwordx2 s[28:29], s[0:1], 96")
    I(f"s_getpc_b64 s[{sPc}:{sPc+1}]")
    A("L_pc:")
    I(f"v_lshlrev_b32 v{vTmp}, 7, v0")
    I(f"v_min_u32 v{vTmp}, L_end-L_pc, v{vTmp}")
    if cfg.codepf: I(f"global_load_dword v{vTmp2}, v{vTmp}, s[{sPc}:{sPc+1}]")
    I(f"v_and_b32 v{vL}, 63, v0")
    I(f"v_lshrrev_b32 v{vS}, 6, v0")
    I(f"v_mov_b32 v{vZ}, 0")
    I(f"v_readfirstlane_b32 s{sWave}, v{vS}")
    I(f"v_bfe_u32 v{vP}, v{vL}, 2, 2")
    I(f"v_lshrrev_b32 v{vPlo}, 4, v{vL}")
    I(f"v_and_b32 v{vPhi}, 3, v{vL}")
    I(f"v_and_b32 v{vM}, 15, v{vL}")
    I(f"v_lshlrev_b32 v{vOffV}, 4, v{vL}")
    I(f"v_lshlrev_b32 v{vOffK}, 8, v{vP}")
    I(f"v_lshl_add_u32 v{vOffK}, v{vPlo}, 6, v{vOffK}")
    I(f"v_lshl_add_u32 v{vOffK}, v{vPhi}, 4, v{vOffK}")
    vWoff, vXoff = vG, vG+1
    I(f"v_lshlrev_b32 v{vWoff}, 16, v{vPlo}")
    I(f"v_lshl_add_u32 v{vWoff}, v{vM}, 4, v{vWoff}")
    I(f"v_lshlrev_b32 v{vXoff}, 10, v{vPhi}")
    I(f"v_lshl_add_u32 v{vXoff}, v{vPlo}, 4, v{vXoff}")
    if cfg.xmix:
        I(f"s_and_b32 s{s0_}, s2, 7")
        I(f"s_bcnt1_i32_b32 s{s1_}, s{s0_}")
        I(f"s_and_b32 s{s1_}, s{s1_}, 1")
        I(f"s_lshr_b32 s{sJa}, s{s0_}, 1")
        I(f"s_lshr_b32 s{sPair}, s2, 3")
        I(f"s_lshl_b32 s{sPair}, s{sPair}, 1")
        I(f"s_or_b32 s{sPair}, s{sPair}, s{s1_}")
    else:
        I(f"s_and_b32 s{sJa}, s2, 3")
        I(f"s_lshr_b32 s{sPair}, s2, 2")
    I(f"s_lshr_b32 s{sB}, s{sPair}, 3")
    I(f"s_and_b32 s{sG}, s{sPair}, 7")
    I(f"s_and_b32 s{sJ}, s2, 3")
    I(f"s_lshl_b32 s{sCnt}, s{sPair}, 8")
    I(f"s_add_u32 s{sCnt}, s{sCnt}, {WS_CNT}")
    I(f"s_lshl_b32 s{sPair}, s{sPair}, 21")
    I(f"s_lshl_b32 s{s1_}, s{sJa}, 2")
    I(f"s_add_u32 s{s1_}, s{s1_}, s{sWave}")
    I(f"s_lshl_b32 s{s0_}, s{s1_}, 12")
    I(f"s_add_u32 s{sOffB}, s{sPair}, s{s0_}")
    I(f"s_lshl_b32 s{s1_}, s{sJ}, 2")
    I(f"s_add_u32 s{s1_}, s{s1_}, s{sWave}")
    I(f"s_lshl_b32 s{s0_}, s{sWave}, 12")
    I(f"s_add_u32 s{sOff}, s{sPair}, s{s0_}")
    I(f"s_lshl_b32 s{s0_}, s{sJa}, 17")
    I(f"s_add_u32 s{sOff}, s{sOff}, s{s0_}")
    I(f"s_add_u32 s{sOff}, s{sOff}, {6144*256}")
    I(f"s_lshl_b32 s{s2_}, s{s1_}, 18")
    I(f"s_bfe_u32 s{s3_}, s2, 0x50002")
    I(f"s_lshl_b32 s{s3_}, s{s3_}, 8")
    I(f"s_add_u32 s{s2_}, s{s2_}, s{s3_}")
    I(f"s_lshl_b32 s{s1_}, s{s1_}, 6")
    I("s_waitcnt lgkmcnt(0)")
    stamp(2)
    srd(sW, sWs, WS_SIZE)
    I(f"buffer_load_dword v{vTag}, v{vZ}, s[{sW}:{sW+3}], 0 offen offset:{WS_EPOCH} sc1")
    I(f"s_and_b32 s{s0_}, s2, 0x8f")
    I(f"s_or_b32 s{s0_}, s{s0_}, s{sWave}")
    I(f"s_cmp_lg_u32 s{s0_}, 0")
    I("s_cbranch_scc1 L_nocnt")
    I(f"s_lshr_b32 s{s0_}, s2, 4")
    I(f"s_lshl_b32 s{s0_}, s{s0_}, 8")
    I(f"s_add_u32 s{s0_}, s{s0_}, {WS_CNT}")
    I(f"v_lshlrev_b32 v{vTmp}, 11, v{vL}")
    I("s_mov_b64 exec, 0xff")
    I(f"buffer_store_dword v{vZ}, v{vTmp}, s[{sW}:{sW+3}], s{s0_} offen sc1")
    I(f"s_lshr_b32 s{s0_}, s2, 4")
    I(f"s_lshl_b32 s{s3_}, s{s0_}, 11"); I(f"s_add_u32 s{s3_}, s{s3_}, {WS_R1}")
    I(f"v_lshlrev_b32 v{vTmp}, 8, v{vL}")
    I(f"buffer_store_dword v{vZ}, v{vTmp}, s[{sW}:{sW+3}], s{s3_} offen sc1")
    I(f"s_lshl_b32 s{s3_}, s{s0_}, 8"); I(f"s_add_u32 s{s3_}, s{s3_}, {WS_R2}")
    I(f"v_lshlrev_b32 v{vTmp}, 11, v{vL}")
    I("s_mov_b64 exec, 0xf")
    I(f"buffer_store_dword v{vZ}, v{vTmp}, s[{sW}:{sW+3}], s{s3_} offen sc1")
    I("s_mov_b64 exec, -1")
    A("L_nocnt:")
    I(f"s_cmp_lt_u32 s2, 128")
    I(f"s_cselect_b32 s{sT}, s{sAx}, s{sBx}")
    I(f"s_cselect_b32 s{sT+1}, s{sAx+1}, s{sBx+1}")
    I(f"s_cselect_b32 s{sT2}, s{sAwq}, s{sBwq}")
    I(f"s_cselect_b32 s{sT2+1}, s{sAwq+1}, s{sBwq+1}")
    I(f"s_and_b32 s{sT+1}, s{sT+1}, 0xffff")
    I(f"s_and_b32 s{sT2+1}, s{sT2+1}, 0xffff")
    I(f"s_mov_b32 s{sT+2}, 8192"); I(f"s_mov_b32 s{sT+3}, 0x20000")
    I(f"s_mov_b32 s{sT2+2}, 0x400000"); I(f"s_mov_b32 s{sT2+3}, 0x20000")
    vX = vG + 2
    I(f"buffer_load_dwordx4 v[{vX}:{vX+3}], v{vXoff}, s[{sT}:{sT+3}], s{s1_} offen")
    I(f"s_add_u32 s{s1_}, s{s1_}, 4096")
    I(f"buffer_load_dwordx4 v[{vX+4}:{vX+7}], v{vXoff}, s[{sT}:{sT+3}], s{s1_} offen")
    WSLOT = R - 1
    for t in range(8):
        a = WSLOT*32 + 4*t
        I(f"buffer_load_dwordx4 a[{a}:{a+3}], v{vWoff}, s[{sT2}:{sT2+3}], s{s2_} offen {pol(cfg.fWq)}")
        if t < 7: I(f"s_add_u32 s{s2_}, s{s2_}, 8192")
    srd(sK, sAk, 0x8000000)
    srd(sV, sAv, 0x8000000)
    I(f"s_mov_b32 s{sIss}, 0")
    I(f"s_mov_b32 s{sStep}, 16384")
    I(f"s_and_b32 s{sBk+1}, s{sBk+1}, 0xffff")
    I(f"s_and_b32 s{sBv+1}, s{sBv+1}, 0xffff")

    late_blocks = []; uniq = [0]
    def tile_loads(slot, fk, fv):
        for t in range(4):
            a = slot*32 + 4*t
            I(f"buffer_load_dwordx4 a[{a}:{a+3}], v{vOffK}, s[{sK}:{sK+3}], s{sOff} offen offset:{t*1024} {fk}")
        for t in range(4):
            a = slot*32 + 16 + 4*t
            I(f"buffer_load_dwordx4 a[{a}:{a+3}], v{vOffV}, s[{sV}:{sV+3}], s{sOff} offen offset:{t*1024} {fv}")
    def issue_tile(slot, phase=None):
        pa = (pol(cfg.fAk), pol(cfg.fAv)); pb = (pol(cfg.fBk), pol(cfg.fBv))
        if phase == "A" or pa == pb:
            tile_loads(slot, *pa)
        else:
            u = uniq[0]; uniq[0] += 1
            I(f"s_cmp_lt_u32 s{sIss}, 8")
            I(f"s_cbranch_scc1 L_ia{u}")
            tile_loads(slot, *pb)
            A(f"L_ib{u}:")
            late_blocks.append((u, slot, pa))
        I(f"s_add_u32 s{sOff}, s{sOff}, s{sStep}")
        I(f"s_add_u32 s{sIss}, s{sIss}, 1")
        I(f"s_cmp_eq_u32 s{sIss}, 8")
        I(f"s_cselect_b32 s{sOff}, s{sOffB}, s{sOff}")
        I(f"s_cselect_b32 s{sStep}, 0x10000, s{sStep}")
        I(f"s_cselect_b32 s{sK}, s{sBk}, s{sK}")
        I(f"s_cselect_b32 s{sK+1}, s{sBk+1}, s{sK+1}")
        I(f"s_cselect_b32 s{sV}, s{sBv}, s{sV}")
        I(f"s_cselect_b32 s{sV+1}, s{sBv+1}, s{sV+1}")

    if cfg.t0at == "pre": issue_tile(0, "A")
    I(f"s_mov_b32 s{sC}, {hex(f32bits(C_SCALE))}")
    I(f"s_mov_b32 s{sFF}, 0xff")
    I(f"s_mov_b32 s{sMaskHi}, 0xffffff00")
    I(f"v_mul_u32_u24 v{vLdsW}, 196, v{vPhi}")
    I(f"v_mad_u32_u24 v{vLdsW}, v{vPlo}, 48, v{vLdsW}")
    I(f"v_add_lshl_u32 v{vLdsW}, v{vLdsW}, v{vP}, 2")
    I(f"v_lshrrev_b32 v{vRd}, 5, v0")
    I(f"v_mul_u32_u24 v{vRd}, 196, v{vRd}")
    I(f"v_bfe_u32 v{vTmp}, v0, 3, 2")
    I(f"v_mad_u32_u24 v{vRd}, v{vTmp}, 48, v{vRd}")
    I(f"v_and_b32 v{vTmp}, 7, v0")
    I(f"v_lshl_add_u32 v{vRd}, v{vTmp}, 2, v{vRd}")
    I(f"v_lshlrev_b32 v{vRd}, 2, v{vRd}")
    vSel = vG + 10
    def pick(dst, r, lo, hi, other):
        I(f"v_mov_b32 v{dst}, {hex(other)}")
        I(f"v_mov_b32 v{vTmp}, {hex(lo)}")
        I(f"v_cmp_eq_u32 vcc, {2*r}, v{vP}")
        I(f"s_nop 1")
        I(f"v_cndmask_b32 v{dst}, v{dst}, v{vTmp}, vcc")
        I(f"v_mov_b32 v{vTmp}, {hex(hi)}")
        I(f"v_cmp_eq_u32 vcc, {2*r+1}, v{vP}")
        I(f"s_nop 1")
        I(f"v_cndmask_b32 v{dst}, v{dst}, v{vTmp}, vcc")
    for r in range(2):
        pick(vSel + 2*r + 0, r, 0x0c0c0100, 0x01000c0c, 0x0c0c0c0c)
        pick(vSel + 2*r + 1, r, 0x0c0c0302, 0x03020c0c, 0x0c0c0c0c)
    pick(vMask0, 0, 0xffff, 0xffff0000, 0)
    pick(vMask1, 1, 0xffff, 0xffff0000, 0)
    for k in range(8): I(f"v_mov_b32 v{vBp+k}, 0")
    I(f"v_lshlrev_b32 v{vTmp}, 2, v{vL}")
    I("s_mov_b64 exec, 3")
    I(f"ds_write_b32 v{vTmp}, v{vZ} offset:{LDS_CNT}")
    I("s_mov_b64 exec, -1")
    t0t = {"pre": -1, "post": 99}.get(cfg.t0at, None)
    if t0t is None: t0t = int(cfg.t0at[1:])
    if t0t == -1:
        I("s_waitcnt vmcnt(15)")
    else:
        I("s_waitcnt vmcnt(7)")
        if t0t == 0: issue_tile(0, "A")
    I(f"v_add_u32 v{vTag}, 1, v{vTag}")
    A("; ---------------- q projection ----------------")
    vQacc = vG + 16
    vXB = vG + 32
    for t in range(8):
        bs = vXB + (t & 1)*4
        if t > 0:
            I(f"s_waitcnt vmcnt({7 - t + (8 if t0t < t else 0)})")
            if t == t0t: issue_tile(0, "A")
            if t == 7:
                stamp(2)
                if cfg.t1at == "w7": issue_tile(1, "A")
                stamp(1)
        for m in range(2):
            for r in range(2):
                I(f"v_perm_b32 v{bs+2*m+r}, v{vX+4*m+(t>>1)}, v{vX+4*m+(t>>1)}, v{vSel+2*r+(t&1)}")
        for m in range(2):
            for h in range(2):
                d = vQacc + (m*2+h)*4
                a = WSLOT*32 + 4*t + 2*h
                c = "0" if t == 0 else f"v[{d}:{d+3}]"
                I(f"v_mfma_f32_16x16x16_bf16 v[{d}:{d+3}], a[{a}:{a+1}], v[{bs+2*m}:{bs+2*m+1}], {c}")
    I(f"s_mul_i32 s{s0_}, s{sWave}, {8*ROW}")
    I(f"v_add_u32 v{vTmp}, s{s0_}, v{vLdsW}")
    I(f"s_lshr_b32 s{s0_}, s2, 4")
    I(f"s_lshl_b32 s{s0_}, s{s0_}, 2")
    I(f"s_add_u32 s{s0_}, s{s0_}, s{sJ}")
    I(f"s_lshl_b32 s{s0_}, s{s0_}, 14")
    I(f"s_bfe_u32 s{s1_}, s2, 0x20002")
    I(f"s_lshl_b32 s{s1_}, s{s1_}, 9")
    I(f"s_add_u32 s{s0_}, s{s0_}, s{s1_}")
    I(f"s_add_u32 s{s0_}, s{s0_}, {WS_QP}")
    for m in range(2):
        for h in range(2):
            for r in range(4):
                I(f"ds_write_b32 v{vTmp}, v{vQacc+(m*2+h)*4+r} offset:{LDS_QR + m*4*ROW + (8*r+4*h)*4}")
    I(f"v_lshrrev_b32 v{vTmp}, 5, v0")
    I(f"v_lshlrev_b32 v{vTmp}, 11, v{vTmp}")
    I(f"v_and_b32 v{vTmp2}, 31, v0")
    I(f"v_lshl_add_u32 v{vTmp}, v{vTmp2}, 4, v{vTmp}")
    I("s_waitcnt lgkmcnt(0)")
    stamp(1)
    I("s_barrier")
    stamp(1)
    vR = vG + 44
    for w in range(4):
        I(f"ds_read_b128 v[{vR+4*w}:{vR+4*w+3}], v{vRd} offset:{LDS_QR + w*8*ROW}")
    vQoff = vG + 41
    I(f"v_lshlrev_b32 v{vQoff}, 9, v{vPhi}")
    I(f"v_lshl_add_u32 v{vQoff}, v{vPlo}, 7, v{vQoff}")
    I(f"v_lshl_add_u32 v{vQoff}, v{vP}, 5, v{vQoff}")
    I(f"s_lshl_b32 s{s2_}, s{sG}, 2")
    I(f"s_add_u32 s{s2_}, s{s2_}, s{sWave}")
    I(f"s_lshl_b32 s{s2_}, s{s2_}, 3")
    I(f"s_add_u32 s{s2_}, s{s2_}, s{sB}")
    I(f"s_lshl_b32 s{s2_}, s{s2_}, 11")
    I(f"s_add_u32 s{sQ0}, s{s2_}, {WS_QP}")
    I(f"s_add_u32 s{sQ1}, s{sQ0}, 0x80000")
    I("s_waitcnt lgkmcnt(0)")
    for k in range(4):
        I(f"v_add_f32 v{vR+k}, v{vR+k}, v{vR+4+k}")
        I(f"v_add_f32 v{vR+8+k}, v{vR+8+k}, v{vR+12+k}")
    for k in range(4): I(f"v_add_f32 v{vR+k}, v{vR+k}, v{vR+8+k}")
    for k in range(4): I(f"v_bfi_b32 v{vR+k}, s{sFF}, v{vTag}, v{vR+k}")
    I(f"buffer_store_dwordx4 v[{vR}:{vR+3}], v{vTmp}, s[{sW}:{sW+3}], s{s0_} offen sc1")
    stamp(2)
    vQL = vG + 16
    def qpoll_loads():
        I(f"buffer_load_dwordx4 v[{vQL}:{vQL+3}], v{vQoff}, s[{sW}:{sW+3}], s{sQ0} offen sc1")
        I(f"buffer_load_dwordx4 v[{vQL+4}:{vQL+7}], v{vQoff}, s[{sW}:{sW+3}], s{sQ0} offen offset:16 sc1")
        I(f"buffer_load_dwordx4 v[{vQL+8}:{vQL+11}], v{vQoff}, s[{sW}:{sW+3}], s{sQ1} offen sc1")
        I(f"buffer_load_dwordx4 v[{vQL+12}:{vQL+15}], v{vQoff}, s[{sW}:{sW+3}], s{sQ1} offen offset:16 sc1")
    qregs = list(range(vQL, vQL+16))
    def init_state():
        for k in range(8): I(f"v_mov_b32 v{vAcc+k}, 0")
        I(f"v_mov_b32 v{vM}, 0xff800000")
        I(f"v_mov_b32 v{vMC}, 0xff800000")
        I(f"v_mov_b32 v{vLs}, 0")
    I(f"s_mov_b32 s{sLate}, 0")
    if t0t == 99: issue_tile(0, "A")
    if cfg.t1at == "post": issue_tile(1, "A")
    def idle_setup():
        def init_state():
            for k in range(8): I(f"v_mov_b32 v{vAcc+k}, 0")
            I(f"v_mov_b32 v{vM}, 0xff800000")
            I(f"v_mov_b32 v{vMC}, 0xff800000")
            I(f"v_mov_b32 v{vLs}, 0")
        init_state()
        I(f"v_and_b32 v{vTmp}, 3, v{vL}")
        I(f"v_bfe_u32 v{vTmp2}, v{vL}, 2, 2")
        I(f"v_lshlrev_b32 v{vPo}, 13, v{vTmp}")
        I(f"v_lshl_add_u32 v{vPo}, v{vTmp2}, 11, v{vPo}")
        I(f"v_lshlrev_b32 v{vPm}, 7, v{vTmp}")
        I(f"v_lshl_add_u32 v{vPm}, v{vTmp2}, 5, v{vPm}")
        I(f"v_lshrrev_b32 v{vTmp}, 4, v{vL}")
        I(f"v_lshl_add_u32 v{vPo}, v{vTmp}, 4, v{vPo}")
        I(f"v_lshlrev_b32 v{vWo}, 12, v{vTmp}")
        I(f"v_and_b32 v{vTmp2}, 15, v{vL}")
        I(f"v_lshl_add_u32 v{vWo}, v{vTmp2}, 4, v{vWo}")
        I(f"s_lshr_b32 s{s0_}, s2, 5")
        I(f"s_bfe_u32 s{s1_}, s2, 0x20003")
        I(f"s_bfe_u32 s{s2_}, s2, 0x10002")
        I(f"s_lshl_b32 s{s3_}, s{s0_}, 16")
        I(f"s_lshl_b32 s{s4_}, s{s1_}, 9"); I(f"s_add_u32 s{s3_}, s{s3_}, s{s4_}")
        I(f"s_lshl_b32 s{s4_}, s{s2_}, 8"); I(f"s_add_u32 s{s3_}, s{s3_}, s{s4_}")
        I(f"s_lshl_b32 s{s4_}, s{sWave}, 6"); I(f"s_add_u32 s{s3_}, s{s3_}, s{s4_}")
        I(f"s_add_u32 s{sO[0]}, s{s3_}, {WS_PO}")
        I(f"s_lshl_b32 s{s4_}, s{s0_}, 10")
        I(f"s_lshl_b32 s{s5_}, s{s1_}, 3"); I(f"s_add_u32 s{s4_}, s{s4_}, s{s5_}")
        I(f"s_add_u32 s{sO[1]}, s{s4_}, {WS_PML}")
        I(f"v_lshrrev_b32 v{vOp}, 5, v0")
        I(f"v_lshlrev_b32 v{vOp}, 9, v{vOp}")
        I(f"v_and_b32 v{vTmp}, 31, v0")
        I(f"v_lshl_add_u32 v{vOp}, v{vTmp}, 4, v{vOp}")
        I(f"s_lshr_b32 s{s0_}, s2, 2")
        I(f"s_lshl_b32 s{s1_}, s{sJ}, 6")
        I(f"s_add_u32 s{s1_}, s{s0_}, s{s1_}")
        I(f"s_lshl_b32 s{s1_}, s{s1_}, 12")
        I(f"s_add_u32 s{sO[2]}, s{s1_}, {WS_OP}")
        I(f"s_lshl_b32 s{s0_}, s{s0_}, 2"); I(f"s_add_u32 s{s0_}, s{s0_}, s{sWave}")
        I(f"s_lshl_b32 s{s0_}, s{s0_}, 14")
        I(f"s_lshl_b32 s{s1_}, s{sJ}, 8"); I(f"s_add_u32 s{sWoOff}, s{s0_}, s{s1_}")
        srd(sT, sAwo, 0x400000)
        srd(sT2, sBwo, 0x400000)
        I(f"s_lshl_b32 s{sRdyP}, s{sG}, 11"); I(f"s_add_u32 s{sRdyP}, s{sRdyP}, {WS_R1}")
        I(f"s_lshr_b32 s{sRdyC}, s2, 5"); I(f"s_lshl_b32 s{sRdyC}, s{sRdyC}, 3")
        I(f"s_and_b32 s{s0_}, s2, 1"); I(f"s_lshl_b32 s{s0_}, s{s0_}, 2"); I(f"s_add_u32 s{s0_}, s{s0_}, s{sWave}")
        I(f"s_add_u32 s{sRdyC}, s{sRdyC}, s{s0_}"); I(f"s_lshl_b32 s{sRdyC}, s{sRdyC}, 8"); I(f"s_add_u32 s{sRdyC}, s{sRdyC}, {WS_R1}")
        I(f"s_lshl_b32 s{sR2P}, s{sJ}, 3"); I(f"s_add_u32 s{sR2P}, s{sR2P}, s{sG}")
        I(f"s_lshl_b32 s{sR2P}, s{sR2P}, 8"); I(f"s_add_u32 s{sR2P}, s{sR2P}, {WS_R2}")

    for k in range(2, R):
        qpoll_loads(); issue_tile(k, "A")
        if k == 2: idle_setup()
        I(f"s_mov_b32 s{sLand}, {k}")
        I("s_waitcnt vmcnt(8)")
        if k == 2: stamp(1)
        tagcheck(qregs, f"L_qok{k}")
    I(f"s_mov_b32 s{sLand}, {R}")
    I(f"s_mov_b32 s{sLate}, 1")
    qpoll_loads()
    I("s_waitcnt vmcnt(0)")
    poll_loop("qp", qpoll_loads, qregs, cfg.masked)
    I("s_branch L_qok")
    for k in range(R-1, 1, -1):
        A(f"L_qok{k}:")
        if R == 4:
            if k == 2: issue_tile(3, "A")
            I(f"s_mov_b32 s{sLate}, 1")
        else:
            for n_ in (k+1, k+2):
                if n_ < R: issue_tile(n_, "A")
            if k + 2 >= R - 1: I(f"s_mov_b32 s{sLate}, 1")
            else: I(f"s_mov_b32 s{sLate}, {k+3+8}")
        if k > 2: I("s_branch L_qok")
    A("L_qok:")
    stamp(2)
    if cfg.stamps: I(f"s_mov_b32 s{sLand0}, s{sLand}")
    for r in qregs: I(f"v_and_b32 v{r}, s{sMaskHi}, v{r}")
    I(f"s_lshl_b32 s{s0_}, s{sWave}, 12")
    I(f"v_add_u32 v{vTmp}, s{s0_}, v{vOffV}")
    for k in range(4):
        I(f"ds_write_b128 v{vTmp}, v[{vQL+4*k}:{vQL+4*k+3}] offset:{LDS_QX + k*1024}")
    I("s_waitcnt lgkmcnt(0)")
    I("s_barrier")
    vQR = vG + 0
    def assemble_q(br, dq):
        for w in range(4):
            for k in range(2):
                d = vQR + (w*2+k)*4
                I(f"ds_read_b128 v[{d}:{d+3}], v{vOffV} offset:{LDS_QX + w*4096 + (br*2+k)*1024}")
        I("s_waitcnt lgkmcnt(0)")
        for e in range(8):
            I(f"v_add_f32 v{vQR+e}, v{vQR+e}, v{vQR+8+e}")
            I(f"v_add_f32 v{vQR+16+e}, v{vQR+16+e}, v{vQR+24+e}")
        for e in range(8): I(f"v_add_f32 v{vQR+e}, v{vQR+e}, v{vQR+16+e}")
        for r in range(4): I(f"v_cvt_pk_bf16_f32 v{dq+r}, v{vQR+2*r}, v{vQR+2*r+1}")
    assemble_q(0, vQ)
    if not cfg.qbdefer: assemble_q(1, vQB)
    I(f"s_mov_b32 s{sI}, 0")
    I(f"s_mov_b32 s{sPre}, 0")
    I(f"s_mov_b32 s{sExtra}, 0")
    I(f"s_mov_b32 s{sEnd}, -1")
    stamp(2)
    late_steps = {1: 0} if R == 4 else {1: 0, 4: 1}
    A(".p2align 3")
    A("L_round:")
    if cfg.stamps and cfg.diag == 6:
        for k in range(1, 10):
            I(f"s_cmp_eq_u32 s{sI}, {4*(k-1)}")
            I(f"s_cbranch_scc0 L_ps{k}")
            I(f"s_memrealtime s[{sStamp+2*k}:{sStamp+2*k+1}]")
            A(f"L_ps{k}:")
    for s in range(R):
        I(f"s_cmp_lt_u32 s{sI}, s{sLand}")
        I(f"s_cbranch_scc1 L_nowait{s}")
        I(f"s_sub_u32 s{s0_}, s{sIss}, s{sI}")
        if cfg.apre and cfg.preN and cfg.preafter:
            I(f"s_add_u32 s{s0_}, s{s0_}, s{sExtra}")
            I(f"s_mov_b32 s{sExtra}, 0")
        I(f"s_cmp_eq_u32 s{s0_}, {W}")
        I(f"s_cbranch_scc0 L_wait{s}")
        I(f"s_waitcnt vmcnt({8*(W-1)})")
        A(f"L_nowait{s}:")
        if cfg.stamps and cfg.diag == 5 and s < 4:
            I(f"s_cmp_eq_u32 s{sI}, {cfg.iA + s}")
            I(f"s_cbranch_scc0 L_nost{s}")
            I(f"s_memrealtime s[{sStamp+2*(6+s)}:{sStamp+2*(6+s)+1}]")
            A(f"L_nost{s}:")
        I(f"s_add_u32 s{s0_}, s{sI}, {W}")
        I(f"s_add_u32 s{sI}, s{sI}, 1")
        if s in late_steps:
            I(f"s_cmp_eq_u32 s{sLate}, 1")
            I(f"s_cbranch_scc1 L_late{s}")
        if s == 0 and R == 8:
            I(f"s_cmp_gt_u32 s{sLate}, 1")
            I(f"s_cbranch_scc1 L_br0")
        I(f"s_cmp_eq_u32 s{sIss}, s{s0_}")
        I(f"s_cbranch_scc0 L_noiss{s}")
        I(f"s_cmp_ge_u32 s{sIss}, {NST-1}")
        I(f"s_cbranch_scc1 L_dyn{s}")
        A(f"L_loads{s}:")
        issue_tile((s+W) % R)
        A(f"L_noiss{s}:")
        for t in range(4):
            a = s*32 + 4*t
            I(f"v_mfma_f32_16x16x32_bf16 v[{vD+4*t}:{vD+4*t+3}], a[{a}:{a+3}], v[{vQ}:{vQ+3}], 0")
        I("s_nop 4")
        for t in range(4):
            hbs = [(t+1) & 3, (t+2) & 3, (t+3) & 3]
            n = [(4*(t-hb)) % 16 for hb in hbs]
            I(f"v_add_f32_dpp v{vTmp}, v{vD+4*t+hbs[0]}, v{vD+4*t+t} row_ror:{n[0]} row_mask:0xf bank_mask:0xf")
            I(f"v_add_f32_dpp v{vTmp}, v{vD+4*t+hbs[1]}, v{vTmp} row_ror:{n[1]} row_mask:0xf bank_mask:0xf")
            I(f"v_add_f32_dpp v{vS}, v{vD+4*t+hbs[2]}, v{vTmp} row_ror:{n[2]} row_mask:0xf bank_mask:{hex(1<<t)}")
        I(f"v_cmp_gt_f32 vcc, v{vS}, v{vM}")
        I(f"s_cbranch_vccnz L_rare{s}")
        A(f"L_cont{s}:")
        I(f"v_fma_f32 v{vP}, v{vS}, s{sC}, -v{vMC}")
        I(f"v_exp_f32 v{vP}, v{vP}")
        I("s_nop 0")
        I(f"v_cvt_pk_bf16_f32 v{vPlo}, v{vP}, 0")
        I(f"v_cvt_pk_bf16_f32 v{vPhi}, 0, v{vP}")
        I(f"v_add_f32 v{vLs}, v{vLs}, v{vP}")
        I("s_nop 0")
        for t in range(4):
            for beta in range(4):
                src = vPlo if beta % 2 == 0 else vPhi
                n = (4*(beta - t)) % 16
                ctl = f"row_ror:{n}" if n else "quad_perm:[0,1,2,3]"
                I(f"v_mov_b32_dpp v{vBp+2*t+(beta>>1)}, v{src} {ctl} row_mask:0xf bank_mask:{hex(1<<beta)}")
        for t in range(4):
            for h in range(2):
                a = s*32 + 16 + 4*t + 2*h
                I(f"v_mfma_f32_16x16x16_bf16 v[{vAcc+4*h}:{vAcc+4*h+3}], a[{a}:{a+1}], v[{vBp+2*t}:{vBp+2*t+1}], v[{vAcc+4*h}:{vAcc+4*h+3}]")
        I(f"s_cmp_eq_u32 s{sI}, s{sEnd}")
        I("s_cbranch_scc1 L_exit")
    I(f"s_mov_b32 s{sLate}, 0")
    I(f"s_cmp_eq_u32 s{sI}, 8")
    I("s_cbranch_scc0 L_round")

    def write_partial(pr, ml, lvl=None, barrier=True):
        I("s_nop 7")
        allsum(vLs)
        I(f"s_mul_i32 s{s0_}, s{sWave}, {4*ROW}")
        I(f"v_add_u32 v{vTmp}, s{s0_}, v{vLdsW}")
        for h in range(2):
            for r in range(4):
                I(f"ds_write_b32 v{vTmp}, v{vAcc+4*h+r} offset:{pr + (8*r+4*h)*4}")
        I(f"s_lshl_b32 s{s0_}, s{sWave}, 5")
        I(f"v_lshl_add_u32 v{vTmp}, v{vL}, 3, s{s0_}")
        I(f"v_mov_b32 v{vG}, v{vM}"); I(f"v_mov_b32 v{vG+1}, v{vLs}")
        I("s_mov_b64 exec, 0xf")
        I(f"ds_write_b64 v{vTmp}, v[{vG}:{vG+1}] offset:{ml}")
        I("s_mov_b64 exec, -1")
        I("s_waitcnt lgkmcnt(0)")
        if lvl is not None: stamp(lvl)
        if barrier: I("s_barrier")
        if lvl is not None: stamp(lvl)
    def combine_pass(br, pr, ml, vRdX, hd_src, hoff):
        vA = vG + 8; vMl = vG + 24; vHd = vG + 2; vSo = vG + 3; vSm = vG + 4; vMx = vG + 32; vLt = vG + 33
        I(f"v_lshrrev_b32 v{vHd}, 5, v{hd_src}")
        if hoff: I(f"v_add_u32 v{vHd}, {hoff}, v{vHd}")
        I(f"v_lshlrev_b32 v{vSm}, 3, v{vHd}")
        for w in range(4): I(f"ds_read_b64 v[{vMl+2*w}:{vMl+2*w+1}], v{vSm} offset:{ml + w*32}")
        for w in range(4): I(f"ds_read_b128 v[{vA+4*w}:{vA+4*w+3}], v{vRdX} offset:{pr + hoff*ROW + w*4*ROW}")
        I(f"s_lshl_b32 s{s0_}, s{sG}, 3"); I(f"s_add_u32 s{s0_}, s{s0_}, s{sB}")
        I(f"s_lshl_b32 s{s0_}, s{s0_}, 2"); I(f"s_add_u32 s{s0_}, s{s0_}, s{sJa}")
        I(f"s_lshl_b32 s{s1_}, s{s0_}, 5"); I(f"s_add_u32 s{s1_}, s{s1_}, {WS_PML + br*8192}")
        I(f"s_lshl_b32 s{s0_}, s{s0_}, 11"); I(f"s_add_u32 s{s0_}, s{s0_}, {WS_PO + br*0x80000}")
        I(f"v_lshlrev_b32 v{vSo}, 9, v{vHd}")
        I(f"v_and_b32 v{vTmp}, 31, v{hd_src}")
        I(f"v_lshl_add_u32 v{vSo}, v{vTmp}, 4, v{vSo}")
        I("s_waitcnt lgkmcnt(4)")
        I(f"v_max_f32 v{vMx}, v{vMl}, v{vMl+2}")
        I(f"v_max3_f32 v{vMx}, v{vMx}, v{vMl+4}, v{vMl+6}")
        for w in range(4): I(f"v_sub_f32 v{vMl+2*w}, v{vMl+2*w}, v{vMx}")
        for w in range(4): I(f"v_mul_f32 v{vMl+2*w}, s{sC}, v{vMl+2*w}")
        for w in range(4): I(f"v_exp_f32 v{vMl+2*w}, v{vMl+2*w}")
        I(f"v_mul_f32 v{vLt}, v{vMl}, v{vMl+1}")
        for w in range(1, 4): I(f"v_fmac_f32 v{vLt}, v{vMl+2*w}, v{vMl+2*w+1}")
        I(f"v_rcp_f32 v{vMl+1}, v{vLt}")
        I(f"v_log_f32 v{vLt}, v{vLt}")
        I("s_nop 0")
        for w in range(4): I(f"v_mul_f32 v{vMl+2*w}, v{vMl+2*w}, v{vMl+1}")
        I(f"v_fma_f32 v{vMx}, v{vMx}, s{sC}, v{vLt}")
        I("s_waitcnt lgkmcnt(0)")
        for k in range(4): I(f"v_mul_f32 v{vA+k}, v{vMl}, v{vA+k}")
        for w in range(1, 4):
            for k in range(4): I(f"v_fmac_f32 v{vA+k}, v{vMl+2*w}, v{vA+4*w+k}")
        for k in range(4): I(f"v_bfi_b32 v{vA+k}, s{sFF}, v{vTag}, v{vA+k}")
        I(f"buffer_store_dwordx4 v[{vA}:{vA+3}], v{vSo}, s[{sW}:{sW+3}], s{s0_} offen sc1")
        I(f"v_bfi_b32 v{vMx}, s{sFF}, v{vTag}, v{vMx}")
        I(f"v_mov_b32 v{vLt}, v{vTag}")
        I(f"v_cmp_eq_u32 vcc, 0, v{vTmp}")
        I(f"s_and_saveexec_b64 s[{s2_}:{s3_}], vcc")
        I(f"buffer_store_dwordx2 v[{vMx}:{vMx+1}], v{vSm}, s[{sW}:{sW+3}], s{s1_} offen sc1")
        I("s_mov_b64 exec, -1")
    def combine_publish(br, pr, ml, skip, rdy=False):
        I(f"s_cmp_ge_u32 s{sWave}, 2")
        I(f"s_cbranch_scc1 {skip}")
        def arrive1():
            I(f"v_mov_b32 v{vTmp2}, 1")
            I(f"v_lshlrev_b32 v{vTmp}, 8, v{vL}")
            I("s_mov_b64 exec, 0xff")
            I(f"buffer_atomic_add v{vTmp2}, v{vTmp}, s[{sW}:{sW+3}], s{sRdyP} offen sc1")
            I("s_mov_b64 exec, -1")
        if rdy and cfg.r1lead: arrive1()
        combine_pass(br, pr, ml, vRd, 0, 0)
        if rdy and not cfg.r1lead: arrive1()
        A(f"{skip}:")
    vRdL = vG + 40
    def lane_rd():
        I(f"v_lshrrev_b32 v{vRdL}, 5, v{vL}")
        I(f"v_mul_u32_u24 v{vRdL}, 196, v{vRdL}")
        I(f"v_bfe_u32 v{vTmp}, v{vL}, 3, 2")
        I(f"v_mad_u32_u24 v{vRdL}, v{vTmp}, 48, v{vRdL}")
        I(f"v_and_b32 v{vTmp}, 7, v{vL}")
        I(f"v_lshl_add_u32 v{vRdL}, v{vTmp}, 2, v{vRdL}")
        I(f"v_lshlrev_b32 v{vRdL}, 2, v{vRdL}")

    au = [0]
    def ahead_tiles():
        for k in range(1, cfg.ahead+1):
            u = au[0]; au[0] += 1
            I(f"s_add_u32 s{s4_}, s{sI}, {k}")
            I(f"s_cmp_eq_u32 s{sIss}, s{s4_}")
            I(f"s_cbranch_scc0 L_ah{u}")
            issue_tile(k)
            A(f"L_ah{u}:")
    ahead_tiles()
    if cfg.swbar:
        write_partial(LDS_PRA, LDS_MLA)
        combine_publish(0, LDS_PRA, LDS_MLA, "L_pubA_done")
    else:
        write_partial(LDS_PRA, LDS_MLA, barrier=False)
        arrive(0, "L_pubA_done")
        lane_rd()
        combine_pass(0, LDS_PRA, LDS_MLA, vRdL, vL, 0)
        I("s_nop 0")
        combine_pass(0, LDS_PRA, LDS_MLA, vRdL, vL, 2)
        A("L_pubA_done:")
    init_state()
    if cfg.qbdefer:
        assemble_q(1, vQ)
        I("s_nop 1")
    else:
        for k in range(4): I(f"v_mov_b32 v{vQ+k}, v{vQB+k}")
    I("s_branch L_round")

    vWoA = vG + 44
    rO = {0: list(range(vG+40, vG+44)) + list(range(40, 44)), 1: list(range(vG+8, vG+16))}
    rN = {0: list(range(vQB, vQB+4)), 1: list(range(vG+16, vG+20))}
    def part_loads(br):
        O, N = rO[br], rN[br]
        def f():
            I(f"s_add_u32 s{s4_}, s{sO[0]}, {br*0x80000}")
            I(f"s_add_u32 s{s5_}, s{sO[0]}, {br*0x80000 + 4*8192}")
            I(f"s_add_u32 s{sTl}, s{sO[1]}, {br*8192}")
            I(f"buffer_load_dwordx2 v[{N[0]}:{N[1]}], v{vPm}, s[{sW}:{sW+3}], s{sTl} offen sc1")
            I(f"buffer_load_dwordx2 v[{N[2]}:{N[3]}], v{vPm}, s[{sW}:{sW+3}], s{sTl} offen offset:512 sc1")
            I(f"buffer_load_dwordx4 v[{O[0]}:{O[3]}], v{vPo}, s[{sW}:{sW+3}], s{s4_} offen sc1")
            I(f"buffer_load_dwordx4 v[{O[4]}:{O[7]}], v{vPo}, s[{sW}:{sW+3}], s{s5_} offen sc1")
        return f
    def wo_loads(br):
        for t in range(4):
            dst = f"a[{4*t}:{4*t+3}]" if br else f"v[{vWoA+4*t}:{vWoA+4*t+3}]"
            I(f"buffer_load_dwordx4 {dst}, v{vWo}, s[{(sT2 if br else sT)}:{(sT2 if br else sT)+3}], s{sWoOff} offen offset:{t*1024} {pol(cfg.fWoB if br else cfg.fWoA)}")
    A("L_exit:")
    stamp(4)
    vOB = vG + 24
    vOA = vD
    if cfg.hint:
        I(f"v_mov_b32 v{vClaim}, 0")
        I("s_mov_b64 exec, 1")
        I(f"buffer_atomic_add v{vClaim}, v{vZ}, s[{sW}:{sW+3}], s{sRdyC} offen sc0 sc1")
        I("s_mov_b64 exec, -1")
    if not cfg.apre:
        wo_loads(0)
    if cfg.woearly and not cfg.wobpost: wo_loads(1)
    write_partial(LDS_PRB, LDS_MLB, 3)
    combine_publish(1, LDS_PRB, LDS_MLB, "L_pubB_done", rdy=cfg.gate1)
    stamp(4)
    if cfg.wobpost: wo_loads(1)
    if cfg.apre:
        assert cfg.woearly and not cfg.bearly
        I(f"s_cmp_ge_u32 s{sWave}, 2")
        I("s_cbranch_scc1 L_wA4")
        I(f"s_waitcnt vmcnt({7 if cfg.gate1 else 6})")
        I("s_branch L_wAd")
        A("L_wA4:")
        I("s_waitcnt vmcnt(4)")
        A("L_wAd:")
        if cfg.hint:
            I(f"v_readfirstlane_b32 s{sEarly}, v{vClaim}")
            I("s_nop 1")
            I(f"s_cmp_ge_u32 s{sEarly}, {cfg.hintN}")
            I(f"s_cselect_b32 s{sEarly}, 1, 0")
            I("s_cbranch_scc0 L_noearly")
            part_loads(1)()
            A("L_noearly:")
    else:
        part_loads(0)()
        I("s_waitcnt vmcnt(0)")
    def arrive2():
        I(f"v_mov_b32 v{vTmp}, 1")
        I("s_mov_b64 exec, 1")
        I(f"buffer_atomic_add v{vTmp}, v{vZ}, s[{sW}:{sW+3}], s{sR2P} offen sc1")
        I("s_mov_b64 exec, -1")
    def query1():
        I(f"v_mov_b32 v{vClaim}, 0")
        I("s_mov_b64 exec, 1")
        I(f"buffer_atomic_add v{vClaim}, v{vZ}, s[{sW}:{sW+3}], s{sRdyC} offen sc0 sc1")
        I("s_mov_b64 exec, -1")
    def project(br, orb):
        O, N = rO[br], rN[br]
        Nm = [N[0], N[2]]; Nl = [N[1], N[3]]
        poll_loop(f"h1{br}", part_loads(br), O + Nm, cfg.masked, full=Nl)
        if br == 1: stamp(4)
        if br == 0: stamp(7)
        if br == 1 and cfg.stamps and cfg.diag == 3: I(f"s_sub_u32 s{sLand0}, {hex(cfg.TO)}, s{sTo}")
        if br == 1 and cfg.gate2 and cfg.r2lead == 3: arrive2()
        for r in Nm + O: I(f"v_and_b32 v{r}, s{sMaskHi}, v{r}")
        mx = [vTmp, vTmp2]
        for m in range(2): I(f"v_max_f32_dpp v{mx[m]}, v{Nm[m]}, v{Nm[m]} row_ror:4 row_mask:0xf bank_mask:0xf")
        I("s_nop 0")
        for m in range(2): I(f"v_max_f32_dpp v{mx[m]}, v{mx[m]}, v{mx[m]} row_ror:8 row_mask:0xf bank_mask:0xf")
        for m in range(2): I(f"v_sub_f32 v{Nm[m]}, v{Nm[m]}, v{mx[m]}")
        for m in range(2): I(f"v_exp_f32 v{Nm[m]}, v{Nm[m]}")
        I("s_nop 1")
        for m in range(2): I(f"v_add_f32_dpp v{Nl[m]}, v{Nm[m]}, v{Nm[m]} row_ror:4 row_mask:0xf bank_mask:0xf")
        I("s_nop 0")
        for m in range(2): I(f"v_add_f32_dpp v{Nl[m]}, v{Nl[m]}, v{Nl[m]} row_ror:8 row_mask:0xf bank_mask:0xf")
        for m in range(2): I(f"v_rcp_f32 v{Nl[m]}, v{Nl[m]}")
        I("s_nop 0")
        for m in range(2): I(f"v_mul_f32 v{Nm[m]}, v{Nm[m]}, v{Nl[m]}")
        for m in range(2):
            for k in range(4): I(f"v_mul_f32 v{O[4*m+k]}, v{Nm[m]}, v{O[4*m+k]}")
        for sh in (4, 8):
            for k in range(8): I(f"v_add_f32_dpp v{O[k]}, v{O[k]}, v{O[k]} row_ror:{sh} row_mask:0xf bank_mask:0xf")
        for k in range(8): I(f"v_cvt_pk_bf16_f32 v{O[k]}, v{O[k]}, v{O[k]}")
        for m in range(2):
            for t in range(4):
                I(f"v_and_b32 v{vOB+8*m+2*t}, v{O[4*m+t]}, v{vMask0}")
                I(f"v_and_b32 v{vOB+8*m+2*t+1}, v{O[4*m+t]}, v{vMask1}")
        if br == 0 and cfg.gate1 and cfg.g1early:
            if cfg.hint:
                I(f"s_cmp_eq_u32 s{sEarly}, 1")
                I("s_cbranch_scc1 L_noq1")
            query1()
            if cfg.hint: A("L_noq1:")
        if br == 1 and cfg.gate2 and cfg.r2lead == 2: arrive2()
        I("s_nop 0")
        for t in range(4):
            for m in range(2):
                for h in range(2):
                    d = vOA + (m*2+h)*4
                    src = f"a[{4*t+2*h}:{4*t+2*h+1}]" if br else f"v[{vWoA+4*t+2*h}:{vWoA+4*t+2*h+1}]"
                    c = "0" if t == 0 else f"v[{d}:{d+3}]"
                    I(f"v_mfma_f32_16x16x16_bf16 v[{d}:{d+3}], {src}, v[{vOB+8*m+2*t}:{vOB+8*m+2*t+1}], {c}")
        I(f"s_mul_i32 s{s0_}, s{sWave}, {8*ROW}")
        I(f"v_add_u32 v{vTmp2}, s{s0_}, v{vLdsW}")
        I(f"s_add_u32 s{s1_}, s{sO[2]}, {br*4*64*8*512}")
        if br == 0 and cfg.gate1 and not cfg.g1early: query1()
        I("s_nop 5")
        for m in range(2):
            for h in range(2):
                for r in range(4):
                    I(f"ds_write_b32 v{vTmp2}, v{vOA+(m*2+h)*4+r} offset:{orb + m*4*ROW + (8*r+4*h)*4}")
        if br == 1 and cfg.gate2 and cfg.r2lead == 1: arrive2()
        I("s_waitcnt lgkmcnt(0)")
        if br == 0: stamp(7)
        I("s_barrier")
        if br == 0: stamp(7)
        if br == 0 and cfg.bpos == "bar" and not cfg.gate1: part_loads(1)()
        if br == 0 and cfg.gate1 and cfg.g1early:
            if cfg.hint:
                I(f"s_cmp_eq_u32 s{sEarly}, 1")
                I("s_cbranch_scc1 L_g1late")
            I("s_waitcnt vmcnt(0)")
            I(f"v_readfirstlane_b32 s{sEarly}, v{vClaim}")
            I("s_nop 1")
            I(f"s_cmp_ge_u32 s{sEarly}, 64")
            I(f"s_cselect_b32 s{sEarly}, 1, 0")
            I("s_cbranch_scc0 L_g1late")
            part_loads(1)()
            A("L_g1late:")
        vA = vD
        for w in range(4): I(f"ds_read_b128 v[{vA+4*w}:{vA+4*w+3}], v{vRd} offset:{orb + w*8*ROW}")
        I("s_waitcnt lgkmcnt(0)")
        for k in range(4):
            I(f"v_add_f32 v{vA+k}, v{vA+k}, v{vA+4+k}")
            I(f"v_add_f32 v{vA+8+k}, v{vA+8+k}, v{vA+12+k}")
        for k in range(4): I(f"v_add_f32 v{vA+k}, v{vA+k}, v{vA+8+k}")
        for k in range(4): I(f"v_bfi_b32 v{vA+k}, s{sFF}, v{vTag}, v{vA+k}")
        I(f"buffer_store_dwordx4 v[{vA}:{vA+3}], v{vOp}, s[{sW}:{sW+3}], s{s1_} offen sc1")
    project(0, LDS_ORA)
    stamp(7)
    if cfg.gate1:
        if cfg.g1early:
            I(f"s_cmp_eq_u32 s{sEarly}, 1")
            I("s_cbranch_scc1 L_g1have")
            query1()
            I("s_waitcnt vmcnt(0)")
        else:
            I("s_waitcnt vmcnt(1)")
        I(f"s_mov_b32 s{sTo}, {cfg.gto}")
        A("L_g1:")
        I(f"v_readfirstlane_b32 s{s0_}, v{vClaim}")
        I("s_nop 1")
        I(f"s_cmp_ge_u32 s{s0_}, 64")
        I("s_cbranch_scc1 L_g1ok")
        I(f"s_sub_u32 s{sTo}, s{sTo}, 1")
        I(f"s_cmp_eq_u32 s{sTo}, 0")
        I("s_cbranch_scc1 L_g1ok")
        query1()
        I("s_waitcnt vmcnt(0)")
        I("s_branch L_g1")
        A("L_g1ok:")
        part_loads(1)()
        I("s_waitcnt vmcnt(0)")
        if cfg.g1early:
            A("L_g1have:")
            I("s_waitcnt vmcnt(1)")
    elif cfg.bpos == "store":
        part_loads(1)()
        I("s_waitcnt vmcnt(0)")
    else:
        I("s_waitcnt vmcnt(1)")
    if cfg.diag == 3: stamp(3); stamp(3)
    project(1, LDS_ORB2)
    if cfg.gate2 and cfg.r2lead == 0: arrive2()
    stamp(4)
    def final_reduce(tag, ahead=None):
        I(f"s_lshr_b32 s{s0_}, s2, 7")
        I(f"s_bfe_u32 s{s1_}, s2, 0x30004")
        I(f"s_bfe_u32 s{s2_}, s2, 0x20002")
        I(f"s_lshl_b32 s{s3_}, s{s0_}, 2"); I(f"s_add_u32 s{s3_}, s{s3_}, s{s2_}")
        I(f"s_lshl_b32 s{s3_}, s{s3_}, 18")
        I(f"s_lshl_b32 s{s4_}, s{s1_}, 9"); I(f"s_add_u32 s{s3_}, s{s3_}, s{s4_}")
        I(f"s_lshl_b32 s{s4_}, s{sJ}, 7"); I(f"s_add_u32 s{s3_}, s{s3_}, s{s4_}")
        I(f"s_add_u32 s{s3_}, s{s3_}, {WS_OP}")
        I(f"v_lshrrev_b32 v{vG}, 3, v{vL}")
        I(f"v_lshlrev_b32 v{vG}, 12, v{vG}")
        I(f"v_and_b32 v{vG+1}, 7, v{vL}")
        I(f"v_lshl_add_u32 v{vG}, v{vG+1}, 4, v{vG}")
        vF = vG + 8
        I(f"s_lshl_b32 s{s4_}, s{s1_}, 11")
        I(f"s_lshl_b32 s{s5_}, s{s0_}, 10"); I(f"s_add_u32 s{s4_}, s{s4_}, s{s5_}")
        I(f"s_lshl_b32 s{s5_}, s{s2_}, 8"); I(f"s_add_u32 s{s4_}, s{s4_}, s{s5_}")
        I(f"s_lshl_b32 s{s5_}, s{sJ}, 6"); I(f"s_add_u32 s{s5_}, s{s4_}, s{s5_}")
        srd(sT, sOut, 16384)
        I(f"v_lshlrev_b32 v{vG+1}, 3, v{vG+1}")
        def loads():
            I(f"s_mov_b32 s{s4_}, s{s3_}")
            for i in range(8):
                I(f"buffer_load_dwordx4 v[{vF+4*i}:{vF+4*i+3}], v{vG}, s[{sW}:{sW+3}], s{s4_} offen sc1")
                if i < 7: I(f"s_add_u32 s{s4_}, s{s4_}, 32768")
        if ahead is None and cfg.probe:
            I(f"v_lshlrev_b32 v{vG+2}, 12, v{vL}")
            def probe():
                I(f"buffer_load_dword v{vG+3}, v{vG+2}, s[{sW}:{sW+3}], s{s3_} offen sc1")
            probe()
            I("s_waitcnt vmcnt(0)")
            poll_loop(f"pr{tag}", probe, [vG+3], True)
        if cfg.gate2:
            I("s_cmp_lt_u32 s2, 128")
            I(f"s_cbranch_scc1 L_g2ok")
            I(f"s_lshl_b32 s{s4_}, s{s2_}, 11"); I(f"s_add_u32 s{sTl}, s{s4_}, {WS_R2}")
            I(f"v_lshlrev_b32 v{vG+2}, 8, v{vL}")
            I(f"s_mov_b32 s{sTo}, {cfg.gto}")
            A("L_g2:")
            I(f"v_mov_b32 v{vG+3}, 0")
            I("s_mov_b64 exec, 0xff")
            I(f"buffer_atomic_add v{vG+3}, v{vG+2}, s[{sW}:{sW+3}], s{sTl} offen sc0 sc1")
            I("s_waitcnt vmcnt(0)")
            I(f"v_cmp_gt_u32 vcc, 32, v{vG+3}")
            I("s_mov_b64 exec, -1")
            I("s_cbranch_vccz L_g2ok")
            I(f"s_sub_u32 s{sTo}, s{sTo}, 1")
            I(f"s_cmp_lg_u32 s{sTo}, 0")
            I("s_cbranch_scc1 L_g2")
            A("L_g2ok:")
        loads()
        if ahead is not None:
            ahead()
        else:
            I("s_waitcnt vmcnt(0)")
        if not cfg.h2mask:
            poll_loop(f"h2{tag}", loads, list(range(vF, vF+32)), False)
        else:
            mk = [4 + 2*i for i in range(8)]
            for i in range(8): I(f"s_mov_b64 s[{mk[i]}:{mk[i]+1}], -1")
            I(f"s_mov_b32 s{sTo}, {hex(cfg.TO)}")
            A(f"L_h2{tag}_chk:")
            for i in range(8):
                I(f"s_mov_b64 exec, s[{mk[i]}:{mk[i]+1}]")
                I(f"s_cbranch_execz L_h2{tag}_c{i}")
                tagbad(list(range(vF+4*i, vF+4*i+4)))
                I("s_nop 0")
                I(f"s_mov_b64 s[{mk[i]}:{mk[i]+1}], vcc")
                A(f"L_h2{tag}_c{i}:")
            I("s_mov_b64 exec, -1")
            I(f"s_or_b64 vcc, s[{mk[0]}:{mk[0]+1}], s[{mk[1]}:{mk[1]+1}]")
            for i in range(2, 8): I(f"s_or_b64 vcc, vcc, s[{mk[i]}:{mk[i]+1}]")
            I(f"s_cbranch_scc0 L_h2{tag}_ok")
            I(f"s_sub_u32 s{sTo}, s{sTo}, 1")
            I(f"s_cmp_eq_u32 s{sTo}, 0")
            I(f"s_cbranch_scc1 L_h2{tag}_ok")
            I(f"s_mov_b32 s{s4_}, s{s3_}")
            for i in range(8):
                I(f"s_mov_b64 exec, s[{mk[i]}:{mk[i]+1}]")
                I(f"s_cbranch_execz L_h2{tag}_l{i}")
                I(f"buffer_load_dwordx4 v[{vF+4*i}:{vF+4*i+3}], v{vG}, s[{sW}:{sW+3}], s{s4_} offen sc1")
                A(f"L_h2{tag}_l{i}:")
                if i < 7: I(f"s_add_u32 s{s4_}, s{s4_}, 32768")
            I("s_mov_b64 exec, -1")
            I("s_waitcnt vmcnt(0)")
            I(f"s_branch L_h2{tag}_chk")
            A(f"L_h2{tag}_ok:")
        for r in range(vF, vF+32): I(f"v_and_b32 v{r}, s{sMaskHi}, v{r}")
        for step in (16, 8, 4):
            for k in range(step): I(f"v_add_f32 v{vF+k}, v{vF+k}, v{vF+step+k}")
        I("s_nop 0")
        for k in range(4): I(f"v_add_f32_dpp v{vF+k}, v{vF+k}, v{vF+k} row_ror:8 row_mask:0xf bank_mask:0xf")
        for k in range(4): I(f"v_mov_b32 v{vF+4+k}, v{vF+k}")
        I("s_nop 1")
        for k in range(4): I(f"v_permlane16_swap_b32 v{vF+k}, v{vF+4+k}")
        I("s_nop 1")
        for k in range(4): I(f"v_add_f32 v{vF+k}, v{vF+k}, v{vF+4+k}")
        for k in range(4): I(f"v_mov_b32 v{vF+4+k}, v{vF+k}")
        I("s_nop 1")
        for k in range(4): I(f"v_permlane32_swap_b32 v{vF+k}, v{vF+4+k}")
        I("s_nop 1")
        for k in range(4): I(f"v_add_f32 v{vF+k}, v{vF+k}, v{vF+4+k}")
        I(f"v_cvt_pk_bf16_f32 v{vF+8}, v{vF}, v{vF+1}")
        I(f"v_cvt_pk_bf16_f32 v{vF+9}, v{vF+2}, v{vF+3}")
        I("s_mov_b64 exec, 0xff")
        I(f"buffer_store_dwordx2 v[{vF+8}:{vF+9}], v{vG+1}, s[{sT}:{sT+3}], s{s5_} offen {pol(cfg.outf) if cfg.outf else ''}")
        I("s_mov_b64 exec, -1")

    I(f"s_cmp_lg_u32 s{sWave}, 0")
    I("s_cbranch_scc1 L_fin")
    final_reduce("E")
    I("s_cmp_lg_u32 s2, 0")
    I("s_cbranch_scc1 L_fin")
    I("s_mov_b64 exec, 1")
    I(f"buffer_store_dword v{vTag}, v{vZ}, s[{sW}:{sW+3}], 0 offen offset:{WS_EPOCH} sc1")
    A("L_fin:")
    if cfg.stamps:
        I("s_mov_b64 exec, 1")
        I(f"s_memrealtime s[100:101]")
        I("s_waitcnt lgkmcnt(0)")
        I(f"s_lshl_b32 s{s0_}, s2, 2"); I(f"s_add_u32 s{s0_}, s{s0_}, s{sWave}"); I(f"s_lshl_b32 s{s0_}, s{s0_}, 7")
        I(f"s_add_u32 s{s0_}, s{s0_}, {WS_STAMP}")
        for q in range(5):
            for k in range(4): I(f"v_mov_b32 v{vG+4*q+k}, s{sStamp+4*q+k}")
            I(f"buffer_store_dwordx4 v[{vG+4*q}:{vG+4*q+3}], v{vZ}, s[{sW}:{sW+3}], s{s0_} offen offset:{16*q}")
        I(f"s_getreg_b32 s{s1_}, hwreg(HW_REG_XCC_ID)")
        I(f"s_lshl_b32 s{s2_}, s{sEnd}, 8"); I(f"s_or_b32 s{sLand0}, s{sLand0}, s{s2_}")
        I(f"v_mov_b32 v{vG+20}, s100"); I(f"v_mov_b32 v{vG+21}, s101"); I(f"v_mov_b32 v{vG+22}, s{s1_}"); I(f"v_mov_b32 v{vG+23}, s{sLand0}")
        I(f"buffer_store_dwordx4 v[{vG+20}:{vG+23}], v{vZ}, s[{sW}:{sW+3}], s{s0_} offen offset:80")
    I("s_endpgm")
    for s in range(R):
        A(f"L_rare{s}:")
        I(f"v_mov_b32 v{vTmp}, v{vS}")
        allsum(vTmp, "max")
        I(f"v_max_f32 v{vTmp}, v{vTmp}, v{vM}")
        I(f"v_sub_f32 v{vTmp2}, v{vM}, v{vTmp}")
        I(f"v_mul_f32 v{vTmp2}, s{sC}, v{vTmp2}")
        I(f"v_exp_f32 v{vTmp2}, v{vTmp2}")
        I(f"v_mov_b32 v{vM}, v{vTmp}")
        I(f"v_mul_f32 v{vMC}, s{sC}, v{vTmp}")
        I(f"v_mul_f32 v{vLs}, v{vLs}, v{vTmp2}")
        for k in range(8): I(f"v_mul_f32 v{vAcc+k}, v{vAcc+k}, v{vTmp2}")
        I(f"s_branch L_cont{s}")
    if R == 8:
        A("L_br0:")
        for slot in (5, 6, 7):
            I(f"s_cmp_eq_u32 s{sLate}, {slot+8}")
            I(f"s_cbranch_scc1 L_br0_{slot}")
        I("s_branch L_noiss0")
        for slot in (5, 6, 7):
            A(f"L_br0_{slot}:")
            I(f"s_mov_b32 s{sLate}, 0")
            issue_tile(slot, "A")
            I("s_branch L_noiss0")
    for s, slot in late_steps.items():
        A(f"L_late{s}:")
        issue_tile(slot, "A" if R == 4 else None)
        I(f"s_branch L_noiss{s}")
    for s in range(R):
        A(f"L_wait{s}:")
        for d in (1, 2, 3):
            if d == W: continue
            I(f"s_cmp_eq_u32 s{s0_}, {d}")
            I(f"s_cbranch_scc1 L_wait{s}_{d}")
        I("s_waitcnt vmcnt(24)")
        I(f"s_branch L_nowait{s}")
        for d in (1, 2, 3):
            if d == W: continue
            A(f"L_wait{s}_{d}:")
            I(f"s_waitcnt vmcnt({8*(d-1)})")
            I(f"s_branch L_nowait{s}")
    for s in range(R):
        A(f"L_dyn{s}:")
        I(f"s_cmp_lt_u32 s{sIss}, {NST}")
        I(f"s_cbranch_scc1 L_claim{s}")
        I(f"s_cmp_lg_u32 s{sEnd}, -1")
        I(f"s_cbranch_scc1 L_noiss{s}")
        I(f"v_readfirstlane_b32 s{s1_}, v{vClaim}")
        I("s_nop 1")
        I(f"s_add_u32 s{s1_}, s{s1_}, {16*SB}")
        if cfg.apre:
            I(f"s_cmp_lt_u32 s{s1_}, {512 - cfg.preN}")
            I(f"s_cbranch_scc1 L_got{s}")
            I(f"s_cmp_lg_u32 s{sPre}, 0")
            I(f"s_cbranch_scc1 L_nopre{s}")
            I(f"s_mov_b32 s{sPre}, 1")
            if cfg.preN and cfg.preafter:
                I(f"s_cmp_lt_u32 s{s1_}, 512")
                I(f"s_cbranch_scc1 L_presucc{s}")
            wo_loads(0)
            part_loads(0)()
            A(f"L_nopre{s}:")
        I(f"s_cmp_lt_u32 s{s1_}, 512")
        I(f"s_cbranch_scc1 L_got{s}")
        I(f"s_mov_b32 s{sEnd}, s{sIss}")
        I(f"s_branch L_noiss{s}")
        A(f"L_got{s}:")
        I(f"s_lshl_b32 s{s1_}, s{s1_}, 12")
        I(f"s_add_u32 s{sOff}, s{sPair}, s{s1_}")
        A(f"L_claim{s}:")
        I(f"v_mov_b32 v{vClaim}, 1")
        I("s_mov_b64 exec, 1")
        I(f"buffer_atomic_add v{vClaim}, v{vZ}, s[{sW}:{sW+3}], s{sCnt} offen sc0 sc1")
        I("s_mov_b64 exec, -1")
        I(f"s_branch L_loads{s}")
        if cfg.apre and cfg.preN and cfg.preafter:
            A(f"L_presucc{s}:")
            I(f"s_lshl_b32 s{s1_}, s{s1_}, 12")
            I(f"s_add_u32 s{sOff}, s{sPair}, s{s1_}")
            I(f"v_mov_b32 v{vClaim}, 1")
            I("s_mov_b64 exec, 1")
            I(f"buffer_atomic_add v{vClaim}, v{vZ}, s[{sW}:{sW+3}], s{sCnt} offen sc0 sc1")
            I("s_mov_b64 exec, -1")
            issue_tile((s+W) % R)
            wo_loads(0)
            part_loads(0)()
            I(f"s_mov_b32 s{sExtra}, 1")
            I(f"s_branch L_noiss{s}")
    for (u, slot, pa) in late_blocks:
        A(f"L_ia{u}:")
        tile_loads(slot, *pa)
        I(f"s_branch L_ib{u}")
    A("L_end:")
    I("s_endpgm")
    A('.section .rodata,"a"'); A(".p2align 6"); A(f".amdhsa_kernel {KNAME}")
    I(f".amdhsa_next_free_vgpr {NV + 32*R}")
    I(f".amdhsa_next_free_sgpr {NS}")
    I(f".amdhsa_accum_offset {NV}")
    I(".amdhsa_group_segment_fixed_size 0")
    I(".amdhsa_kernarg_size 104")
    I(".amdhsa_user_sgpr_count 2")
    I(".amdhsa_user_sgpr_kernarg_segment_ptr 1")
    I(".amdhsa_system_sgpr_workgroup_id_x 1")
    I(".amdhsa_float_denorm_mode_32 3")
    A(".end_amdhsa_kernel")
    return "\n".join(L) + "\n"

if __name__ == "__main__":
    out = sys.argv[1]
    cfg = Cfg()
    for kv in sys.argv[2:]:
        k, v = kv.split("=")
        cur = getattr(cfg, k)
        setattr(cfg, k, (v not in ("0", "False")) if isinstance(cur, bool) else (int(v, 0) if isinstance(cur, int) else v))
    open(out, "w").write(gen(cfg))
```
